```python
import torch

def _softmax(x, axis=-1):
    return torch.softmax(x, dim=axis)
def _gelu(x):
    return torch.nn.functional.gelu(x, approximate="tanh")
def _silu(x):
    return torch.nn.functional.silu(x)
def _sigmoid(x):
    return torch.sigmoid(x)
def _layernorm(x, axis=-1, eps=1e-5):
    m = x.mean(dim=axis, keepdim=True)
    v = x.var(dim=axis, keepdim=True, unbiased=False)
    return (x - m) / torch.sqrt(v + eps)
def _scatter_add(tgt, idx, src, axis=0):
    return tgt.clone().index_add_(axis, idx, src)
def _segment_sum(src, seg, n):
    out = torch.zeros((n,) + src.shape[1:], dtype=src.dtype)
    return out.index_add_(0, seg, src)
def _pad(x, pw):
    flat = tuple(v for pair in reversed(pw) for v in pair)
    return torch.nn.functional.pad(x, flat)

kernel_name = 'standalone__gqa_softmax__near_ridge'

def setup_inputs():

    _w = (lambda a: (lambda t: t.to(torch.bfloat16) if t.is_floating_point() else t)(torch.as_tensor(a)))
    B, Hq, Hkv, Sq, Sk, D = 8, 32, 16, 256, 1024, 128
    return {
        "q": _w((lambda *s: torch.randn(*s, dtype=torch.bfloat16) * 0.8)(B, Hq, Sq, D)),
        "k": _w((lambda *s: torch.randn(*s, dtype=torch.bfloat16) * 0.8)(B, Hkv, Sk, D)),
        "v": _w((lambda *s: torch.randn(*s, dtype=torch.bfloat16) * 0.05)(B, Hkv, Sk, D)),
    }

def reference(q, k, v):
    B, Hq, Sq, D = q.shape
    Hkv = k.shape[1]
    rep = Hq // Hkv
    k = (lambda x, n, axis: torch.repeat_interleave(x, n, dim=axis))(k, rep, axis=1)
    v = (lambda x, n, axis: torch.repeat_interleave(x, n, dim=axis))(v, rep, axis=1)
    scale = D ** -0.5
    scores = torch.einsum("bhqd,bhkd->bhqk", q, k) * scale
    p = _softmax(scores, axis=-1)
    return torch.einsum("bhqk,bhkd->bhqd", p, v)
```

```python
import re

REG_RE = re.compile(r'\b([vas])(?:\[(\d+):(\d+)\]|(\d+))')

TRANS = ('v_exp_f32', 'v_log_f32', 'v_rcp_f32', 'v_rsq_f32', 'v_sqrt_f32')


def regs_of(tok):
    out = []
    for m in REG_RE.finditer(tok):
        k = m.group(1)
        if m.group(2) is not None:
            out += [(k, i) for i in range(int(m.group(2)), int(m.group(3)) + 1)]
        else:
            out.append((k, int(m.group(4))))
    if re.search(r'\bvcc\b', tok):
        out.append(('x', 'vcc'))
    if re.search(r'\bm0\b', tok):
        out.append(('x', 'm0'))
    if re.search(r'\bexec\b', tok):
        out.append(('x', 'exec'))
    return out


def split_ops(rest):
    ops, cur, depth = [], '', 0
    for ch in rest:
        if ch == '[':
            depth += 1
        if ch == ']':
            depth -= 1
        if ch == ',' and depth == 0:
            ops.append(cur.strip())
            cur = ''
        else:
            cur += ch
    if cur.strip():
        ops.append(cur.strip())
    return ops


class I:
    def __init__(self, text):
        self.text = text
        t = text.split(';')[0].strip()
        self.label = t.endswith(':')
        self.kind = 'other'
        self.defs, self.uses = [], []
        self.srcc = []
        self.srcab = []
        if self.label or not t or t.startswith('.'):
            self.kind = 'none'
            self.op = ''
            return
        parts = t.split(None, 1)
        op = parts[0]
        op = re.sub(r'_(e32|e64|sdwa|dpp)$', '', op)
        self.op = op
        ops = split_ops(parts[1]) if len(parts) > 1 else []
        self.ops = ops
        R = [regs_of(o) for o in ops]
        flat = lambda l: [x for y in l for x in y]
        if op.startswith('v_mfma'):
            self.kind = 'mfma'
            self.defs = R[0]
            self.srcab = R[1] + R[2]
            self.srcc = R[3]
            self.uses = self.srcab + self.srcc
            self.passes = 8 if '32x32x16' in op else 4
        elif op.startswith('ds_read'):
            self.kind = 'dsr'
            self.defs = R[0]
            self.uses = flat(R[1:])
        elif op.startswith('ds_write'):
            self.kind = 'dsw'
            self.uses = flat(R)
        elif op.startswith('buffer_load') or op.startswith('global_load'):
            if re.search(r'\blds\b', t) or 'load_lds' in op:
                self.kind = 'dma'
                self.uses = flat(R) + [('x', 'm0')]
            else:
                self.kind = 'vld'
                self.defs = R[0]
                self.uses = flat(R[1:])
        elif op.startswith('buffer_store') or op.startswith('global_store'):
            self.kind = 'vst'
            self.uses = flat(R)
            self.data = R[0] if op.startswith('buffer') else R[1]
            self.wide = op.endswith('x4') or op.endswith('x3')
        elif op.startswith('v_'):
            self.kind = 'valu'
            if op.startswith('v_cmp'):
                self.defs = R[0]
                self.uses = flat(R[1:])
            elif op.startswith('v_permlane'):
                self.defs = R[0] + R[1]
                self.uses = R[0] + R[1]
            elif op in ('v_fmac_f32', 'v_dot2c_f32_bf16', 'v_pk_fmac_f16'):
                self.defs = R[0]
                self.uses = flat(R)
            elif op in ('v_add_co_u32', 'v_addc_co_u32'):
                self.defs = R[0] + R[1]
                self.uses = flat(R[2:])
            elif op == 'v_nop':
                pass
            else:
                self.defs = R[0]
                self.uses = flat(R[1:])
                if 'UNUSED_PRESERVE' in t:
                    self.uses += R[0]
            self.trans = op in TRANS
        elif op == 's_waitcnt':
            self.kind = 'wait'
            m = re.search(r'vmcnt\((\d+)\)', t)
            self.vm = int(m.group(1)) if m else None
            m = re.search(r'lgkmcnt\((\d+)\)', t)
            self.lgkm = int(m.group(1)) if m else None
        elif op == 's_nop':
            self.kind = 'nop'
            self.n = int(ops[0], 0) + 1
        elif op == 's_barrier':
            self.kind = 'barrier'
        elif op.startswith('s_load') or op in ('s_memtime', 's_memrealtime'):
            self.kind = 'smem'
            self.defs = R[0]
            self.uses = flat(R[1:])
        elif op.startswith('s_cbranch') or op in ('s_branch', 's_endpgm', 's_setprio', 's_sleep'):
            self.kind = 'sctl'
            if 'vcc' in op:
                self.uses = [('x', 'vcc')]
        elif op.startswith('s_cmp'):
            self.kind = 'salu'
            self.uses = flat(R)
        elif op.startswith('s_'):
            self.kind = 'salu'
            self.defs = R[0] if R else []
            self.uses = flat(R[1:])
        else:
            raise ValueError('unknown instruction: ' + text)

    def states(self):
        if self.kind == 'none':
            return 0
        if self.kind == 'nop':
            return self.n
        return 1

    def slots(self):
        if self.kind == 'none':
            return 0
        if self.kind == 'nop':
            return self.n
        if self.kind == 'mfma':
            return 2
        if self.kind == 'valu' and self.trans:
            return 2
        return 1


def check_trace(lines, verbose=True):
    ins = [I(l) for l in lines]
    probs = []
    pos = 0
    last_valu_w = {}
    last_trans_w = {}
    last_mfma_w = {}
    last_mfma_c = {}
    last_salu_m0 = None
    last_valu_sw = {}
    last_wide_st = {}
    lds_q = []
    smem_pending = []
    vm_q = []
    for idx, x in enumerate(ins):
        if x.kind == 'none':
            continue

        def bad(msg):
            probs.append('%5d: %s   <- %s' % (idx, x.text.strip(), msg))
        touched = set(x.uses) | set(x.defs)
        for q, name in ((lds_q, 'lds'), (vm_q, 'vmem'), (smem_pending, 'smem')):
            for d in q:
                hit = touched & set(d)
                if hit:
                    bad('touches %s with a pending %s load' % (sorted(hit)[0], name))
                    break
        d = lambda p: pos - p - 1
        if x.kind == 'mfma':
            for r in x.uses:
                if r in last_valu_w and d(last_valu_w[r]) < 2:
                    bad('VALU->MFMA read %s needs 2, has %d' % (r, d(last_valu_w[r])))
            for r in x.srcab:
                if r in last_mfma_w:
                    p, ps, _ = last_mfma_w[r]
                    if d(p) < ps + 4:
                        bad('MFMA D->A/B %s needs %d has %d' % (r, ps + 4, d(p)))
            if x.srcc:
                for r in x.srcc:
                    if r in last_mfma_w:
                        p, ps, dd = last_mfma_w[r]
                        if dd == tuple(x.srcc) and ps == x.passes:
                            continue
                        if d(p) < ps + 2:
                            bad('MFMA D->C overlap %s needs %d has %d' % (r, ps + 2, d(p)))
        if x.kind in ('valu', 'dsr', 'dsw', 'vld', 'vst', 'dma'):
            chk = list(x.uses) + list(x.defs)
            for r in chk:
                if r in last_mfma_w:
                    p, ps, _ = last_mfma_w[r]
                    if d(p) < ps + 4:
                        bad('MFMA D->VALU/mem %s needs %d has %d' % (r, ps + 4, d(p)))
        if x.kind == 'valu':
            for r in x.defs:
                if r in last_mfma_c:
                    p, ps = last_mfma_c[r]
                    if d(p) < ps - 1:
                        bad('MFMA C read -> VALU write %s needs %d has %d' % (r, ps - 1, d(p)))
                if r in last_wide_st and d(last_wide_st[r]) < 2:
                    bad('wide store data WAR %s' % (r,))
            if not x.trans:
                for r in x.uses:
                    if r in last_trans_w and d(last_trans_w[r]) < 1:
                        bad('trans->VALU %s needs 1' % (r,))
            if x.op.startswith('v_permlane'):
                for r in x.uses:
                    if r in last_valu_w and d(last_valu_w[r]) < 2:
                        bad('VALU->permlane %s needs 2' % (r,))
            if x.op in ('v_readfirstlane_b32', 'v_readlane_b32'):
                for r in x.uses:
                    if r in last_valu_w and d(last_valu_w[r]) < 1:
                        bad('VALU->readlane %s needs 1' % (r,))
            for r in x.uses:
                if r in last_valu_sw and d(last_valu_sw[r]) < 2:
                    bad('VALU sgpr write -> VALU read %s needs 2' % (r,))
        if x.kind in ('dsr', 'vld'):
            for r in x.defs:
                if r in last_wide_st and d(last_wide_st[r]) < 1:
                    bad('wide store data WAR (load) %s' % (r,))
        if x.kind in ('vld', 'vst', 'dma'):
            for r in x.uses:
                if r in last_valu_sw and d(last_valu_sw[r]) < 5:
                    bad('VALU sgpr write -> VMEM %s needs 5' % (r,))
        if x.kind == 'dma' and last_salu_m0 is not None and d(last_salu_m0) < 1:
            bad('m0 write -> lds dma needs 1')
        if x.kind in ('salu', 'sctl'):
            for r in x.uses:
                if r in last_valu_sw and d(last_valu_sw[r]) < 1:
                    bad('(soft) VALU sgpr write -> SALU read %s' % (r,))
        if x.kind == 'wait':
            if x.lgkm is not None:
                if smem_pending:
                    if x.lgkm == 0:
                        smem_pending.clear()
                        lds_q.clear()
                    else:
                        while len(lds_q) > x.lgkm:
                            lds_q.pop(0)
                else:
                    while len(lds_q) > x.lgkm:
                        lds_q.pop(0)
            if x.vm is not None:
                while len(vm_q) > x.vm:
                    vm_q.pop(0)
        if x.kind == 'dsr':
            lds_q.append(x.defs)
            if len(lds_q) > 15:
                pass
        if x.kind == 'dsw':
            lds_q.append([])
        if x.kind == 'smem':
            smem_pending.append(x.defs)
        if x.kind == 'vld':
            vm_q.append(x.defs)
        if x.kind in ('vst', 'dma'):
            vm_q.append([])
        if len(vm_q) > 63:
            bad('more than 63 vmem ops outstanding')
        if x.kind == 'vst' and x.wide:
            for r in x.data:
                last_wide_st[r] = pos
        if x.kind == 'valu':
            for r in x.defs:
                if r[0] in 'va':
                    last_valu_w[r] = pos
                    last_mfma_w.pop(r, None)
                    if x.trans:
                        last_trans_w[r] = pos
                    else:
                        last_trans_w.pop(r, None)
                else:
                    last_valu_sw[r] = pos
        if x.kind == 'mfma':
            for r in x.defs:
                last_mfma_w[r] = (pos, x.passes, tuple(x.defs))
                last_valu_w.pop(r, None)
            for r in x.srcc:
                last_mfma_c[r] = (pos, x.passes)
        if x.kind == 'salu' and ('x', 'm0') in x.defs:
            last_salu_m0 = pos
        if x.kind == 'salu':
            for r in x.defs:
                last_valu_sw.pop(r, None)
        pos += x.states()
    return probs
```

```python
import sys, math, struct, argparse
from asmlib import I, check_trace

NAME = 'standalone__gqa_softmax__near_ridge'

S_BUF = [[16, 32], [48, 64]]
CINIT = [80, 96]
P_BUF = [112, 128]
VKA = 144
VVA = 152
VDK = 156
VDV = 160
VL = [161, 162]
VQO = 163
VT = 164
VM = [200, 201]
VSK = 202
VSV = 203
VSVA = 204
A_O = 0
A_Q = 128
A_K = 192
A_V = 224

S_Q, S_K, S_V, S_OD = 4, 8, 12, 16
S_W, S_M0K, S_M0V, S_OFFK, S_OFFV, S_CNT = 20, 21, 22, 23, 24, 25
S_C = 26
S_8K = 28
S_THR = 29
S_TMP = 30
S_TS = 40

V_BASE = 65536
SLOW_BASE = 131072


def f2u(x):
    return struct.unpack('<I', struct.pack('<f', x))[0]


def vr(b, n=1):
    return 'v%d' % b if n == 1 else 'v[%d:%d]' % (b, b + n - 1)


def ar(b, n=1):
    return 'a%d' % b if n == 1 else 'a[%d:%d]' % (b, b + n - 1)


def sr(b, n=1):
    return 's%d' % b if n == 1 else 's[%d:%d]' % (b, b + n - 1)


class Gen:
    def __init__(self, opt):
        self.o = opt
        self.nts = 0

    def qk_mfma(self, x, slot, czero=False):
        step, qb = slot >> 1, slot & 1
        d = vr(S_BUF[x & 1][qb], 16)
        if step == 0:
            c = '0' if czero else vr(CINIT[qb], 16)
        else:
            c = d
        return 'v_mfma_f32_32x32x16_bf16 %s, %s, %s, %s' % (d, ar(A_K + 4 * step, 4), ar(A_Q + 32 * qb + 4 * step, 4), c)

    def pv_mfma(self, x, ks, db, qb):
        o = ar(A_O + 64 * qb + 16 * db, 16)
        return 'v_mfma_f32_32x32x16_bf16 %s, %s, %s, %s' % (o, ar(A_V + 16 * ks + 4 * db, 4), vr(P_BUF[x & 1] + 8 * qb + 4 * ks, 4), o)

    def k_read(self, x, step):
        off = ((x >> 1) & 3) * 16384 + (x & 1) * 8192
        return 'ds_read_b128 %s, %s offset:%d' % (ar(A_K + 4 * step, 4), vr(VKA + step), off)

    def v_read(self, x, ks, db, t, addr=VVA, base=None):
        off = ((x >> 1) & 3) * 16384 + (x & 1) * 8192 if base is None else base
        off += (16 * ks + 8 * t) * 256
        return 'ds_read_b64_tr_b16 %s, %s offset:%d' % (ar(A_V + 16 * ks + 4 * db + 2 * t, 2), vr(addr + db), off)

    def sm_ops(self, x):
        LAG = self.o.lag
        ops = []
        order = [(0, r) for r in range(8)] + [(1, r) for r in range(8)] + [(0, r) for r in range(8, 16)] + [(1, r) for r in range(8, 16)]
        for i, (qb, r) in enumerate(order):
            s = S_BUF[x & 1][qb] + r
            ops.append((LAG + i, 0, 'v_exp_f32 %s, %s' % (vr(s), vr(s))))
            ops.append((LAG + i + 1, 1, 'v_add_f32 %s, %s, %s' % (vr(VL[qb]), vr(VL[qb]), vr(s))))
            if r & 1:
                p = P_BUF[x & 1] + 8 * qb + (r >> 1)
                ops.append((LAG + i + 1, 2, 'v_cvt_pk_bf16_f32 %s, %s, %s' % (vr(p), vr(s - 1), vr(s))))
        return ops

    def dma_k(self, i):
        return 'buffer_load_dwordx4 %s, %s, %s offen offset:%d lds' % (vr(VDK + i), sr(S_K, 4), sr(S_OFFK), 1024 * i)

    def dma_v(self, i):
        return 'buffer_load_dwordx4 %s, %s, %s offen offset:%d lds' % (vr(VDV), sr(S_V, 4), sr(S_OFFV), 1024 * i)

    def stamp(self):
        if not self.o.stamps:
            return []
        k = self.nts
        self.nts += 1
        return ['s_memtime %s' % sr(S_TS + 2 * k, 2)]

    def period(self, u, has_qk=True):
        o = self.o
        gaps = [[] for _ in range(32)]
        pre = [[] for _ in range(32)]
        for g, k, t in self.sm_ops(u):
            if 16 <= g < 48:
                gaps[g - 16].append((k, t))
        if has_qk:
            for g, k, t in self.sm_ops(u + 1):
                if g < 16:
                    gaps[16 + g].append((k, t))
        even = (u & 1) == 0
        vreads = [self.v_read(u, ks, db, t) for ks in range(2) for db in range(4) for t in range(2)]
        g0 = 1 if even else 0
        g = g0
        while vreads:
            n = 1 if any('cvt' in t for _, t in gaps[g]) else 2
            for _ in range(n):
                if vreads:
                    gaps[g].append((5, vreads.pop(0)))
            g += 1
        if has_qk:
            for s in range(8):
                gaps[16 + o.kgap[s]].append((5, self.k_read(u + 2, s)))
        pre[0].append('s_waitcnt lgkmcnt(0)')
        pre[16].append('s_waitcnt lgkmcnt(0)')
        if even:
            t = u >> 1
            if not o.nobar:
                gaps[0] = gaps[0] + [(8, 's_waitcnt vmcnt(16)'), (9, 's_barrier')]
            if not o.nodma:
                ks_, vs_ = t & 3, (t + 3) & 3
                G = o.dgap
                gaps[G[0]].append((6, 's_add_u32 m0, %s, %d' % (sr(S_M0K), ks_ * 16384)))
                for i in range(4):
                    gaps[G[1 + i]].append((7, self.dma_k(i)))
                gaps[G[4]].append((8, 's_add_u32 %s, %s, 16384' % (sr(S_OFFK), sr(S_OFFK))))
        else:
            t = u >> 1
            if not o.nodma:
                ks_, vs_ = t & 3, (t + 3) & 3
                G = o.dgap
                gaps[G[0]].append((6, 's_add_u32 m0, %s, %d' % (sr(S_M0V), vs_ * 16384)))
                for i in range(4):
                    gaps[G[1 + i]].append((7, self.dma_v(i)))
                gaps[G[4]].append((8, 's_add_u32 %s, %s, 16384' % (sr(S_OFFV), sr(S_OFFV))))
        out = []
        for g in range(32):
            out += pre[g]
            if g < 16:
                if has_qk:
                    out.append(self.qk_mfma(u + 1, g))
            else:
                s = g - 16
                out.append(self.pv_mfma(u, s >> 3, (s >> 1) & 3, s & 1))
            out += [t for _, t in sorted(gaps[g], key=lambda z: z[0])]
        return out

    def prologue(self):
        o = self.o
        L = []
        e = L.append
        e('s_cmp_ge_u32 s2, 256')
        e('s_cbranch_scc1 L_done')
        e('s_load_dwordx4 s[32:35], s[0:1], 0')
        e('s_load_dwordx4 s[36:39], s[0:1], 16')
        if o.stamps:
            e('s_load_dwordx2 s[90:91], s[0:1], 40')
            e('s_memrealtime s[92:93]')
        L += self.stamp()
        T = VT
        e('v_and_b32 v1, 63, v0')
        e('v_lshrrev_b32 v2, 6, v0')
        e('v_lshrrev_b32 v3, 5, v1')
        e('v_readfirstlane_b32 %s, v2' % sr(S_W))
        e('v_and_b32 v4, 31, v1')
        e('v_lshrrev_b32 v5, 4, v1')
        e('v_and_b32 v6, 15, v1')
        e('s_and_b32 s30, s2, 7')
        e('s_lshr_b32 s31, s2, 3')
        e('s_lshl_b32 s30, s30, 4')
        e('s_lshr_b32 s3, s31, 1')
        e('s_add_u32 s30, s30, s3')
        e('s_and_b32 s31, s31, 1')
        e('s_lshl_b32 s3, s30, 1')
        e('s_add_u32 s31, s31, s3')
        e('s_lshl_b32 s30, s30, 18')
        e('s_lshl_b32 s31, s31, 16')
        e('s_lshl_b32 %s, %s, 12' % (sr(S_M0K), sr(S_W)))
        e('s_add_u32 %s, %s, %d' % (sr(S_M0V), sr(S_M0K), V_BASE))
        e('v_lshlrev_b32 v7, 8, v5')
        e('v_add_u32 v7, %s, v7' % sr(S_M0K))
        e('v_xor_b32 v8, v6, v5')
        e('v_lshl_add_u32 %s, v8, 4, v7' % vr(VDK))
        for i in range(1, 4):
            e('v_xor_b32 %s, %d, %s' % (vr(VDK + i), i << 6, vr(VDK)))
        e('v_lshlrev_b32 v8, 2, v5')
        e('v_xor_b32 v8, v6, v8')
        e('v_lshl_add_u32 %s, v8, 4, v7' % vr(VDV))
        e('v_subrev_u32 %s, %s, %s' % (vr(VSV), sr(S_M0K), vr(VDV)))
        e('v_lshlrev_b32 v8, 8, v4')
        e('v_lshl_add_u32 %s, v3, 4, v8' % vr(VSK))
        e('s_lshl_b32 s3, %s, 14' % sr(S_W))
        e('v_add_u32 %s, s3, %s' % (vr(VQO), vr(VSK)))
        e('s_mov_b32 %s, 8192' % sr(S_8K))
        e('s_mov_b32 %s, 0' % sr(S_OFFK))
        e('s_mov_b32 %s, 0' % sr(S_OFFV))
        e('s_waitcnt lgkmcnt(0)')
        e('s_add_u32 s8, s34, s30')
        e('s_addc_u32 s9, s35, 0')
        e('s_mov_b32 s10, 0x40000')
        e('s_mov_b32 s11, 0x20000')
        e('s_add_u32 s4, s32, s31')
        e('s_addc_u32 s5, s33, 0')
        e('s_mov_b32 s6, 0x10000')
        e('s_mov_b32 s7, 0x20000')
        e('s_mov_b32 m0, %s' % sr(S_M0K))
        e('s_add_u32 s12, s36, s30')
        for i in range(4):
            e(self.dma_k(i))
        e('s_addc_u32 s13, s37, 0')
        e('s_mov_b32 s14, 0x40000')
        e('s_mov_b32 s15, 0x20000')
        for qb in range(2):
            for st in range(8):
                e('buffer_load_dwordx4 %s, %s, %s, %s offen offset:%d' % (vr(16 + 32 * qb + 4 * st, 4), vr(VQO), sr(S_Q, 4), '0' if qb == 0 else sr(S_8K), 32 * st))
        e('s_add_u32 s16, s38, s31')
        e('s_addc_u32 s17, s39, 0')
        e('s_mov_b32 s18, 0x10000')
        e('s_mov_b32 s19, 0x20000')
        for t in range(3):
            e('s_add_u32 m0, %s, %d' % (sr(S_M0V), t * 16384))
            e('s_add_u32 %s, %s, 16384' % (sr(S_OFFK), sr(S_OFFK)))
            for i in range(4):
                e(self.dma_v(i))
            e('s_add_u32 m0, %s, %d' % (sr(S_M0K), (t + 1) * 16384))
            e('s_add_u32 %s, %s, 16384' % (sr(S_OFFV), sr(S_OFFV)))
            for i in range(4):
                e(self.dma_k(i))
        e('s_add_u32 %s, %s, 16384' % (sr(S_OFFK), sr(S_OFFK)))
        e('v_xor_b32 v8, v3, v6')
        e('v_lshlrev_b32 v9, 8, v4')
        e('v_lshl_add_u32 %s, v8, 4, v9' % vr(VKA))
        for s in range(1, 8):
            e('v_xor_b32 %s, %d, %s' % (vr(VKA + s), s << 5, vr(VKA)))
        e('v_bfe_u32 v8, v1, 2, 2')
        e('v_lshl_add_u32 v9, v3, 2, v8')
        e('v_lshlrev_b32 v9, 8, v9')
        e('v_lshl_add_u32 v9, v8, 6, v9')
        e('v_and_b32 v8, 1, v5')
        e('v_lshl_add_u32 v9, v8, 5, v9')
        e('v_and_b32 v8, 1, v1')
        e('v_lshl_add_u32 v9, v8, 4, v9')
        e('v_bfe_u32 v8, v1, 1, 1')
        e('v_lshl_add_u32 v9, v8, 3, v9')
        e('v_add_u32 %s, %d, v9' % (vr(VVA), V_BASE))
        for db in range(1, 4):
            e('v_xor_b32 %s, %d, %s' % (vr(VVA + db), db << 6, vr(VVA)))
        e('s_lshl_b32 s3, %s, 13' % sr(S_W))
        e('s_add_u32 s3, s3, %d' % (SLOW_BASE - V_BASE))
        for db in range(4):
            e('v_add_u32 %s, s3, %s' % (vr(VSVA + db), vr(VVA + db)))
        c = math.log2(math.e) / math.sqrt(128.0)
        e('s_mov_b32 %s, 0x%08x' % (sr(S_C), f2u(c)))
        e('s_mov_b32 %s, 0x%08x' % (sr(S_C + 1), f2u(c)))
        e('s_mov_b32 %s, 0x%08x' % (sr(S_THR), f2u(2.0 ** o.thr)))
        e('s_mov_b32 %s, 0xffff0000' % sr(S_TMP))
        for i in range(128):
            e('v_accvgpr_write_b32 %s, 0' % ar(A_O + i))
        e('v_mov_b32 %s, 0' % vr(VL[0]))
        e('v_mov_b32 %s, 0' % vr(VL[1]))
        for qb in range(2):
            for st in range(8):
                if st % 2 == 0:
                    e('s_waitcnt vmcnt(%d)' % (24 + 16 - (8 * qb + st + 2)))
                    if qb == 0 and st == 0:
                        L += self.stamp()
                b = 16 + 32 * qb + 4 * st
                t0 = T + 8 * (st & 1)
                for j in range(4):
                    e('v_lshlrev_b32 %s, 16, %s' % (vr(t0 + 2 * j), vr(b + j)))
                    e('v_and_b32 %s, %s, %s' % (vr(t0 + 2 * j + 1), sr(S_TMP), vr(b + j)))
                for j in range(4):
                    e('v_pk_mul_f32 %s, %s, %s' % (vr(t0 + 2 * j, 2), vr(t0 + 2 * j, 2), sr(S_C, 2)))
                for j in range(4):
                    e('v_cvt_pk_bf16_f32 %s, %s, %s' % (vr(b + j), vr(t0 + 2 * j), vr(t0 + 2 * j + 1)))
                for j in range(4):
                    e('v_accvgpr_write_b32 %s, %s' % (ar(A_Q + 32 * qb + 4 * st + j), vr(b + j)))
        L += self.stamp()
        e('s_barrier')
        for s in range(8):
            e(self.k_read(0, s))
        e('s_waitcnt lgkmcnt(0)')
        for slot in range(16):
            e(self.qk_mfma(0, slot, czero=True))
            if slot & 1:
                e(self.k_read(1, slot >> 1))
        e('s_nop 10')
        for lvl in range(8):
            for qb in range(2):
                s = S_BUF[0][qb]
                m = T + qb
                if lvl == 0:
                    e('v_max3_f32 %s, %s, %s, %s' % (vr(m), vr(s), vr(s + 1), vr(s + 2)))
                elif lvl < 7:
                    e('v_max3_f32 %s, %s, %s, %s' % (vr(m), vr(m), vr(s + 2 * lvl + 1), vr(s + 2 * lvl + 2)))
                else:
                    e('v_max_f32 %s, %s, %s' % (vr(m), vr(m), vr(s + 15)))
        for qb in range(2):
            e('v_mov_b32 %s, %s' % (vr(T + 2 + qb), vr(T + qb)))
        e('s_nop 1')
        for qb in range(2):
            e('v_permlane32_swap_b32 %s, %s' % (vr(T + qb), vr(T + 2 + qb)))
        e('s_nop 0')
        for qb in range(2):
            e('v_max_f32 %s, %s, %s' % (vr(T + qb), vr(T + qb), vr(T + 2 + qb)))
        for qb in range(2):
            e('v_sub_f32 %s, 0, %s' % (vr(CINIT[qb]), vr(T + qb)))
        for r in range(1, 16):
            for qb in range(2):
                e('v_mov_b32 %s, %s' % (vr(CINIT[qb] + r), vr(CINIT[qb])))
        for qb in range(2):
            for r in range(16):
                e('v_add_f32 %s, %s, %s' % (vr(S_BUF[0][qb] + r), vr(S_BUF[0][qb] + r), vr(CINIT[qb])))
        ops = sorted([z for z in self.sm_ops(0) if z[0] < 16], key=lambda z: (z[0], z[1]))
        for g, k, t in ops:
            e(t)
        e('s_mov_b32 %s, 0' % sr(S_CNT))
        L += self.stamp()
        return L

    def finish_sums(self):
        L = []
        e = L.append
        T = VT
        for qb in range(2):
            e('v_mov_b32 %s, %s' % (vr(T + qb), vr(VL[qb])))
        e('s_nop 1')
        for qb in range(2):
            e('v_permlane32_swap_b32 %s, %s' % (vr(VL[qb]), vr(T + qb)))
        e('s_nop 0')
        for qb in range(2):
            e('v_add_f32 %s, %s, %s' % (vr(VL[qb]), vr(VL[qb]), vr(T + qb)))
        return L

    def store_out(self):
        L = []
        e = L.append
        T = VT
        for qb in range(2):
            e('v_rcp_f32 %s, %s' % (vr(T + 2 * qb), vr(VL[qb])))
        e('s_nop 0')
        n = 0
        for qb in range(2):
            for db in range(4):
                for hf in range(2):
                    t0 = 16 + 8 * (n & 3)
                    p0 = 48 + 4 * (n & 7)
                    n += 1
                    a0 = A_O + 64 * qb + 16 * db + 8 * hf
                    for j in range(8):
                        e('v_accvgpr_read_b32 %s, %s' % (vr(t0 + j), ar(a0 + j)))
                    for j in range(4):
                        e('v_pk_mul_f32 %s, %s, %s op_sel_hi:[1,0]' % (vr(t0 + 2 * j, 2), vr(t0 + 2 * j, 2), vr(T + 2 * qb, 2)))
                    for j in range(4):
                        e('v_cvt_pk_bf16_f32 %s, %s, %s' % (vr(p0 + j), vr(t0 + 2 * j), vr(t0 + 2 * j + 1)))
                    e('buffer_store_dwordx4 %s, %s, %s, %s offen offset:%d' % (vr(p0, 4), vr(VQO), sr(S_OD, 4), '0' if qb == 0 else sr(S_8K), 64 * db + 32 * hf))
        return L

    def slow_path_body(self):
        L = []
        e = L.append
        T = VT
        e('s_lshl_b32 s3, %s, 13' % sr(S_W))
        e('s_add_u32 m0, s3, %d' % SLOW_BASE)
        e('s_add_u32 s31, %s, 4096' % sr(S_CNT))
        for i in range(4):
            e('buffer_load_dwordx4 %s, %s, %s offen offset:%d lds' % (vr(VSV), sr(S_V, 4), sr(S_CNT), 1024 * i))
        e('s_add_u32 m0, s3, %d' % (SLOW_BASE + 4096))
        e('s_nop 0')
        for i in range(4):
            e('buffer_load_dwordx4 %s, %s, s31 offen offset:%d lds' % (vr(VSV), sr(S_V, 4), 1024 * i))
        for st in range(8):
            e('buffer_load_dwordx4 %s, %s, %s, %s offen offset:%d' % (ar(A_K + 4 * st, 4), vr(VSK), sr(S_K, 4), sr(S_CNT), 32 * st))
        e('s_waitcnt vmcnt(0)')
        for slot in range(16):
            e(self.qk_mfma(0, slot, czero=True))
        for ks in range(2):
            for db in range(4):
                for t in range(2):
                    e(self.v_read(0, ks, db, t, addr=VSVA, base=0))
        for qb in range(2):
            s = S_BUF[0][qb]
            m = T + qb
            e('v_max3_f32 %s, %s, %s, %s' % (vr(m), vr(VM[qb]), vr(s), vr(s + 1)))
            for k in range(1, 8):
                e('v_max3_f32 %s, %s, %s, %s' % (vr(m), vr(m), vr(s + 2 * k), vr(s + 2 * k + 1)))
            e('v_mov_b32 %s, %s' % (vr(T + 2), vr(m)))
            e('s_nop 1')
            e('v_permlane32_swap_b32 %s, %s' % (vr(m), vr(T + 2)))
            e('s_nop 0')
            e('v_max_f32 %s, %s, %s' % (vr(m), vr(m), vr(T + 2)))
            e('v_sub_f32 %s, %s, %s' % (vr(T + 3), vr(VM[qb]), vr(m)))
            e('v_exp_f32 %s, %s' % (vr(T + 3), vr(T + 3)))
            e('v_mov_b32 %s, %s' % (vr(VM[qb]), vr(m)))
            for r in range(16):
                e('v_sub_f32 %s, %s, %s' % (vr(s + r), vr(s + r), vr(m)))
            for r in range(16):
                e('v_exp_f32 %s, %s' % (vr(s + r), vr(s + r)))
            e('v_mul_f32 %s, %s, %s' % (vr(VL[qb]), vr(VL[qb]), vr(T + 3)))
            for r in range(16):
                e('v_add_f32 %s, %s, %s' % (vr(VL[qb]), vr(VL[qb]), vr(s + r)))
            for j in range(8):
                e('v_cvt_pk_bf16_f32 %s, %s, %s' % (vr(P_BUF[0] + 8 * qb + j), vr(s + 2 * j), vr(s + 2 * j + 1)))
            for i in range(0, 64, 8):
                for j in range(8):
                    e('v_accvgpr_read_b32 %s, %s' % (vr(T + 8 + j), ar(A_O + 64 * qb + i + j)))
                for j in range(8):
                    e('v_mul_f32 %s, %s, %s' % (vr(T + 8 + j), vr(T + 8 + j), vr(T + 3)))
                for j in range(8):
                    e('v_accvgpr_write_b32 %s, %s' % (ar(A_O + 64 * qb + i + j), vr(T + 8 + j)))
        e('s_waitcnt lgkmcnt(0)')
        e('s_nop 1')
        for s in range(16):
            e(self.pv_mfma(0, s >> 3, (s >> 1) & 3, s & 1))
        e('s_nop 15')
        return L

    def slow_path(self):
        L = []
        e = L.append
        e('L_slow:')
        e('s_waitcnt vmcnt(0)')
        for i in range(128):
            e('v_accvgpr_write_b32 %s, 0' % ar(A_O + i))
        for qb in range(2):
            e('v_mov_b32 %s, 0' % vr(VL[qb]))
            e('v_mov_b32 %s, 0xff7fffff' % vr(VM[qb]))
        e('s_mov_b32 %s, 0' % sr(S_CNT))
        e('L_slow_loop:')
        L += self.slow_path_body()
        e('s_add_u32 %s, %s, 8192' % (sr(S_CNT), sr(S_CNT)))
        e('s_cmp_lt_u32 %s, 0x40000' % sr(S_CNT))
        e('s_cbranch_scc1 L_slow_loop')
        L += self.finish_sums()
        e('s_branch L_store')
        return L

    def stamps_out(self):
        if not self.o.stamps:
            return []
        L = []
        e = L.append
        e('s_memrealtime s[94:95]')
        e('s_waitcnt vmcnt(0) lgkmcnt(0)')
        L += self.stamp()
        e('s_waitcnt lgkmcnt(0)')
        e('s_mov_b32 s84, s90')
        e('s_mov_b32 s85, s91')
        e('s_mov_b32 s86, 0x100000')
        e('s_mov_b32 s87, 0x20000')
        e('s_getreg_b32 s88, hwreg(HW_REG_XCC_ID)')
        e('s_getreg_b32 s89, hwreg(HW_REG_HW_ID)')
        e('s_lshl_b32 s3, s2, 2')
        e('s_add_u32 s3, s3, %s' % sr(S_W))
        e('s_lshl_b32 s3, s3, 8')
        e('v_mov_b32 v1, s3')
        vals = [92, 93, 94, 95, 88, 89] + [S_TS + 2 * k for k in range(self.nts)]
        e('s_mov_b64 exec, 1')
        for k, s in enumerate(vals):
            e('v_mov_b32 v2, s%d' % s)
            e('buffer_store_dword v2, v1, s[84:87], 0 offen offset:%d' % (4 * k))
        return L

    def build(self):
        o = self.o
        U = 8
        pro = self.prologue()
        body = []
        for u in range(U):
            if u == U - 1:
                body_exit = ['s_cmp_eq_u32 %s, 3' % sr(S_CNT), 's_cbranch_scc1 L_tail']
                body.append(body_exit)
            body.append(self.period(u))
        loop_end = ['s_add_u32 %s, %s, 1' % (sr(S_CNT), sr(S_CNT)), 's_branch L_loop']
        st_loop = self.stamp()
        tail = self.period(7, has_qk=False)
        tail += self.stamp()
        fin = ['s_nop 15']
        fin += self.finish_sums()
        fin += ['v_cmp_nlt_f32 vcc, %s, %s' % (vr(VL[0]), vr(VT + 4)),
                'v_cmp_nlt_f32 s[30:31], %s, %s' % (vr(VL[1]), vr(VT + 4)),
                's_nop 3',
                's_or_b64 vcc, vcc, s[30:31]',
                's_cbranch_vccnz L_slow']
        fin = ['v_mov_b32 %s, %s' % (vr(VT + 4), sr(S_THR))] + fin
        store = self.store_out()
        so = self.stamps_out()
        slow = self.slow_path()

        text = []
        text += pro
        text.append('.p2align 6' if o.align else '')
        text.append('L_loop:')
        for b in body:
            text += b
        text += loop_end
        text.append('L_tail:')
        text += st_loop + tail + fin
        text.append('L_store:')
        text += store + so
        text.append('L_done:')
        text.append('s_endpgm')
        text += slow

        trace = list(pro)
        for it in range(4):
            for k, b in enumerate(body):
                if it == 3 and k == len(body) - 1:
                    break
                trace += b
            if it < 3:
                trace += loop_end
        trace += st_loop + tail + fin
        probs = check_trace(trace + store + so)
        sl = [x for x in slow]
        i0 = sl.index('L_slow_loop:')
        i1 = sl.index('s_cbranch_scc1 L_slow_loop')
        probs += check_trace(trace + sl[:i1 + 1] + sl[i0:] + store)
        tot = 0
        worst = []
        for b in body:
            cur = 0
            for l in b:
                x = I(l)
                if x.kind == 'mfma':
                    worst.append(cur)
                    cur = 0
                cur += x.slots()
                tot += x.slots()
        return text, probs, tot, worst

    def emit(self):
        text, probs, tot, worst = self.build()
        hdr = open(self.o.ref).read().split('\n')
        out = []
        for l in hdr:
            if l.startswith('; @launch'):
                out.append('; @launch grid=(256,1,1) block=(256,1,1) lds=163840')
            elif l.startswith(';'):
                out.append(l)
            else:
                break
        out += ['.amdgcn_target "amdgcn-amd-amdhsa--gfx950"', '.text', '.globl %s_kernel' % NAME, '.p2align 8',
                '.type %s_kernel,@function' % NAME, '%s_kernel:' % NAME]
        for l in text:
            out.append(l if (l.endswith(':') or l.startswith('.')) else '    ' + l)
        out += ['.section .rodata,"a"', '.p2align 6', '.amdhsa_kernel %s_kernel' % NAME,
                '  .amdhsa_next_free_vgpr 512', '  .amdhsa_next_free_sgpr 102', '  .amdhsa_accum_offset 256',
                '  .amdhsa_group_segment_fixed_size 0', '  .amdhsa_kernarg_size 48', '  .amdhsa_user_sgpr_count 2',
                '  .amdhsa_user_sgpr_kernarg_segment_ptr 1', '  .amdhsa_system_sgpr_workgroup_id_x 1',
                '  .amdhsa_float_denorm_mode_32 3', '  .amdhsa_float_denorm_mode_16_64 3',
                '.end_amdhsa_kernel', '']
        return '\n'.join(out), probs, tot, worst


def parse(argv):
    ap = argparse.ArgumentParser()
    ap.add_argument('-o', default='cdna_kernels/%s.s' % NAME)
    ap.add_argument('--ref', default='cdna_kernels/%s.s.ref' % NAME)
    ap.add_argument('--lag', type=int, default=2)
    ap.add_argument('--thr', type=float, default=40)
    ap.add_argument('--stamps', action='store_true')
    ap.add_argument('--nodma', action='store_true')
    ap.add_argument('--nobar', action='store_true')
    ap.add_argument('--align', type=int, default=1)
    ap.add_argument('--kgap', type=lambda s: [int(x) for x in s.split(',')], default=[0, 1, 3, 4, 6, 7, 9, 10])
    ap.add_argument('--dgap', type=lambda s: [int(x) for x in s.split(',')], default=[13, 14, 18, 24, 28])
    return ap.parse_args(argv)


if __name__ == '__main__':
    o = parse(sys.argv[1:])
    g = Gen(o)
    s, probs, tot, worst = g.emit()
    open(o.o, 'w').write(s)
    print('loop body slots: %d (per mfma %.2f), gap histogram: %s' % (tot, tot / 256.0, {k: worst.count(k) for k in sorted(set(worst))}))
    for p in probs[:40]:
        print('HAZARD', p)
    print('%d hazard findings' % len(probs))
```

```python
import sys, math, struct, argparse, re
from asmlib import I, check_trace

NAME = 'standalone__gqa_softmax__near_ridge'

V_O = 8
V_S = 136
V_C = 200
VKA = 216
VVA = 220
VDK = 228
VDV = 232
VOW = 234
VOR = 238
VOG = 240
VT = 244
A_Q = 0
A_K = 64
A_V = 96
A_L = 128
A_1 = 144

S_Q, S_K, S_V, S_OD = 4, 8, 12, 16
S_W, S_M0K, S_M0V, S_OFFK, S_OFFV, S_CNT = 20, 21, 22, 23, 24, 25
S_C = 26
S_QOFF = 28
S_THR = 29
S_TMP = 30
S_QLDS = 33
S_TS = 40

V_BASE = 65536
SPARE = 131072
MF = 'v_mfma_f32_16x16x32_bf16'


def f2u(x):
    return struct.unpack('<I', struct.pack('<f', x))[0]


def vr(b, n=1):
    return 'v%d' % b if n == 1 else 'v[%d:%d]' % (b, b + n - 1)


def ar(b, n=1):
    return 'a%d' % b if n == 1 else 'a[%d:%d]' % (b, b + n - 1)


def sr(b, n=1):
    return 's%d' % b if n == 1 else 's[%d:%d]' % (b, b + n - 1)


def S(x, qb, kb):
    return V_S + 32 * (x & 1) + 8 * qb + 4 * kb


def O(qb, db):
    return V_O + 32 * qb + 4 * db


class Gen:
    def __init__(self, opt):
        self.o = opt
        self.nts = 0

    def qk_order(self):
        if self.o.qkord == 0:
            return [(kb, st, qb) for kb in range(2) for st in range(4) for qb in range(4)]
        if self.o.qkord == 1:
            return [(kb, st, qb) for kb in range(2) for qb in range(4) for st in range(4)]
        return [(kb, st, 2 * h + j) for kb in range(2) for h in range(2) for st in range(4) for j in range(2)]

    def pv_order(self):
        if self.o.pvord == 0:
            return [(db, qb) for db in range(8) for qb in range(4)]
        if self.o.pvord == 1:
            return [(db, qb) for qb in range(4) for db in range(8)]
        return [(db, 2 * h + j) for h in range(2) for db in range(8) for j in range(2)]

    def qk_mfma(self, x, kb, st, qb, czero=False):
        d = vr(S(x, qb, kb), 4)
        c = d if st else ('0' if czero else vr(V_C + 4 * qb, 4))
        return '%s %s, %s, %s, %s' % (MF, d, ar(A_K + 16 * kb + 4 * st, 4), ar(A_Q + 16 * qb + 4 * st, 4), c)

    def pv_mfma(self, x, db, qb):
        o = vr(O(qb, db), 4)
        return '%s %s, %s, %s, %s' % (MF, o, ar(A_V + 4 * db, 4), vr(S(x, qb, 0), 4), o)

    def sum_mfma(self, x, qb):
        l = ar(A_L + 4 * qb, 4)
        return '%s %s, %s, %s, %s' % (MF, l, ar(A_1, 4), vr(S(x, qb, 0), 4), l)

    def k_read(self, x, kb, st):
        off = ((x >> 1) & 3) * 16384 + (x & 1) * 8192 + kb * 4096
        return 'ds_read_b128 %s, %s offset:%d' % (ar(A_K + 16 * kb + 4 * st, 4), vr(VKA + st), off)

    def v_read(self, x, db, t, addr=VVA, base=None):
        off = ((x >> 1) & 3) * 16384 + (x & 1) * 8192 if base is None else base
        off += t * 4096
        return 'ds_read_b64_tr_b16 %s, %s offset:%d' % (ar(A_V + 4 * db + 2 * t, 2), vr(addr + db), off)

    def sm_seq(self, x):
        seq = []
        for kb in range(2):
            for qb in range(4):
                s = S(x, qb, kb)
                for r in range(4):
                    ex = 'v_exp_f32 %s, %s' % (vr(s + r), vr(s + r))
                    cv = None
                    if r & 1:
                        cv = 'v_cvt_pk_bf16_f32 %s, %s, %s' % (vr(S(x, qb, 0) + 2 * kb + (r >> 1)), vr(s + r - 1), vr(s + r))
                    seq.append((ex, cv))
        return seq

    def dma_k(self, i):
        return 'buffer_load_dwordx4 %s, %s, %s offen offset:%d %slds' % (vr(VDK + i), sr(S_K, 4), sr(S_OFFK), 1024 * i, self.o.kvflag)

    def dma_v(self, i):
        return 'buffer_load_dwordx4 %s, %s, %s offen offset:%d %slds' % (vr(VDV + (i & 1)), sr(S_V, 4), sr(S_OFFV), 1024 * i, self.o.kvflag)

    def dma_q(self, i):
        return 'buffer_load_dwordx4 %s, %s, %s offen offset:%d %slds' % (vr(VDK + i), sr(S_Q, 4), sr(S_QOFF), 1024 * i, self.o.qflag)

    def stamp(self):
        if not self.o.stamps:
            return []
        k = self.nts
        self.nts += 1
        return ['s_memtime %s' % sr(S_TS + 4 * k, 2), 's_memrealtime %s' % sr(S_TS + 4 * k + 2, 2)]

    def period(self, u):
        o = self.o
        K0 = o.k0
        N = 68
        mf = [self.qk_mfma(u + 1, *a) for a in self.qk_order()]
        mf += [self.sum_mfma(u, qb) for qb in range(4)]
        mf += [self.pv_mfma(u, *a) for a in self.pv_order()]
        egaps = o.egaps
        assert len(egaps) == 32
        shadow = [[] for _ in range(N)]
        valu = [[] for _ in range(N)]
        seq = self.sm_seq(u)[32 - K0:] + self.sm_seq(u + 1)[:32 - K0]
        prev_cv = self.sm_seq(u)[32 - K0 - 1][1]
        for k, g in enumerate(egaps):
            ex, cv = seq[k]
            valu[g].append(ex)
            if cv:
                g2 = g + 1
                while g2 < N and g2 in egaps:
                    g2 += 1
                assert g2 < N
                valu[g2].append(cv)
        even = (u & 1) == 0
        free = lambda g: (0 if g in egaps else 2 - len(valu[g]) - len(shadow[g]))
        if even and not o.nobar:
            shadow[o.bargap] += ['s_waitcnt vmcnt(16)', 's_barrier']
        vreads = [self.v_read(u, db, t) for db in range(8) for t in range(2)]
        g = o.bargap + 1
        while vreads:
            for _ in range(max(0, min(free(g), o.maxds))):
                if vreads:
                    shadow[g].append(vreads.pop(0))
            g += 1
        lastv = g - 1
        assert lastv < 34, lastv
        shadow[o.vwait].insert(0, 's_waitcnt lgkmcnt(0)')
        t = u >> 1
        kreads = [self.k_read(u + 2, kb, st) for kb in range(2) for st in range(4)]
        for g, kr in zip(o.kgaps, kreads):
            assert g > o.vwait
            shadow[g].append(kr)
        shadow[o.kwait].insert(0, 's_waitcnt lgkmcnt(0)')
        if not o.nodma:
            G = o.dgaps
            if even:
                shadow[G[0]].append('s_add_u32 m0, %s, %d' % (sr(S_M0K), (t & 3) * 16384))
                for i in range(4):
                    shadow[G[1 + i]].append(self.dma_k(i))
                shadow[G[5]].append('s_add_u32 %s, %s, 16384' % (sr(S_OFFK), sr(S_OFFK)))
            else:
                shadow[G[0]].append('s_add_u32 m0, %s, %d' % (sr(S_M0V), ((t + 3) & 3) * 16384))
                for i in range(4):
                    shadow[G[1 + i]].append(self.dma_v(i))
                shadow[G[5]].append('s_add_u32 %s, %s, 16384' % (sr(S_OFFV), sr(S_OFFV)))
        out = []
        for g in range(N):
            out.append(mf[g])
            out += shadow[g] + valu[g]
        if o.exp:
            out = self.experiment(out)
        return out

    def experiment(self, lines):
        ex = self.o.exp.split(',')
        res = []
        for l in lines:
            if 'noexp' in ex and l.startswith('v_exp_f32'):
                continue
            if 'nocvt' in ex and l.startswith('v_cvt_pk'):
                continue
            if 'nolds' in ex and l.startswith('ds_read'):
                continue
            if 'nosum' in ex and l.startswith(MF + ' a['):
                continue
            if 'nomfma' in ex and l.startswith(MF):
                continue
            res.append(l)
        return res

    def xlane(self, op, regs, tmps):
        L = []
        for sw in ('v_permlane32_swap_b32', 'v_permlane16_swap_b32'):
            for r, t in zip(regs, tmps):
                L.append('v_mov_b32 %s, %s' % (vr(t), vr(r)))
            if len(regs) < 3:
                L.append('s_nop 1')
            for r, t in zip(regs, tmps):
                L.append('%s %s, %s' % (sw, vr(r), vr(t)))
            for r, t in zip(regs, tmps):
                L.append('%s %s, %s, %s' % (op, vr(r), vr(r), vr(t)))
        return L

    def prologue(self):
        o = self.o
        L = []
        e = L.append
        vm = []

        def issue(tag, txt):
            vm.append(tag)
            e(txt)

        def wait(tag):
            last = max(i for i, t in enumerate(vm) if t == tag)
            e('s_waitcnt vmcnt(%d)' % (len(vm) - 1 - last))

        e('s_cmp_ge_u32 s2, 256')
        e('s_cbranch_scc1 L_done')
        e('s_load_dwordx4 s[36:39], s[0:1], 0')
        e('s_load_dwordx4 s[96:99], s[0:1], 16')
        if o.stamps:
            e('s_load_dwordx2 s[90:91], s[0:1], 40')
            e('s_memrealtime s[92:93]')
        L += self.stamp()
        e('v_lshrrev_b32 v2, 6, v0')
        e('v_and_b32 v1, 63, v0')
        e('v_readfirstlane_b32 %s, v2' % sr(S_W))
        e('v_lshrrev_b32 v5, 4, v1')
        e('v_and_b32 v6, 15, v1')
        e('s_and_b32 s30, s2, 7')
        e('s_lshr_b32 s31, s2, 3')
        e('s_lshl_b32 s30, s30, 4')
        e('s_lshr_b32 s3, s31, 1')
        e('s_add_u32 s30, s30, s3')
        e('s_and_b32 s31, s31, 1')
        e('s_lshl_b32 s3, s30, 1')
        e('s_add_u32 s31, s31, s3')
        e('s_lshl_b32 s30, s30, 18')
        e('s_lshl_b32 s31, s31, 16')
        e('s_lshl_b32 %s, %s, 12' % (sr(S_M0K), sr(S_W)))
        e('s_add_u32 %s, %s, %d' % (sr(S_M0V), sr(S_M0K), V_BASE))
        e('s_mul_i32 %s, %s, 12288' % (sr(S_QOFF), sr(S_W)))
        e('s_lshl_b32 %s, %s, 14' % (sr(S_QLDS), sr(S_W)))
        e('s_add_u32 %s, %s, %d' % (sr(S_QLDS), sr(S_QLDS), SPARE))
        e('s_cmp_eq_u32 %s, 2' % sr(S_W))
        e('s_cselect_b32 %s, %d, %s' % (sr(S_QLDS), 3 * 16384, sr(S_QLDS)))
        e('s_cmp_eq_u32 %s, 3' % sr(S_W))
        e('s_cselect_b32 %s, %d, %s' % (sr(S_QLDS), V_BASE + 3 * 16384, sr(S_QLDS)))
        e('v_lshlrev_b32 v7, 8, v5')
        e('v_add_u32 v7, %s, v7' % sr(S_M0K))
        e('v_xor_b32 v3, v6, v5')
        e('v_lshl_add_u32 %s, v3, 4, v7' % vr(VDK))
        for i in range(1, 4):
            e('v_xor_b32 %s, %d, %s' % (vr(VDK + i), i << 6, vr(VDK)))
        e('s_mov_b32 %s, 0' % sr(S_OFFK))
        e('s_mov_b32 %s, 0' % sr(S_OFFV))
        e('s_mov_b32 s10, 0x40000')
        e('s_mov_b32 s11, 0x20000')
        e('s_mov_b32 s6, 0x10000')
        e('s_mov_b32 s7, 0x20000')
        e('s_mov_b32 m0, %s' % sr(S_M0K))
        e('s_waitcnt lgkmcnt(0)')
        e('s_add_u32 s8, s38, s30')
        e('s_addc_u32 s9, s39, 0')
        e('s_add_u32 s4, s36, s31')
        e('s_addc_u32 s5, s37, 0')
        for i in range(4):
            issue('K0', self.dma_k(i))
        for j in range(4):
            e('s_add_u32 m0, %s, %d' % (sr(S_QLDS), 4096 * j))
            if j:
                e('s_add_u32 %s, %s, 4096' % (sr(S_QOFF), sr(S_QOFF)))
            else:
                e('s_add_u32 %s, %s, 16384' % (sr(S_OFFK), sr(S_OFFK)))
            for i in range(4):
                issue('Q%d' % j, self.dma_q(i))
        if o.prost:
            L += self.stamp()
        e('s_add_u32 s12, s96, s30')
        e('s_addc_u32 s13, s97, 0')
        e('s_mov_b32 s14, 0x40000')
        e('s_mov_b32 s15, 0x20000')
        e('s_add_u32 s16, s98, s31')
        e('s_addc_u32 s17, s99, 0')
        e('s_mov_b32 s18, 0x10000')
        e('s_mov_b32 s19, 0x20000')
        e('v_lshlrev_b32 v3, 1, v5')
        e('v_xor_b32 v3, v6, v3')
        e('v_lshl_add_u32 %s, v3, 4, v7' % vr(VDV))
        e('v_xor_b32 %s, 0x80, %s' % (vr(VDV + 1), vr(VDV)))

        def dma_tile(kind, t):
            if kind == 'V':
                e('s_add_u32 m0, %s, %d' % (sr(S_M0V), t * 16384))
                e('s_nop 0')
                for i in range(4):
                    issue('V%d' % t, self.dma_v(i))
                e('s_add_u32 %s, %s, 16384' % (sr(S_OFFV), sr(S_OFFV)))
            else:
                e('s_add_u32 m0, %s, %d' % (sr(S_M0K), t * 16384))
                e('s_nop 0')
                for i in range(4):
                    issue('K%d' % t, self.dma_k(i))
                e('s_add_u32 %s, %s, 16384' % (sr(S_OFFK), sr(S_OFFK)))

        early = list(o.early)
        later = [x for x in ['V0', 'K1', 'V1', 'K2', 'V2', 'K3'] if x not in early]
        for x in early:
            dma_tile(x[0], int(x[1]))
        e('v_xor_b32 v3, v5, v6')
        e('v_lshlrev_b32 v4, 8, v6')
        e('v_lshl_add_u32 %s, v3, 4, v4' % vr(VKA))
        for s in range(1, 4):
            e('v_xor_b32 %s, %d, %s' % (vr(VKA + s), s << 6, vr(VKA)))
        for s in range(4):
            e('v_add_u32 %s, %s, %s' % (vr(VT + s), sr(S_QLDS), vr(VKA + s)))
        e('v_lshrrev_b32 v3, 2, v1')
        e('v_lshlrev_b32 v2, 8, v3')
        e('v_and_b32 v3, 7, v3')
        e('v_lshl_add_u32 v2, v3, 5, v2')
        e('v_and_b32 v3, 3, v1')
        e('v_lshl_add_u32 v2, v3, 3, v2')
        e('v_add_u32 %s, %d, v2' % (vr(VVA), V_BASE))
        for db in range(1, 8):
            e('v_xor_b32 %s, %d, %s' % (vr(VVA + db), db << 5, vr(VVA)))
        e('v_and_b32 v3, 1, v5')
        e('v_lshlrev_b32 v3, 1, v3')
        e('v_lshrrev_b32 v2, 1, v5')
        e('v_or_b32 v3, v3, v2')
        e('v_and_b32 v2, 7, v6')
        e('v_xor_b32 v3, v3, v2')
        e('v_lshl_add_u32 v3, v3, 4, v4')
        e('v_add_u32 %s, %s, v3' % (vr(VOW), sr(S_M0K)))
        for j in range(1, 4):
            e('v_xor_b32 %s, %d, %s' % (vr(VOW + j), j << 6, vr(VOW)))
        e('v_mov_b32 %s, %s' % (vr(VOR), vr(VDK)))
        e('v_mov_b32 %s, %s' % (vr(VOR + 1), vr(VDK + 1)))
        e('s_lshl_b32 s3, %s, 14' % sr(S_W))
        e('v_lshlrev_b32 v3, 4, v1')
        e('v_add_u32 %s, s3, v3' % vr(VOG))
        c = math.log2(math.e) / math.sqrt(128.0)
        e('s_mov_b32 %s, 0x%08x' % (sr(S_C), f2u(c)))
        e('s_mov_b32 %s, 0x%08x' % (sr(S_C + 1), f2u(c)))
        e('s_mov_b32 %s, 0x%08x' % (sr(S_THR), f2u(2.0 ** o.thr)))
        e('s_mov_b32 %s, 0xffff0000' % sr(S_TMP))
        e('v_and_b32 v3, 3, v1')
        e('v_cmp_eq_u32 vcc, 0, v3')
        e('v_mov_b32 v2, 0x3f803f80')
        e('s_nop 0')
        e('v_cndmask_b32 v3, 0, v2, vcc')
        for j in range(4):
            e('v_accvgpr_write_b32 %s, v3' % ar(A_1 + j))
        for i in range(16):
            e('v_accvgpr_write_b32 %s, 0' % ar(A_L + i))
        for i in range(128):
            e('v_mov_b32 %s, 0' % vr(V_O + i))
        RAW = V_S + 32
        TM = V_S + 48
        for qb in range(4):
            wait('Q%d' % qb)
            if qb == 0:
                L += self.stamp()
            for st in range(4):
                e('ds_read_b128 %s, %s offset:%d' % (vr(RAW + 4 * st, 4), vr(VT + st), 4096 * qb))
            nxt = [x for x in later if x not in ('K3', 'V3')]
            if nxt and qb < o.nmid:
                x = nxt[0]
                later.remove(x)
                dma_tile(x[0], int(x[1]))
            for st in range(4):
                e('s_waitcnt lgkmcnt(%d)' % (3 - st))
                b = RAW + 4 * st
                t0 = TM + 8 * (st & 1)
                for j in range(4):
                    e('v_lshlrev_b32 %s, 16, %s' % (vr(t0 + 2 * j), vr(b + j)))
                    e('v_and_b32 %s, %s, %s' % (vr(t0 + 2 * j + 1), sr(S_TMP), vr(b + j)))
                for j in range(4):
                    e('v_pk_mul_f32 %s, %s, %s' % (vr(t0 + 2 * j, 2), vr(t0 + 2 * j, 2), sr(S_C, 2)))
                for j in range(4):
                    e('v_cvt_pk_bf16_f32 %s, %s, %s' % (vr(t0 + 2 * j), vr(t0 + 2 * j), vr(t0 + 2 * j + 1)))
                for j in range(4):
                    e('v_accvgpr_write_b32 %s, %s' % (ar(A_Q + 16 * qb + 4 * st + j), vr(t0 + 2 * j)))
        L += self.stamp()
        e('s_barrier')
        for kb in range(2):
            for st in range(4):
                e(self.k_read(0, kb, st))
        for x in list(later):
            dma_tile(x[0], int(x[1]))
        assert vm[-24:] == ['V0'] * 4 + ['K1'] * 4 + ['V1'] * 4 + ['K2'] * 4 + ['V2'] * 4 + ['K3'] * 4, vm
        e('s_waitcnt lgkmcnt(0)')
        order = [(kb, st, qb) for kb in range(2) for st in range(4) for qb in range(4)]
        for n, a in enumerate(order):
            e(self.qk_mfma(0, *a, czero=True))
            if n & 3 == 3:
                e(self.k_read(1, a[0], a[1]))
        e('s_nop 3')
        T = VT + 4
        for qb in range(4):
            s = S(0, qb, 0)
            e('v_max3_f32 %s, %s, %s, %s' % (vr(T + qb), vr(s), vr(s + 1), vr(s + 2)))
        for k in range(2):
            for qb in range(4):
                s = S(0, qb, 0)
                e('v_max3_f32 %s, %s, %s, %s' % (vr(T + qb), vr(T + qb), vr(s + 3 + 2 * k), vr(s + 4 + 2 * k)))
        for qb in range(4):
            e('v_max_f32 %s, %s, %s' % (vr(T + qb), vr(T + qb), vr(S(0, qb, 0) + 7)))
        L += self.xlane('v_max_f32', [T + q for q in range(4)], [T + 4 + q for q in range(4)])
        for r in range(4):
            for qb in range(4):
                e('v_sub_f32 %s, 0, %s' % (vr(V_C + 4 * qb + r), vr(T + qb)))
        for kb in range(2):
            for qb in range(4):
                for r in range(4):
                    e('v_sub_f32 %s, %s, %s' % (vr(S(0, qb, kb) + r), vr(S(0, qb, kb) + r), vr(T + qb)))
        seq = self.sm_seq(0)[:32 - o.k0]
        pend = None
        for ex, cv in seq:
            e(ex)
            if pend:
                e(pend)
            pend = cv
        e('s_waitcnt lgkmcnt(0)')
        if pend:
            e(pend)
        e('s_mov_b32 %s, 0' % sr(S_CNT))
        L += self.stamp()
        return L

    def tail(self):
        o = self.o
        u = 31
        L = []
        e = L.append
        seq = self.sm_seq(u)[32 - o.k0:]
        vreads = [self.v_read(u, db, t) for db in range(8) for t in range(2)]
        for _ in range(4):
            e(vreads.pop(0))
        pend = None
        for ex, cv in seq:
            e(ex)
            if pend:
                e(pend)
            pend = cv
        L += vreads
        if pend:
            e(pend)
        e('s_nop 0')
        for qb in range(4):
            e(self.sum_mfma(u, qb))
        e('s_waitcnt lgkmcnt(0)')
        for qb in range(4):
            for db in range(8):
                e(self.pv_mfma(u, db, qb))
        return L

    def check_sums(self):
        L = []
        e = L.append
        T = VT
        for qb in range(4):
            e('v_accvgpr_read_b32 %s, %s' % (vr(T + qb), ar(A_L + 4 * qb)))
        e('v_add_f32 %s, %s, %s' % (vr(T + 5), vr(T), vr(T + 1)))
        e('v_add_f32 %s, %s, %s' % (vr(T + 5), vr(T + 5), vr(T + 2)))
        e('v_add_f32 %s, %s, %s' % (vr(T + 5), vr(T + 5), vr(T + 3)))
        e('v_cmp_ngt_f32 vcc, %s, %s' % (sr(S_THR), vr(T + 5)))
        e('s_nop 3')
        e('s_cbranch_vccnz L_slow' if not self.o.exp else 's_nop 0')
        return L

    def store_out(self):
        L = []
        e = L.append
        T = VT
        for qb in range(4):
            e('v_rcp_f32 %s, %s' % (vr(T + 4 + 2 * qb), vr(T + qb)))
        e('s_waitcnt vmcnt(0)')
        RB = V_S
        for qb in range(4):
            for j in range(4):
                a, b = O(qb, 2 * j), O(qb, 2 * j + 1)
                for k in range(4):
                    e('v_pk_mul_f32 %s, %s, %s op_sel_hi:[1,0]' % (vr(a + 2 * k, 2), vr(a + 2 * k, 2), vr(T + 4 + 2 * qb, 2)))
                e('v_cvt_pk_bf16_f32 %s, %s, %s' % (vr(a), vr(a), vr(a + 1)))
                e('v_cvt_pk_bf16_f32 %s, %s, %s' % (vr(a + 1), vr(a + 2), vr(a + 3)))
                e('v_cvt_pk_bf16_f32 %s, %s, %s' % (vr(a + 2), vr(b), vr(b + 1)))
                e('v_cvt_pk_bf16_f32 %s, %s, %s' % (vr(a + 3), vr(b + 2), vr(b + 3)))
            for j in range(4):
                a = O(qb, 2 * j)
                if j == 3:
                    pass
                e('v_permlane16_swap_b32 %s, %s' % (vr(a), vr(a + 2)))
                e('v_permlane16_swap_b32 %s, %s' % (vr(a + 1), vr(a + 3)))
            for j in range(4):
                e('ds_write_b128 %s, %s offset:%d' % (vr(VOW + j), vr(O(qb, 2 * j), 4), 16384 * qb))
            if qb:
                e('s_waitcnt lgkmcnt(4)')
                L += self.o_stores(qb - 1)
            e('s_waitcnt lgkmcnt(0)')
            for i in range(4):
                e('ds_read_b128 %s, %s offset:%d' % (vr(RB + 16 * (qb & 1) + 4 * i, 4), vr(VOR + (i & 1)), 16384 * qb + 1024 * i))
        e('s_waitcnt lgkmcnt(0)')
        L += self.o_stores(3)
        return L

    def o_stores(self, qb):
        L = []
        if qb:
            L.append('s_movk_i32 s3, %d' % (4096 * qb))
        for i in range(4):
            L.append('buffer_store_dwordx4 %s, %s, %s, %s offen offset:%d %s' % (vr(V_S + 16 * (qb & 1) + 4 * i, 4), vr(VOG), sr(S_OD, 4), 's3' if qb else '0', 1024 * i, self.o.oflag))
        return L

    def slow_path(self):
        L = []
        e = L.append
        T = VT
        M = V_C
        SK = V_S + 32
        SV = SK + 1
        SVA = SK + 4
        e('L_slow:')
        e('s_waitcnt vmcnt(0)')
        e('v_mbcnt_lo_u32_b32 v1, -1, 0')
        e('v_mbcnt_hi_u32_b32 v1, -1, v1')
        e('v_and_b32 v2, 15, v1')
        e('v_lshrrev_b32 v3, 4, v1')
        e('v_lshlrev_b32 v2, 8, v2')
        e('v_lshl_add_u32 %s, v3, 4, v2' % vr(SK))
        e('v_subrev_u32 %s, %s, %s' % (vr(SV), sr(S_M0K), vr(VDV)))
        e('v_subrev_u32 %s, %s, %s' % (vr(SV + 1), sr(S_M0K), vr(VDV + 1)))
        e('s_lshl_b32 s3, %s, 13' % sr(S_W))
        e('s_add_u32 s34, s3, %d' % SPARE)
        e('s_add_u32 s3, s3, %d' % (SPARE - V_BASE))
        for db in range(8):
            e('v_add_u32 %s, s3, %s' % (vr(SVA + db), vr(VVA + db)))
        for i in range(128):
            e('v_mov_b32 %s, 0' % vr(V_O + i))
        for qb in range(4):
            e('v_mov_b32 %s, 0xff7fffff' % vr(M + qb))
            e('v_mov_b32 %s, 0' % vr(M + 4 + qb))
        e('s_mov_b32 %s, 0' % sr(S_CNT))
        e('L_slow_loop:')
        e('s_mov_b32 m0, s34')
        e('s_add_u32 s31, %s, 4096' % sr(S_CNT))
        for i in range(4):
            e('buffer_load_dwordx4 %s, %s, %s offen offset:%d lds' % (vr(SV + (i & 1)), sr(S_V, 4), sr(S_CNT), 1024 * i))
        e('s_add_u32 m0, s34, 4096')
        e('s_nop 0')
        for i in range(4):
            e('buffer_load_dwordx4 %s, %s, s31 offen offset:%d lds' % (vr(SV + (i & 1)), sr(S_V, 4), 1024 * i))
        for kb in range(2):
            for st in range(4):
                e('buffer_load_dwordx4 %s, %s, %s, %s offen offset:%d' % (ar(A_K + 16 * kb + 4 * st, 4), vr(SK), sr(S_K, 4), 's31' if kb else sr(S_CNT), 64 * st))
        e('s_waitcnt vmcnt(0)')
        for kb in range(2):
            for st in range(4):
                for qb in range(4):
                    e(self.qk_mfma(0, kb, st, qb, czero=True))
        for db in range(8):
            for t in range(2):
                e(self.v_read(0, db, t, addr=SVA, base=0))
        for qb in range(4):
            s = S(0, qb, 0)
            e('v_max3_f32 %s, %s, %s, %s' % (vr(T + qb), vr(M + qb), vr(s), vr(s + 1)))
            for k in range(1, 4):
                e('v_max3_f32 %s, %s, %s, %s' % (vr(T + qb), vr(T + qb), vr(s + 2 * k), vr(s + 2 * k + 1)))
        L += self.xlane('v_max_f32', [T + q for q in range(4)], [T + 4 + q for q in range(4)])
        for qb in range(4):
            e('v_sub_f32 %s, %s, %s' % (vr(M + 8 + qb), vr(M + qb), vr(T + qb)))
        for qb in range(4):
            e('v_exp_f32 %s, %s' % (vr(M + 8 + qb), vr(M + 8 + qb)))
        for qb in range(4):
            e('v_mov_b32 %s, %s' % (vr(M + qb), vr(T + qb)))
        for qb in range(4):
            s = S(0, qb, 0)
            for r in range(8):
                e('v_sub_f32 %s, %s, %s' % (vr(s + r), vr(s + r), vr(T + qb)))
            for r in range(8):
                e('v_exp_f32 %s, %s' % (vr(s + r), vr(s + r)))
            e('v_mul_f32 %s, %s, %s' % (vr(M + 4 + qb), vr(M + 4 + qb), vr(M + 8 + qb)))
            for r in range(8):
                e('v_add_f32 %s, %s, %s' % (vr(M + 4 + qb), vr(M + 4 + qb), vr(s + r)))
            for j in range(4):
                e('v_cvt_pk_bf16_f32 %s, %s, %s' % (vr(s + j), vr(s + 2 * j), vr(s + 2 * j + 1)))
            for i in range(32):
                e('v_mul_f32 %s, %s, %s' % (vr(O(qb, 0) + i), vr(O(qb, 0) + i), vr(M + 8 + qb)))
        e('s_waitcnt lgkmcnt(0)')
        e('s_nop 1')
        for db in range(8):
            for qb in range(4):
                e(self.pv_mfma(0, db, qb))
        e('s_nop 7')
        e('s_add_u32 %s, %s, 8192' % (sr(S_CNT), sr(S_CNT)))
        e('s_cmp_lt_u32 %s, 0x40000' % sr(S_CNT))
        e('s_cbranch_scc1 L_slow_loop')
        for qb in range(4):
            e('v_mov_b32 %s, %s' % (vr(T + qb), vr(M + 4 + qb)))
        L += self.xlane('v_add_f32', [T + q for q in range(4)], [T + 4 + q for q in range(4)])
        e('s_branch L_store')
        return L

    def stamps_out(self):
        if not self.o.stamps:
            return []
        L = []
        e = L.append
        if self.o.prost:
            L += self.stamp()
        e('s_waitcnt vmcnt(0) lgkmcnt(0)')
        e('s_memrealtime s[94:95]')
        L += self.stamp()
        e('s_waitcnt lgkmcnt(0)')
        e('s_mov_b32 s84, s90')
        e('s_mov_b32 s85, s91')
        e('s_mov_b32 s86, 0x100000')
        e('s_mov_b32 s87, 0x20000')
        e('s_getreg_b32 s88, hwreg(HW_REG_XCC_ID)')
        e('s_getreg_b32 s89, hwreg(HW_REG_HW_ID)')
        e('s_lshl_b32 s3, s2, 2')
        e('s_add_u32 s3, s3, %s' % sr(S_W))
        e('s_lshl_b32 s3, s3, 8')
        e('v_mov_b32 v1, s3')
        vals = [92, 93, 94, 95, 88, 89] + [S_TS + 4 * k for k in range(10)] + [S_TS + 4 * k + 2 for k in range(10)]
        e('s_mov_b64 exec, 1')
        for k, s in enumerate(vals):
            e('v_mov_b32 v2, s%d' % s)
            e('buffer_store_dword v2, v1, s[84:87], 0 offen offset:%d' % (4 * k))
        return L

    def build(self):
        o = self.o
        U = 8
        pro = self.prologue()
        body = [self.period(u) for u in range(U)]

        def put_shadow(p, slot, lines):
            n = -1
            for i, l in enumerate(p):
                if l.startswith(MF):
                    n += 1
                    if n == slot:
                        return p[:i + 1] + lines + p[i + 1:]
            raise ValueError
        nm = sum(l.startswith(MF) for l in body[0])
        if nm:
            body[6] = put_shadow(body[6], nm - 2, ['s_cmp_eq_u32 %s, 3' % sr(S_CNT)]) + ['s_cbranch_scc1 L_tail']
            tl = body[6][body[6].index('s_cmp_eq_u32 %s, 3' % sr(S_CNT)) + 1:]
            assert not any(l.startswith('s_add') for l in tl)
            body[7] = put_shadow(body[7], nm - 2, ['s_add_u32 %s, %s, 1' % (sr(S_CNT), sr(S_CNT))]) + ['s_branch L_loop']
        else:
            body[6] += ['s_cmp_eq_u32 %s, 3' % sr(S_CNT), 's_cbranch_scc1 L_tail']
            body[7] += ['s_add_u32 %s, %s, 1' % (sr(S_CNT), sr(S_CNT)), 's_branch L_loop']
        st_loop = self.stamp()
        tail = self.tail()
        tail += self.stamp()
        fin = self.check_sums()
        store = self.store_out()
        so = self.stamps_out()
        slow = self.slow_path()

        text = list(pro)
        if o.align:
            text.append('.p2align %d' % o.align)
        text.append('L_loop:')
        for b in body:
            text += b
        text.append('L_tail:')
        text += st_loop + tail + fin
        text.append('L_store:')
        text += store + so
        text.append('L_done:')
        text.append('s_endpgm')
        text += slow

        trace = list(pro)
        for it in range(4):
            for k, b in enumerate(body):
                if it == 3 and k == len(body) - 1:
                    break
                trace += b
        trace += st_loop + tail + fin
        probs = check_trace(trace + store + so)
        i0 = slow.index('L_slow_loop:')
        i1 = slow.index('s_cbranch_scc1 L_slow_loop')
        probs += check_trace(trace + slow[:i1 + 1] + slow[i0:] + store)
        return text, probs, body

    def emit(self):
        text, probs, body = self.build()
        hdr = open(self.o.ref).read().split('\n')
        out = []
        for l in hdr:
            if l.startswith('; @launch'):
                out.append('; @launch grid=(256,1,1) block=(256,1,1) lds=163840')
            elif l.startswith(';'):
                out.append(l)
            else:
                break
        out += ['.amdgcn_target "amdgcn-amd-amdhsa--gfx950"', '.text', '.globl %s_kernel' % NAME, '.p2align 8',
                '.type %s_kernel,@function' % NAME, '%s_kernel:' % NAME]
        for l in text:
            out.append(l if (l.endswith(':') or l.startswith('.')) else '    ' + l)
        out += ['.section .rodata,"a"', '.p2align 6', '.amdhsa_kernel %s_kernel' % NAME,
                '  .amdhsa_next_free_vgpr 408', '  .amdhsa_next_free_sgpr 102', '  .amdhsa_accum_offset 256',
                '  .amdhsa_group_segment_fixed_size 0', '  .amdhsa_kernarg_size 48', '  .amdhsa_user_sgpr_count 2',
                '  .amdhsa_user_sgpr_kernarg_segment_ptr 1', '  .amdhsa_system_sgpr_workgroup_id_x 1',
                '  .amdhsa_float_denorm_mode_32 3', '  .amdhsa_float_denorm_mode_16_64 3',
                '.end_amdhsa_kernel', '']
        return '\n'.join(out), probs, body


def ilist(s):
    return [int(x) for x in s.split(',')]


def parse(argv):
    ap = argparse.ArgumentParser()
    ap.add_argument('-o', default='cdna_kernels/%s.s' % NAME)
    ap.add_argument('--ref', default='cdna_kernels/%s.s.ref' % NAME)
    ap.add_argument('--k0', type=int, default=8)
    ap.add_argument('--thr', type=float, default=40)
    ap.add_argument('--stamps', action='store_true')
    ap.add_argument('--prost', action='store_true')
    ap.add_argument('--nodma', action='store_true')
    ap.add_argument('--nobar', action='store_true')
    ap.add_argument('--show', action='store_true')
    ap.add_argument('--exp', default='')
    ap.add_argument('--qkord', type=int, default=0)
    ap.add_argument('--pvord', type=int, default=0)
    ap.add_argument('--align', type=int, default=6)
    ap.add_argument('--maxds', type=int, default=2)
    ap.add_argument('--bargap', type=int, default=1)
    ap.add_argument('--vwait', type=int, default=34)
    ap.add_argument('--kwait', type=int, default=66)
    ap.add_argument('--egaps', type=ilist, default=list(range(0, 64, 2)))
    ap.add_argument('--kgaps', type=ilist, default=[35, 37, 39, 43, 45, 47, 51, 53])
    ap.add_argument('--dgaps', type=ilist, default=[38, 41, 49, 57, 64, 65])
    ap.add_argument('--early', type=lambda s: s.split(',') if s else [], default=[])
    ap.add_argument('--nmid', type=int, default=4)
    ap.add_argument('--kvflag', type=lambda s: s.replace('+', ' ') + ' ' if s else '', default='nt ')
    ap.add_argument('--qflag', type=lambda s: s.replace('+', ' ') + ' ' if s else '', default='nt ')
    ap.add_argument('--oflag', type=lambda s: s.replace('+', ' '), default='nt')
    return ap.parse_args(argv)


if __name__ == '__main__':
    o = parse(sys.argv[1:])
    g = Gen(o)
    s, probs, body = g.emit()
    open(o.o, 'w').write(s)
    if o.show:
        for p in body[:2]:
            cur = []
            for l in p + [MF]:
                if l.startswith(MF):
                    print(' | '.join(cur))
                    cur = []
                cur.append(l.split()[0].replace('v_mfma_f32_16x16x32_bf16', 'M').replace('buffer_load_dwordx4', 'DMA'))
    for p in probs[:40]:
        print('HAZARD', p)
    print('%d hazard findings' % len(probs))
```

```python
import sys, math, struct, argparse, re
from asmlib import I, check_trace

NAME = 'standalone__gqa_softmax__near_ridge'

V_O = 8
V_S = 136
V_C = 200
VKA = 216
VVA = 220
VDK = 228
VDV = 232
VOW = 234
VOR = 238
VOG = 240
VT = 244
A_Q = 0
A_K = 64
A_V = 96
A_L = 128
A_1 = 144

S_Q, S_K, S_V, S_OD = 4, 8, 12, 16
S_W, S_M0K, S_M0V, S_OFFK, S_OFFV, S_CNT = 20, 21, 22, 23, 24, 25
S_C = 26
S_QOFF = 28
S_THR = 29
S_TMP = 30
S_QLDS = 33
S_TS = 40

V_BASE = 65536
SPARE = 131072
MF = 'v_mfma_f32_16x16x32_bf16'


def f2u(x):
    return struct.unpack('<I', struct.pack('<f', x))[0]


def vr(b, n=1):
    return 'v%d' % b if n == 1 else 'v[%d:%d]' % (b, b + n - 1)


def ar(b, n=1):
    return 'a%d' % b if n == 1 else 'a[%d:%d]' % (b, b + n - 1)


def sr(b, n=1):
    return 's%d' % b if n == 1 else 's[%d:%d]' % (b, b + n - 1)


def S(x, qb, kb):
    return V_S + 32 * (x & 1) + 8 * qb + 4 * kb


def O(qb, db):
    return V_O + 32 * qb + 4 * db


class Gen:
    def __init__(self, opt):
        self.o = opt
        self.nts = 0

    def qk_order(self):
        if self.o.qkord == 0:
            return [(kb, st, qb) for kb in range(2) for st in range(4) for qb in range(4)]
        if self.o.qkord == 1:
            return [(kb, st, qb) for kb in range(2) for qb in range(4) for st in range(4)]
        return [(kb, st, 2 * h + j) for kb in range(2) for h in range(2) for st in range(4) for j in range(2)]

    def pv_order(self):
        if self.o.pvord == 0:
            return [(db, qb) for db in range(8) for qb in range(4)]
        if self.o.pvord == 1:
            return [(db, qb) for qb in range(4) for db in range(8)]
        return [(db, 2 * h + j) for h in range(2) for db in range(8) for j in range(2)]

    def qk_mfma(self, x, kb, st, qb, czero=False):
        d = vr(S(x, qb, kb), 4)
        c = d if st else ('0' if czero else vr(V_C + 4 * qb, 4))
        return '%s %s, %s, %s, %s' % (MF, d, ar(A_K + 16 * kb + 4 * st, 4), ar(A_Q + 16 * qb + 4 * st, 4), c)

    def pv_mfma(self, x, db, qb):
        o = vr(O(qb, db), 4)
        return '%s %s, %s, %s, %s' % (MF, o, ar(A_V + 4 * db, 4), vr(S(x, qb, 0), 4), o)

    def sum_mfma(self, x, qb):
        l = ar(A_L + 4 * qb, 4)
        return '%s %s, %s, %s, %s' % (MF, l, ar(A_1, 4), vr(S(x, qb, 0), 4), l)

    def k_read(self, x, kb, st):
        off = ((x >> 1) & 3) * 16384 + (x & 1) * 8192 + kb * 4096
        return 'ds_read_b128 %s, %s offset:%d' % (ar(A_K + 16 * kb + 4 * st, 4), vr(VKA + st), off)

    def v_read(self, x, db, t, addr=VVA, base=None):
        off = ((x >> 1) & 3) * 16384 + (x & 1) * 8192 if base is None else base
        off += t * 4096
        return 'ds_read_b64_tr_b16 %s, %s offset:%d' % (ar(A_V + 4 * db + 2 * t, 2), vr(addr + db), off)

    def sm_seq(self, x):
        seq = []
        for kb in range(2):
            for qb in range(4):
                s = S(x, qb, kb)
                for r in range(4):
                    ex = 'v_exp_f32 %s, %s' % (vr(s + r), vr(s + r))
                    cv = None
                    if r & 1:
                        cv = 'v_cvt_pk_bf16_f32 %s, %s, %s' % (vr(S(x, qb, 0) + 2 * kb + (r >> 1)), vr(s + r - 1), vr(s + r))
                    seq.append((ex, cv))
        return seq

    def dma_k(self, i):
        return 'buffer_load_dwordx4 %s, %s, %s offen offset:%d %slds' % (vr(VDK + i), sr(S_K, 4), sr(S_OFFK), 1024 * i, self.o.kvflag)

    def dma_v(self, i):
        return 'buffer_load_dwordx4 %s, %s, %s offen offset:%d %slds' % (vr(VDV + (i & 1)), sr(S_V, 4), sr(S_OFFV), 1024 * i, self.o.kvflag)

    def dma_q(self, i):
        return 'buffer_load_dwordx4 %s, %s, %s offen offset:%d %slds' % (vr(VDK + i), sr(S_Q, 4), sr(S_QOFF), 1024 * i, self.o.qflag)

    def stamp(self):
        if not self.o.stamps:
            return []
        k = self.nts
        self.nts += 1
        return ['s_memtime %s' % sr(S_TS + 4 * k, 2), 's_memrealtime %s' % sr(S_TS + 4 * k + 2, 2)]

    def period(self, u):
        o = self.o
        K0 = o.k0
        N = 68
        mf = [self.qk_mfma(u + 1, *a) for a in self.qk_order()]
        mf += [self.sum_mfma(u, qb) for qb in range(4)]
        mf += [self.pv_mfma(u, *a) for a in self.pv_order()]
        egaps = o.egaps
        assert len(egaps) == 32
        shadow = [[] for _ in range(N)]
        valu = [[] for _ in range(N)]
        seq = self.sm_seq(u)[32 - K0:] + self.sm_seq(u + 1)[:32 - K0]
        prev_cv = self.sm_seq(u)[32 - K0 - 1][1]
        for k, g in enumerate(egaps):
            ex, cv = seq[k]
            valu[g].append(ex)
            if cv:
                g2 = g + 1
                while g2 < N and g2 in egaps:
                    g2 += 1
                assert g2 < N
                valu[g2].append(cv)
        even = (u & 1) == 0
        free = lambda g: (0 if g in egaps else 2 - len(valu[g]) - len(shadow[g]))
        if even and not o.nobar:
            shadow[o.bargap] += ['s_waitcnt vmcnt(16)', 's_barrier']
        vreads = [self.v_read(u, db, t) for db in range(8) for t in range(2)]
        g = o.bargap + 1
        while vreads:
            for _ in range(max(0, min(free(g), o.maxds))):
                if vreads:
                    shadow[g].append(vreads.pop(0))
            g += 1
        lastv = g - 1
        assert lastv < 34, lastv
        shadow[o.vwait].insert(0, 's_waitcnt lgkmcnt(0)')
        t = u >> 1
        kreads = [self.k_read(u + 2, kb, st) for kb in range(2) for st in range(4)]
        for g, kr in zip(o.kgaps, kreads):
            assert g > o.vwait
            shadow[g].append(kr)
        shadow[o.kwait].insert(0, 's_waitcnt lgkmcnt(0)')
        if not o.nodma:
            G = o.dgaps
            if even:
                shadow[G[0]].append('s_add_u32 m0, %s, %d' % (sr(S_M0K), (t & 3) * 16384))
                for i in range(4):
                    shadow[G[1 + i]].append(self.dma_k(i))
                shadow[G[5]].append('s_add_u32 %s, %s, 16384' % (sr(S_OFFK), sr(S_OFFK)))
            else:
                shadow[G[0]].append('s_add_u32 m0, %s, %d' % (sr(S_M0V), ((t + 3) & 3) * 16384))
                for i in range(4):
                    shadow[G[1 + i]].append(self.dma_v(i))
                shadow[G[5]].append('s_add_u32 %s, %s, 16384' % (sr(S_OFFV), sr(S_OFFV)))
        out = []
        for g in range(N):
            out.append(mf[g])
            out += shadow[g] + valu[g]
        if o.exp:
            out = self.experiment(out)
        return out

    def experiment(self, lines):
        ex = self.o.exp.split(',')
        res = []
        for l in lines:
            if 'noexp' in ex and l.startswith('v_exp_f32'):
                continue
            if 'nocvt' in ex and l.startswith('v_cvt_pk'):
                continue
            if 'nolds' in ex and l.startswith('ds_read'):
                continue
            if 'nosum' in ex and l.startswith(MF + ' a['):
                continue
            if 'nomfma' in ex and l.startswith(MF):
                continue
            res.append(l)
        return res

    def xlane(self, op, regs, tmps):
        L = []
        for sw in ('v_permlane32_swap_b32', 'v_permlane16_swap_b32'):
            for r, t in zip(regs, tmps):
                L.append('v_mov_b32 %s, %s' % (vr(t), vr(r)))
            if len(regs) < 3:
                L.append('s_nop 1')
            for r, t in zip(regs, tmps):
                L.append('%s %s, %s' % (sw, vr(r), vr(t)))
            for r, t in zip(regs, tmps):
                L.append('%s %s, %s, %s' % (op, vr(r), vr(r), vr(t)))
        return L

    def prologue(self):
        o = self.o
        L = []
        e = L.append
        vm = []

        def issue(tag, txt):
            vm.append(tag)
            e(txt)

        def wait(tag):
            last = max(i for i, t in enumerate(vm) if t == tag)
            e('s_waitcnt vmcnt(%d)' % (len(vm) - 1 - last))

        e('s_cmp_ge_u32 s2, 256')
        e('s_cbranch_scc1 L_done')
        e('s_load_dwordx4 s[36:39], s[0:1], 0')
        e('s_load_dwordx4 s[96:99], s[0:1], 16')
        if o.stamps:
            e('s_load_dwordx2 s[90:91], s[0:1], 40')
            e('s_memrealtime s[92:93]')
        L += self.stamp()
        e('v_lshrrev_b32 v2, 6, v0')
        e('v_and_b32 v1, 63, v0')
        e('v_readfirstlane_b32 %s, v2' % sr(S_W))
        e('v_lshrrev_b32 v5, 4, v1')
        e('v_and_b32 v6, 15, v1')
        e('s_and_b32 s30, s2, 7')
        e('s_lshr_b32 s31, s2, 3')
        e('s_lshl_b32 s30, s30, 4')
        e('s_lshr_b32 s3, s31, 1')
        e('s_add_u32 s30, s30, s3')
        e('s_and_b32 s31, s31, 1')
        e('s_lshl_b32 s3, s30, 1')
        e('s_add_u32 s31, s31, s3')
        e('s_lshl_b32 s30, s30, 18')
        e('s_lshl_b32 s31, s31, 16')
        e('s_lshl_b32 %s, %s, 12' % (sr(S_M0K), sr(S_W)))
        e('s_add_u32 %s, %s, %d' % (sr(S_M0V), sr(S_M0K), V_BASE))
        e('s_mul_i32 %s, %s, 12288' % (sr(S_QOFF), sr(S_W)))
        e('s_lshl_b32 %s, %s, 14' % (sr(S_QLDS), sr(S_W)))
        e('s_add_u32 %s, %s, %d' % (sr(S_QLDS), sr(S_QLDS), SPARE))
        e('s_cmp_eq_u32 %s, 2' % sr(S_W))
        e('s_cselect_b32 %s, %d, %s' % (sr(S_QLDS), 3 * 16384, sr(S_QLDS)))
        e('s_cmp_eq_u32 %s, 3' % sr(S_W))
        e('s_cselect_b32 %s, %d, %s' % (sr(S_QLDS), V_BASE + 3 * 16384, sr(S_QLDS)))
        e('v_lshlrev_b32 v7, 8, v5')
        e('v_add_u32 v7, %s, v7' % sr(S_M0K))
        e('v_xor_b32 v3, v6, v5')
        e('v_lshl_add_u32 %s, v3, 4, v7' % vr(VDK))
        for i in range(1, 4):
            e('v_xor_b32 %s, %d, %s' % (vr(VDK + i), i << 6, vr(VDK)))
        e('s_mov_b32 %s, 0' % sr(S_OFFK))
        e('s_mov_b32 %s, 0' % sr(S_OFFV))
        e('s_mov_b32 s10, 0x40000')
        e('s_mov_b32 s11, 0x20000')
        e('s_mov_b32 s6, 0x10000')
        e('s_mov_b32 s7, 0x20000')
        e('s_mov_b32 m0, %s' % sr(S_M0K))
        e('s_waitcnt lgkmcnt(0)')
        e('s_add_u32 s8, s38, s30')
        e('s_addc_u32 s9, s39, 0')
        e('s_add_u32 s4, s36, s31')
        e('s_addc_u32 s5, s37, 0')
        for i in range(4):
            issue('K0', self.dma_k(i))
        for j in range(4):
            e('s_add_u32 m0, %s, %d' % (sr(S_QLDS), 4096 * j))
            if j:
                e('s_add_u32 %s, %s, 4096' % (sr(S_QOFF), sr(S_QOFF)))
            else:
                e('s_add_u32 %s, %s, 16384' % (sr(S_OFFK), sr(S_OFFK)))
            for i in range(4):
                issue('Q%d' % j, self.dma_q(i))
        if o.prost:
            L += self.stamp()
        e('s_add_u32 s12, s96, s30')
        e('s_addc_u32 s13, s97, 0')
        e('s_mov_b32 s14, 0x40000')
        e('s_mov_b32 s15, 0x20000')
        e('s_add_u32 s16, s98, s31')
        e('s_addc_u32 s17, s99, 0')
        e('s_mov_b32 s18, 0x10000')
        e('s_mov_b32 s19, 0x20000')
        e('v_lshlrev_b32 v3, 1, v5')
        e('v_xor_b32 v3, v6, v3')
        e('v_lshl_add_u32 %s, v3, 4, v7' % vr(VDV))
        e('v_xor_b32 %s, 0x80, %s' % (vr(VDV + 1), vr(VDV)))

        def dma_tile(kind, t):
            if kind == 'V':
                e('s_add_u32 m0, %s, %d' % (sr(S_M0V), t * 16384))
                e('s_nop 0')
                for i in range(4):
                    issue('V%d' % t, self.dma_v(i))
                e('s_add_u32 %s, %s, 16384' % (sr(S_OFFV), sr(S_OFFV)))
            else:
                e('s_add_u32 m0, %s, %d' % (sr(S_M0K), t * 16384))
                e('s_nop 0')
                for i in range(4):
                    issue('K%d' % t, self.dma_k(i))
                e('s_add_u32 %s, %s, 16384' % (sr(S_OFFK), sr(S_OFFK)))

        early = list(o.early)
        later = [x for x in ['V0', 'K1', 'V1', 'K2', 'V2', 'K3'] if x not in early]
        for x in early:
            dma_tile(x[0], int(x[1]))
        e('v_xor_b32 v3, v5, v6')
        e('v_lshlrev_b32 v4, 8, v6')
        e('v_lshl_add_u32 %s, v3, 4, v4' % vr(VKA))
        for s in range(1, 4):
            e('v_xor_b32 %s, %d, %s' % (vr(VKA + s), s << 6, vr(VKA)))
        for s in range(4):
            e('v_add_u32 %s, %s, %s' % (vr(VT + s), sr(S_QLDS), vr(VKA + s)))
        e('v_lshrrev_b32 v3, 2, v1')
        e('v_lshlrev_b32 v2, 8, v3')
        e('v_and_b32 v3, 7, v3')
        e('v_lshl_add_u32 v2, v3, 5, v2')
        e('v_and_b32 v3, 3, v1')
        e('v_lshl_add_u32 v2, v3, 3, v2')
        e('v_add_u32 %s, %d, v2' % (vr(VVA), V_BASE))
        for db in range(1, 8):
            e('v_xor_b32 %s, %d, %s' % (vr(VVA + db), db << 5, vr(VVA)))
        e('v_and_b32 v3, 1, v5')
        e('v_lshlrev_b32 v3, 1, v3')
        e('v_lshrrev_b32 v2, 1, v5')
        e('v_or_b32 v3, v3, v2')
        e('v_and_b32 v2, 7, v6')
        e('v_xor_b32 v3, v3, v2')
        e('v_lshl_add_u32 v3, v3, 4, v4')
        e('v_add_u32 %s, %s, v3' % (vr(VOW), sr(S_M0K)))
        for j in range(1, 4):
            e('v_xor_b32 %s, %d, %s' % (vr(VOW + j), j << 6, vr(VOW)))
        e('v_mov_b32 %s, %s' % (vr(VOR), vr(VDK)))
        e('v_mov_b32 %s, %s' % (vr(VOR + 1), vr(VDK + 1)))
        e('s_lshl_b32 s3, %s, 14' % sr(S_W))
        e('v_lshlrev_b32 v3, 4, v1')
        e('v_add_u32 %s, s3, v3' % vr(VOG))
        c = math.log2(math.e) / math.sqrt(128.0)
        e('s_mov_b32 %s, 0x%08x' % (sr(S_C), f2u(c)))
        e('s_mov_b32 %s, 0x%08x' % (sr(S_C + 1), f2u(c)))
        e('s_mov_b32 %s, 0x%08x' % (sr(S_THR), f2u(2.0 ** o.thr)))
        e('s_mov_b32 %s, 0xffff0000' % sr(S_TMP))
        e('v_and_b32 v3, 3, v1')
        e('v_cmp_eq_u32 vcc, 0, v3')
        e('v_mov_b32 v2, 0x3f803f80')
        e('s_nop 0')
        e('v_cndmask_b32 v3, 0, v2, vcc')
        for j in range(4):
            e('v_accvgpr_write_b32 %s, v3' % ar(A_1 + j))
        for i in range(16):
            e('v_accvgpr_write_b32 %s, 0' % ar(A_L + i))
        for i in range(128):
            e('v_mov_b32 %s, 0' % vr(V_O + i))
        RAW = V_S + 32
        TM = V_S + 48
        for qb in range(4):
            wait('Q%d' % qb)
            if qb == 0:
                L += self.stamp()
            for st in range(4):
                e('ds_read_b128 %s, %s offset:%d' % (vr(RAW + 4 * st, 4), vr(VT + st), 4096 * qb))
            nxt = [x for x in later if x not in ('K3', 'V3')]
            if nxt and qb < o.nmid:
                x = nxt[0]
                later.remove(x)
                dma_tile(x[0], int(x[1]))
            for st in range(4):
                e('s_waitcnt lgkmcnt(%d)' % (3 - st))
                b = RAW + 4 * st
                t0 = TM + 8 * (st & 1)
                for j in range(4):
                    e('v_lshlrev_b32 %s, 16, %s' % (vr(t0 + 2 * j), vr(b + j)))
                    e('v_and_b32 %s, %s, %s' % (vr(t0 + 2 * j + 1), sr(S_TMP), vr(b + j)))
                for j in range(4):
                    e('v_pk_mul_f32 %s, %s, %s' % (vr(t0 + 2 * j, 2), vr(t0 + 2 * j, 2), sr(S_C, 2)))
                for j in range(4):
                    e('v_cvt_pk_bf16_f32 %s, %s, %s' % (vr(t0 + 2 * j), vr(t0 + 2 * j), vr(t0 + 2 * j + 1)))
                for j in range(4):
                    e('v_accvgpr_write_b32 %s, %s' % (ar(A_Q + 16 * qb + 4 * st + j), vr(t0 + 2 * j)))
        L += self.stamp()
        e('s_barrier')
        for kb in range(2):
            for st in range(4):
                e(self.k_read(0, kb, st))
        for x in list(later):
            dma_tile(x[0], int(x[1]))
        assert vm[-24:] == ['V0'] * 4 + ['K1'] * 4 + ['V1'] * 4 + ['K2'] * 4 + ['V2'] * 4 + ['K3'] * 4, vm
        e('s_waitcnt lgkmcnt(0)')
        order = [(kb, st, qb) for kb in range(2) for st in range(4) for qb in range(4)]
        for n, a in enumerate(order):
            e(self.qk_mfma(0, *a, czero=True))
            if n & 3 == 3:
                e(self.k_read(1, a[0], a[1]))
        e('s_nop 3')
        T = VT + 4
        for qb in range(4):
            s = S(0, qb, 0)
            e('v_max3_f32 %s, %s, %s, %s' % (vr(T + qb), vr(s), vr(s + 1), vr(s + 2)))
        for k in range(2):
            for qb in range(4):
                s = S(0, qb, 0)
                e('v_max3_f32 %s, %s, %s, %s' % (vr(T + qb), vr(T + qb), vr(s + 3 + 2 * k), vr(s + 4 + 2 * k)))
        for qb in range(4):
            e('v_max_f32 %s, %s, %s' % (vr(T + qb), vr(T + qb), vr(S(0, qb, 0) + 7)))
        L += self.xlane('v_max_f32', [T + q for q in range(4)], [T + 4 + q for q in range(4)])
        for r in range(4):
            for qb in range(4):
                e('v_sub_f32 %s, 0, %s' % (vr(V_C + 4 * qb + r), vr(T + qb)))
        for kb in range(2):
            for qb in range(4):
                for r in range(4):
                    e('v_sub_f32 %s, %s, %s' % (vr(S(0, qb, kb) + r), vr(S(0, qb, kb) + r), vr(T + qb)))
        seq = self.sm_seq(0)[:32 - o.k0]
        pend = None
        for ex, cv in seq:
            e(ex)
            if pend:
                e(pend)
            pend = cv
        e('s_waitcnt lgkmcnt(0)')
        if pend:
            e(pend)
        e('s_mov_b32 %s, 0' % sr(S_CNT))
        L += self.stamp()
        return L

    def tail(self):
        o = self.o
        u = 31
        L = []
        e = L.append
        seq = self.sm_seq(u)[32 - o.k0:]
        vreads = [self.v_read(u, db, t) for db in range(8) for t in range(2)]
        for _ in range(4):
            e(vreads.pop(0))
        pend = None
        for ex, cv in seq:
            e(ex)
            if pend:
                e(pend)
            pend = cv
        L += vreads
        if pend:
            e(pend)
        e('s_nop 0')
        for qb in range(4):
            e(self.sum_mfma(u, qb))
        e('s_waitcnt lgkmcnt(0)')
        for qb in range(4):
            for db in range(8):
                e(self.pv_mfma(u, db, qb))
        return L

    def check_sums(self):
        L = []
        e = L.append
        T = VT
        for qb in range(4):
            e('v_accvgpr_read_b32 %s, %s' % (vr(T + qb), ar(A_L + 4 * qb)))
        e('v_add_f32 %s, %s, %s' % (vr(T + 5), vr(T), vr(T + 1)))
        e('v_add_f32 %s, %s, %s' % (vr(T + 5), vr(T + 5), vr(T + 2)))
        e('v_add_f32 %s, %s, %s' % (vr(T + 5), vr(T + 5), vr(T + 3)))
        e('v_cmp_ngt_f32 vcc, %s, %s' % (sr(S_THR), vr(T + 5)))
        e('s_nop 3')
        e('s_cbranch_vccnz L_slow' if not self.o.exp else 's_nop 0')
        return L

    def store_out(self):
        L = []
        e = L.append
        T = VT
        for qb in range(4):
            e('v_rcp_f32 %s, %s' % (vr(T + 4 + 2 * qb), vr(T + qb)))
        e('s_waitcnt vmcnt(0)')
        RB = V_S
        for qb in range(4):
            for j in range(4):
                a, b = O(qb, 2 * j), O(qb, 2 * j + 1)
                for k in range(4):
                    e('v_pk_mul_f32 %s, %s, %s op_sel_hi:[1,0]' % (vr(a + 2 * k, 2), vr(a + 2 * k, 2), vr(T + 4 + 2 * qb, 2)))
                e('v_cvt_pk_bf16_f32 %s, %s, %s' % (vr(a), vr(a), vr(a + 1)))
                e('v_cvt_pk_bf16_f32 %s, %s, %s' % (vr(a + 1), vr(a + 2), vr(a + 3)))
                e('v_cvt_pk_bf16_f32 %s, %s, %s' % (vr(a + 2), vr(b), vr(b + 1)))
                e('v_cvt_pk_bf16_f32 %s, %s, %s' % (vr(a + 3), vr(b + 2), vr(b + 3)))
            for j in range(4):
                a = O(qb, 2 * j)
                if j == 3:
                    pass
                e('v_permlane16_swap_b32 %s, %s' % (vr(a), vr(a + 2)))
                e('v_permlane16_swap_b32 %s, %s' % (vr(a + 1), vr(a + 3)))
            for j in range(4):
                e('ds_write_b128 %s, %s offset:%d' % (vr(VOW + j), vr(O(qb, 2 * j), 4), 16384 * qb))
            if qb:
                e('s_waitcnt lgkmcnt(4)')
                L += self.o_stores(qb - 1)
            e('s_waitcnt lgkmcnt(0)')
            for i in range(4):
                e('ds_read_b128 %s, %s offset:%d' % (vr(RB + 16 * (qb & 1) + 4 * i, 4), vr(VOR + (i & 1)), 16384 * qb + 1024 * i))
        e('s_waitcnt lgkmcnt(0)')
        L += self.o_stores(3)
        return L

    def o_stores(self, qb):
        L = []
        if qb:
            L.append('s_movk_i32 s3, %d' % (4096 * qb))
        for i in range(4):
            L.append('buffer_store_dwordx4 %s, %s, %s, %s offen offset:%d %s' % (vr(V_S + 16 * (qb & 1) + 4 * i, 4), vr(VOG), sr(S_OD, 4), 's3' if qb else '0', 1024 * i, self.o.oflag))
        return L

    def slow_path(self):
        L = []
        e = L.append
        T = VT
        M = V_C
        SK = V_S + 32
        SV = SK + 1
        SVA = SK + 4
        e('L_slow:')
        e('s_waitcnt vmcnt(0)')
        e('v_mbcnt_lo_u32_b32 v1, -1, 0')
        e('v_mbcnt_hi_u32_b32 v1, -1, v1')
        e('v_and_b32 v2, 15, v1')
        e('v_lshrrev_b32 v3, 4, v1')
        e('v_lshlrev_b32 v2, 8, v2')
        e('v_lshl_add_u32 %s, v3, 4, v2' % vr(SK))
        e('v_subrev_u32 %s, %s, %s' % (vr(SV), sr(S_M0K), vr(VDV)))
        e('v_subrev_u32 %s, %s, %s' % (vr(SV + 1), sr(S_M0K), vr(VDV + 1)))
        e('s_lshl_b32 s3, %s, 13' % sr(S_W))
        e('s_add_u32 s34, s3, %d' % SPARE)
        e('s_add_u32 s3, s3, %d' % (SPARE - V_BASE))
        for db in range(8):
            e('v_add_u32 %s, s3, %s' % (vr(SVA + db), vr(VVA + db)))
        for i in range(128):
            e('v_mov_b32 %s, 0' % vr(V_O + i))
        for qb in range(4):
            e('v_mov_b32 %s, 0xff7fffff' % vr(M + qb))
            e('v_mov_b32 %s, 0' % vr(M + 4 + qb))
        e('s_mov_b32 %s, 0' % sr(S_CNT))
        e('L_slow_loop:')
        e('s_mov_b32 m0, s34')
        e('s_add_u32 s31, %s, 4096' % sr(S_CNT))
        for i in range(4):
            e('buffer_load_dwordx4 %s, %s, %s offen offset:%d lds' % (vr(SV + (i & 1)), sr(S_V, 4), sr(S_CNT), 1024 * i))
        e('s_add_u32 m0, s34, 4096')
        e('s_nop 0')
        for i in range(4):
            e('buffer_load_dwordx4 %s, %s, s31 offen offset:%d lds' % (vr(SV + (i & 1)), sr(S_V, 4), 1024 * i))
        for kb in range(2):
            for st in range(4):
                e('buffer_load_dwordx4 %s, %s, %s, %s offen offset:%d' % (ar(A_K + 16 * kb + 4 * st, 4), vr(SK), sr(S_K, 4), 's31' if kb else sr(S_CNT), 64 * st))
        e('s_waitcnt vmcnt(0)')
        for kb in range(2):
            for st in range(4):
                for qb in range(4):
                    e(self.qk_mfma(0, kb, st, qb, czero=True))
        for db in range(8):
            for t in range(2):
                e(self.v_read(0, db, t, addr=SVA, base=0))
        for qb in range(4):
            s = S(0, qb, 0)
            e('v_max3_f32 %s, %s, %s, %s' % (vr(T + qb), vr(M + qb), vr(s), vr(s + 1)))
            for k in range(1, 4):
                e('v_max3_f32 %s, %s, %s, %s' % (vr(T + qb), vr(T + qb), vr(s + 2 * k), vr(s + 2 * k + 1)))
        L += self.xlane('v_max_f32', [T + q for q in range(4)], [T + 4 + q for q in range(4)])
        for qb in range(4):
            e('v_sub_f32 %s, %s, %s' % (vr(M + 8 + qb), vr(M + qb), vr(T + qb)))
        for qb in range(4):
            e('v_exp_f32 %s, %s' % (vr(M + 8 + qb), vr(M + 8 + qb)))
        for qb in range(4):
            e('v_mov_b32 %s, %s' % (vr(M + qb), vr(T + qb)))
        for qb in range(4):
            s = S(0, qb, 0)
            for r in range(8):
                e('v_sub_f32 %s, %s, %s' % (vr(s + r), vr(s + r), vr(T + qb)))
            for r in range(8):
                e('v_exp_f32 %s, %s' % (vr(s + r), vr(s + r)))
            e('v_mul_f32 %s, %s, %s' % (vr(M + 4 + qb), vr(M + 4 + qb), vr(M + 8 + qb)))
            for r in range(8):
                e('v_add_f32 %s, %s, %s' % (vr(M + 4 + qb), vr(M + 4 + qb), vr(s + r)))
            for j in range(4):
                e('v_cvt_pk_bf16_f32 %s, %s, %s' % (vr(s + j), vr(s + 2 * j), vr(s + 2 * j + 1)))
            for i in range(32):
                e('v_mul_f32 %s, %s, %s' % (vr(O(qb, 0) + i), vr(O(qb, 0) + i), vr(M + 8 + qb)))
        e('s_waitcnt lgkmcnt(0)')
        e('s_nop 1')
        for db in range(8):
            for qb in range(4):
                e(self.pv_mfma(0, db, qb))
        e('s_nop 7')
        e('s_add_u32 %s, %s, 8192' % (sr(S_CNT), sr(S_CNT)))
        e('s_cmp_lt_u32 %s, 0x40000' % sr(S_CNT))
        e('s_cbranch_scc1 L_slow_loop')
        for qb in range(4):
            e('v_mov_b32 %s, %s' % (vr(T + qb), vr(M + 4 + qb)))
        L += self.xlane('v_add_f32', [T + q for q in range(4)], [T + 4 + q for q in range(4)])
        e('s_branch L_store')
        return L

    def stamps_out(self):
        if not self.o.stamps:
            return []
        L = []
        e = L.append
        if self.o.prost:
            L += self.stamp()
        e('s_waitcnt vmcnt(0) lgkmcnt(0)')
        e('s_memrealtime s[94:95]')
        L += self.stamp()
        e('s_waitcnt lgkmcnt(0)')
        e('s_mov_b32 s84, s90')
        e('s_mov_b32 s85, s91')
        e('s_mov_b32 s86, 0x100000')
        e('s_mov_b32 s87, 0x20000')
        e('s_getreg_b32 s88, hwreg(HW_REG_XCC_ID)')
        e('s_getreg_b32 s89, hwreg(HW_REG_HW_ID)')
        e('s_lshl_b32 s3, s2, 2')
        e('s_add_u32 s3, s3, %s' % sr(S_W))
        e('s_lshl_b32 s3, s3, 8')
        e('v_mov_b32 v1, s3')
        vals = [92, 93, 94, 95, 88, 89] + [S_TS + 4 * k for k in range(10)] + [S_TS + 4 * k + 2 for k in range(10)]
        e('s_mov_b64 exec, 1')
        for k, s in enumerate(vals):
            e('v_mov_b32 v2, s%d' % s)
            e('buffer_store_dword v2, v1, s[84:87], 0 offen offset:%d' % (4 * k))
        if self.o.probe:
            kind, a, b, wg = self.o.probe.split(',')
            a, b = int(a), int(b)
            e('s_cmp_eq_u32 s2, %s' % wg)
            e('s_cbranch_scc0 L_done')
            e('s_cmp_eq_u32 %s, 0' % sr(S_W))
            e('s_cbranch_scc0 L_done')
            if kind == 'rt':
                e('s_sub_u32 s30, s%d, s%d' % (S_TS + 4 * b + 2, S_TS + 4 * a + 2))
                e('s_mul_i32 s30, s30, 10')
            else:
                e('s_sub_u32 s30, s%d, s%d' % (S_TS + 4 * b, S_TS + 4 * a))
                e('s_lshr_b32 s30, s30, 2')
            e('s_add_u32 s30, s30, 10000')
            e('L_spin:')
            e('s_sleep 1')
            e('s_memrealtime s[34:35]')
            e('s_waitcnt lgkmcnt(0)')
            e('s_sub_u32 s34, s34, s92')
            e('s_cmp_lt_u32 s34, s30')
            e('s_cbranch_scc1 L_spin')
        return L

    def build(self):
        o = self.o
        U = 8
        pro = self.prologue()
        body = [self.period(u) for u in range(U)]

        def put_shadow(p, slot, lines):
            n = -1
            for i, l in enumerate(p):
                if l.startswith(MF):
                    n += 1
                    if n == slot:
                        return p[:i + 1] + lines + p[i + 1:]
            raise ValueError
        nm = sum(l.startswith(MF) for l in body[0])
        if nm:
            body[6] = put_shadow(body[6], nm - 2, ['s_cmp_eq_u32 %s, 3' % sr(S_CNT)]) + ['s_cbranch_scc1 L_tail']
            tl = body[6][body[6].index('s_cmp_eq_u32 %s, 3' % sr(S_CNT)) + 1:]
            assert not any(l.startswith('s_add') for l in tl)
            body[7] = put_shadow(body[7], nm - 2, ['s_add_u32 %s, %s, 1' % (sr(S_CNT), sr(S_CNT))]) + ['s_branch L_loop']
        else:
            body[6] += ['s_cmp_eq_u32 %s, 3' % sr(S_CNT), 's_cbranch_scc1 L_tail']
            body[7] += ['s_add_u32 %s, %s, 1' % (sr(S_CNT), sr(S_CNT)), 's_branch L_loop']
        st_loop = self.stamp()
        tail = self.tail()
        tail += self.stamp()
        fin = self.check_sums()
        store = self.store_out()
        so = self.stamps_out()
        slow = self.slow_path()

        text = list(pro)
        if o.align:
            text.append('.p2align %d' % o.align)
        text.append('L_loop:')
        for b in body:
            text += b
        text.append('L_tail:')
        text += st_loop + tail + fin
        text.append('L_store:')
        text += store + so
        text.append('L_done:')
        text.append('s_endpgm')
        text += slow

        trace = list(pro)
        for it in range(4):
            for k, b in enumerate(body):
                if it == 3 and k == len(body) - 1:
                    break
                trace += b
        trace += st_loop + tail + fin
        probs = check_trace(trace + store + so)
        i0 = slow.index('L_slow_loop:')
        i1 = slow.index('s_cbranch_scc1 L_slow_loop')
        probs += check_trace(trace + slow[:i1 + 1] + slow[i0:] + store)
        return text, probs, body

    def emit(self):
        text, probs, body = self.build()
        hdr = open(self.o.ref).read().split('\n')
        out = []
        for l in hdr:
            if l.startswith('; @launch'):
                out.append('; @launch grid=(256,1,1) block=(256,1,1) lds=163840')
            elif l.startswith(';'):
                out.append(l)
            else:
                break
        out += ['.amdgcn_target "amdgcn-amd-amdhsa--gfx950"', '.text', '.globl %s_kernel' % NAME, '.p2align 8',
                '.type %s_kernel,@function' % NAME, '%s_kernel:' % NAME]
        for l in text:
            out.append(l if (l.endswith(':') or l.startswith('.')) else '    ' + l)
        out += ['.section .rodata,"a"', '.p2align 6', '.amdhsa_kernel %s_kernel' % NAME,
                '  .amdhsa_next_free_vgpr 408', '  .amdhsa_next_free_sgpr 102', '  .amdhsa_accum_offset 256',
                '  .amdhsa_group_segment_fixed_size 0', '  .amdhsa_kernarg_size 48', '  .amdhsa_user_sgpr_count 2',
                '  .amdhsa_user_sgpr_kernarg_segment_ptr 1', '  .amdhsa_system_sgpr_workgroup_id_x 1',
                '  .amdhsa_float_denorm_mode_32 3', '  .amdhsa_float_denorm_mode_16_64 3',
                '.end_amdhsa_kernel', '']
        return '\n'.join(out), probs, body


def ilist(s):
    return [int(x) for x in s.split(',')]


def parse(argv):
    ap = argparse.ArgumentParser()
    ap.add_argument('-o', default='cdna_kernels/%s.s' % NAME)
    ap.add_argument('--ref', default='cdna_kernels/%s.s.ref' % NAME)
    ap.add_argument('--k0', type=int, default=8)
    ap.add_argument('--thr', type=float, default=40)
    ap.add_argument('--stamps', action='store_true')
    ap.add_argument('--prost', action='store_true')
    ap.add_argument('--probe', default='')
    ap.add_argument('--nodma', action='store_true')
    ap.add_argument('--nobar', action='store_true')
    ap.add_argument('--show', action='store_true')
    ap.add_argument('--exp', default='')
    ap.add_argument('--qkord', type=int, default=0)
    ap.add_argument('--pvord', type=int, default=0)
    ap.add_argument('--align', type=int, default=6)
    ap.add_argument('--maxds', type=int, default=2)
    ap.add_argument('--bargap', type=int, default=1)
    ap.add_argument('--vwait', type=int, default=34)
    ap.add_argument('--kwait', type=int, default=66)
    ap.add_argument('--egaps', type=ilist, default=list(range(0, 64, 2)))
    ap.add_argument('--kgaps', type=ilist, default=[35, 37, 39, 43, 45, 47, 51, 53])
    ap.add_argument('--dgaps', type=ilist, default=[38, 41, 49, 57, 64, 65])
    ap.add_argument('--early', type=lambda s: s.split(',') if s else [], default=[])
    ap.add_argument('--nmid', type=int, default=4)
    ap.add_argument('--kvflag', type=lambda s: s.replace('+', ' ') + ' ' if s else '', default='nt ')
    ap.add_argument('--qflag', type=lambda s: s.replace('+', ' ') + ' ' if s else '', default='nt ')
    ap.add_argument('--oflag', type=lambda s: s.replace('+', ' '), default='nt')
    return ap.parse_args(argv)


if __name__ == '__main__':
    o = parse(sys.argv[1:])
    g = Gen(o)
    s, probs, body = g.emit()
    open(o.o, 'w').write(s)
    if o.show:
        for p in body[:2]:
            cur = []
            for l in p + [MF]:
                if l.startswith(MF):
                    print(' | '.join(cur))
                    cur = []
                cur.append(l.split()[0].replace('v_mfma_f32_16x16x32_bf16', 'M').replace('buffer_load_dwordx4', 'DMA'))
    for p in probs[:40]:
        print('HAZARD', p)
    print('%d hazard findings' % len(probs))
```

```python
import sys, math, struct, argparse, re
from asmlib import I, check_trace

NAME = 'standalone__gqa_softmax__near_ridge'

V_O = 8
V_S = 136
V_C = 200
VKA = 216
VVA = 220
VDK = 228
VDV = 232
VOW = 234
VOR = 238
VOG = 240
VT = 244
A_Q = 0
A_K = 64
A_V = 96
A_L = 128
A_1 = 144

S_Q, S_K, S_V, S_OD = 4, 8, 12, 16
S_W, S_M0K, S_M0V, S_OFFK, S_OFFV, S_CNT = 20, 21, 22, 23, 24, 25
S_C = 26
S_QOFF = 28
S_THR = 29
S_TMP = 30
S_QLDS = 33
S_TS = 40

V_BASE = 65536
SPARE = 131072
MF = 'v_mfma_f32_16x16x32_bf16'


def f2u(x):
    return struct.unpack('<I', struct.pack('<f', x))[0]


def vr(b, n=1):
    return 'v%d' % b if n == 1 else 'v[%d:%d]' % (b, b + n - 1)


def ar(b, n=1):
    return 'a%d' % b if n == 1 else 'a[%d:%d]' % (b, b + n - 1)


def sr(b, n=1):
    return 's%d' % b if n == 1 else 's[%d:%d]' % (b, b + n - 1)


def S(x, qb, kb):
    return V_S + 32 * (x & 1) + 8 * qb + 4 * kb


def O(qb, db):
    return V_O + 32 * qb + 4 * db


class Gen:
    def __init__(self, opt):
        self.o = opt
        self.nts = 0

    def qk_order(self):
        if self.o.qkord == 0:
            return [(kb, st, qb) for kb in range(2) for st in range(4) for qb in range(4)]
        if self.o.qkord == 1:
            return [(kb, st, qb) for kb in range(2) for qb in range(4) for st in range(4)]
        return [(kb, st, 2 * h + j) for kb in range(2) for h in range(2) for st in range(4) for j in range(2)]

    def pv_order(self):
        if self.o.pvord == 0:
            return [(db, qb) for db in range(8) for qb in range(4)]
        if self.o.pvord == 1:
            return [(db, qb) for qb in range(4) for db in range(8)]
        return [(db, 2 * h + j) for h in range(2) for db in range(8) for j in range(2)]

    def qk_mfma(self, x, kb, st, qb, czero=False):
        d = vr(S(x, qb, kb), 4)
        c = d if st else ('0' if czero else vr(V_C + 4 * qb, 4))
        return '%s %s, %s, %s, %s' % (MF, d, ar(A_K + 16 * kb + 4 * st, 4), ar(A_Q + 16 * qb + 4 * st, 4), c)

    def pv_mfma(self, x, db, qb):
        o = vr(O(qb, db), 4)
        return '%s %s, %s, %s, %s' % (MF, o, ar(A_V + 4 * db, 4), vr(S(x, qb, 0), 4), o)

    def sum_mfma(self, x, qb):
        l = ar(A_L + 4 * qb, 4)
        return '%s %s, %s, %s, %s' % (MF, l, ar(A_1, 4), vr(S(x, qb, 0), 4), l)

    def k_read(self, x, kb, st):
        off = ((x >> 1) & 3) * 16384 + (x & 1) * 8192 + kb * 4096
        return 'ds_read_b128 %s, %s offset:%d' % (ar(A_K + 16 * kb + 4 * st, 4), vr(VKA + st), off)

    def v_read(self, x, db, t, addr=VVA, base=None):
        off = ((x >> 1) & 3) * 16384 + (x & 1) * 8192 if base is None else base
        off += t * 4096
        return 'ds_read_b64_tr_b16 %s, %s offset:%d' % (ar(A_V + 4 * db + 2 * t, 2), vr(addr + db), off)

    def sm_seq(self, x):
        seq = []
        for kb in range(2):
            for qb in range(4):
                s = S(x, qb, kb)
                for r in range(4):
                    ex = 'v_exp_f32 %s, %s' % (vr(s + r), vr(s + r))
                    cv = None
                    if r & 1:
                        cv = 'v_cvt_pk_bf16_f32 %s, %s, %s' % (vr(S(x, qb, 0) + 2 * kb + (r >> 1)), vr(s + r - 1), vr(s + r))
                    seq.append((ex, cv))
        return seq

    def dma_k(self, i):
        return 'buffer_load_dwordx4 %s, %s, %s offen offset:%d %slds' % (vr(VDK + i), sr(S_K, 4), sr(S_OFFK), 1024 * i, self.o.kvflag)

    def dma_v(self, i):
        return 'buffer_load_dwordx4 %s, %s, %s offen offset:%d %slds' % (vr(VDV + (i & 1)), sr(S_V, 4), sr(S_OFFV), 1024 * i, self.o.kvflag)

    def dma_q(self, i):
        return 'buffer_load_dwordx4 %s, %s, %s offen offset:%d %slds' % (vr(VDK + i), sr(S_Q, 4), sr(S_QOFF), 1024 * i, self.o.qflag)

    def stamp(self):
        if not self.o.stamps:
            return []
        k = self.nts
        self.nts += 1
        return ['s_memtime %s' % sr(S_TS + 4 * k, 2), 's_memrealtime %s' % sr(S_TS + 4 * k + 2, 2)]

    def period(self, u):
        o = self.o
        K0 = o.k0
        N = 68
        mf = [self.qk_mfma(u + 1, *a) for a in self.qk_order()]
        mf += [self.sum_mfma(u, qb) for qb in range(4)]
        mf += [self.pv_mfma(u, *a) for a in self.pv_order()]
        egaps = o.egaps
        assert len(egaps) == 32
        shadow = [[] for _ in range(N)]
        valu = [[] for _ in range(N)]
        seq = self.sm_seq(u)[32 - K0:] + self.sm_seq(u + 1)[:32 - K0]
        prev_cv = self.sm_seq(u)[32 - K0 - 1][1]
        for k, g in enumerate(egaps):
            ex, cv = seq[k]
            valu[g].append(ex)
            if cv:
                g2 = g + 1
                while g2 < N and g2 in egaps:
                    g2 += 1
                assert g2 < N
                valu[g2].append(cv)
        even = (u & 1) == 0
        free = lambda g: (0 if g in egaps else 2 - len(valu[g]) - len(shadow[g]))
        if even and not o.nobar:
            shadow[o.bargap] += ['s_waitcnt vmcnt(16)', 's_barrier']
        vreads = [self.v_read(u, db, t) for db in range(8) for t in range(2)]
        g = o.bargap + 1
        while vreads:
            for _ in range(max(0, min(free(g), o.maxds))):
                if vreads:
                    shadow[g].append(vreads.pop(0))
            g += 1
        lastv = g - 1
        assert lastv < 34, lastv
        shadow[o.vwait].insert(0, 's_waitcnt lgkmcnt(0)')
        t = u >> 1
        kreads = [self.k_read(u + 2, kb, st) for kb in range(2) for st in range(4)]
        for g, kr in zip(o.kgaps, kreads):
            assert g > o.vwait
            shadow[g].append(kr)
        shadow[o.kwait].insert(0, 's_waitcnt lgkmcnt(0)')
        if not o.nodma:
            G = o.dgaps
            if even:
                shadow[G[0]].append('s_add_u32 m0, %s, %d' % (sr(S_M0K), (t & 3) * 16384))
                for i in range(4):
                    shadow[G[1 + i]].append(self.dma_k(i))
                shadow[G[5]].append('s_add_u32 %s, %s, 16384' % (sr(S_OFFK), sr(S_OFFK)))
            else:
                shadow[G[0]].append('s_add_u32 m0, %s, %d' % (sr(S_M0V), ((t + 3) & 3) * 16384))
                for i in range(4):
                    shadow[G[1 + i]].append(self.dma_v(i))
                shadow[G[5]].append('s_add_u32 %s, %s, 16384' % (sr(S_OFFV), sr(S_OFFV)))
        out = []
        for g in range(N):
            out.append(mf[g])
            out += shadow[g] + valu[g]
        if o.exp:
            out = self.experiment(out)
        return out

    def experiment(self, lines):
        ex = self.o.exp.split(',')
        res = []
        for l in lines:
            if 'noexp' in ex and l.startswith('v_exp_f32'):
                continue
            if 'nocvt' in ex and l.startswith('v_cvt_pk'):
                continue
            if 'nolds' in ex and l.startswith('ds_read'):
                continue
            if 'nosum' in ex and l.startswith(MF + ' a['):
                continue
            if 'nomfma' in ex and l.startswith(MF):
                continue
            res.append(l)
        return res

    def xlane(self, op, regs, tmps):
        L = []
        for sw in ('v_permlane32_swap_b32', 'v_permlane16_swap_b32'):
            for r, t in zip(regs, tmps):
                L.append('v_mov_b32 %s, %s' % (vr(t), vr(r)))
            if len(regs) < 3:
                L.append('s_nop 1')
            for r, t in zip(regs, tmps):
                L.append('%s %s, %s' % (sw, vr(r), vr(t)))
            for r, t in zip(regs, tmps):
                L.append('%s %s, %s, %s' % (op, vr(r), vr(r), vr(t)))
        return L

    def prologue(self):
        o = self.o
        L = []
        e = L.append
        vm = []

        def issue(tag, txt):
            vm.append(tag)
            e(txt)

        def wait(tag):
            last = max(i for i, t in enumerate(vm) if t == tag)
            e('s_waitcnt vmcnt(%d)' % (len(vm) - 1 - last))

        e('s_cmp_ge_u32 s2, 256')
        e('s_cbranch_scc1 L_done')
        e('s_load_dwordx4 s[36:39], s[0:1], 0')
        e('s_load_dwordx4 s[96:99], s[0:1], 16')
        if o.stamps:
            e('s_load_dwordx2 s[90:91], s[0:1], 40')
            e('s_memrealtime s[92:93]')
        L += self.stamp()
        e('v_lshrrev_b32 v2, 6, v0')
        e('v_and_b32 v1, 63, v0')
        e('v_readfirstlane_b32 %s, v2' % sr(S_W))
        e('v_lshrrev_b32 v5, 4, v1')
        e('v_and_b32 v6, 15, v1')
        e('s_and_b32 s30, s2, 7')
        e('s_lshr_b32 s31, s2, 3')
        e('s_lshl_b32 s30, s30, 4')
        e('s_lshr_b32 s3, s31, 1')
        e('s_add_u32 s30, s30, s3')
        e('s_and_b32 s31, s31, 1')
        e('s_lshl_b32 s3, s30, 1')
        e('s_add_u32 s31, s31, s3')
        e('s_lshl_b32 s30, s30, 18')
        e('s_lshl_b32 s31, s31, 16')
        e('s_lshl_b32 %s, %s, 12' % (sr(S_M0K), sr(S_W)))
        e('s_add_u32 %s, %s, %d' % (sr(S_M0V), sr(S_M0K), V_BASE))
        e('s_mul_i32 %s, %s, 12288' % (sr(S_QOFF), sr(S_W)))
        e('s_lshl_b32 %s, %s, 14' % (sr(S_QLDS), sr(S_W)))
        e('s_add_u32 %s, %s, %d' % (sr(S_QLDS), sr(S_QLDS), SPARE))
        e('s_cmp_eq_u32 %s, 2' % sr(S_W))
        e('s_cselect_b32 %s, %d, %s' % (sr(S_QLDS), 3 * 16384, sr(S_QLDS)))
        e('s_cmp_eq_u32 %s, 3' % sr(S_W))
        e('s_cselect_b32 %s, %d, %s' % (sr(S_QLDS), V_BASE + 3 * 16384, sr(S_QLDS)))
        e('v_lshlrev_b32 v7, 8, v5')
        e('v_add_u32 v7, %s, v7' % sr(S_M0K))
        e('v_xor_b32 v3, v6, v5')
        e('v_lshl_add_u32 %s, v3, 4, v7' % vr(VDK))
        for i in range(1, 4):
            e('v_xor_b32 %s, %d, %s' % (vr(VDK + i), i << 6, vr(VDK)))
        e('s_mov_b32 %s, 0' % sr(S_OFFK))
        e('s_mov_b32 %s, 0' % sr(S_OFFV))
        e('s_mov_b32 s10, 0x40000')
        e('s_mov_b32 s11, 0x20000')
        e('s_mov_b32 s6, 0x10000')
        e('s_mov_b32 s7, 0x20000')
        e('s_mov_b32 m0, %s' % sr(S_M0K))
        e('s_waitcnt lgkmcnt(0)')
        e('s_add_u32 s8, s38, s30')
        e('s_addc_u32 s9, s39, 0')
        e('s_add_u32 s4, s36, s31')
        e('s_addc_u32 s5, s37, 0')
        for i in range(4):
            issue('K0', self.dma_k(i))
        for j in range(4):
            e('s_add_u32 m0, %s, %d' % (sr(S_QLDS), 4096 * j))
            if j:
                e('s_add_u32 %s, %s, 4096' % (sr(S_QOFF), sr(S_QOFF)))
            else:
                e('s_add_u32 %s, %s, 16384' % (sr(S_OFFK), sr(S_OFFK)))
            for i in range(4):
                issue('Q%d' % j, self.dma_q(i))
        if o.prost:
            L += self.stamp()
        e('s_add_u32 s12, s96, s30')
        e('s_addc_u32 s13, s97, 0')
        e('s_mov_b32 s14, 0x40000')
        e('s_mov_b32 s15, 0x20000')
        e('s_add_u32 s16, s98, s31')
        e('s_addc_u32 s17, s99, 0')
        e('s_mov_b32 s18, 0x10000')
        e('s_mov_b32 s19, 0x20000')
        e('v_lshlrev_b32 v3, 1, v5')
        e('v_xor_b32 v3, v6, v3')
        e('v_lshl_add_u32 %s, v3, 4, v7' % vr(VDV))
        e('v_xor_b32 %s, 0x80, %s' % (vr(VDV + 1), vr(VDV)))

        def dma_tile(kind, t):
            if kind == 'V':
                e('s_add_u32 m0, %s, %d' % (sr(S_M0V), t * 16384))
                e('s_nop 0')
                for i in range(4):
                    issue('V%d' % t, self.dma_v(i))
                e('s_add_u32 %s, %s, 16384' % (sr(S_OFFV), sr(S_OFFV)))
            else:
                e('s_add_u32 m0, %s, %d' % (sr(S_M0K), t * 16384))
                e('s_nop 0')
                for i in range(4):
                    issue('K%d' % t, self.dma_k(i))
                e('s_add_u32 %s, %s, 16384' % (sr(S_OFFK), sr(S_OFFK)))

        early = list(o.early)
        later = [x for x in ['V0', 'K1', 'V1', 'K2', 'V2', 'K3'] if x not in early]
        for x in early:
            dma_tile(x[0], int(x[1]))
        e('v_xor_b32 v3, v5, v6')
        e('v_lshlrev_b32 v4, 8, v6')
        e('v_lshl_add_u32 %s, v3, 4, v4' % vr(VKA))
        for s in range(1, 4):
            e('v_xor_b32 %s, %d, %s' % (vr(VKA + s), s << 6, vr(VKA)))
        for s in range(4):
            e('v_add_u32 %s, %s, %s' % (vr(VT + s), sr(S_QLDS), vr(VKA + s)))
        e('v_lshrrev_b32 v3, 2, v1')
        e('v_lshlrev_b32 v2, 8, v3')
        e('v_and_b32 v3, 7, v3')
        e('v_lshl_add_u32 v2, v3, 5, v2')
        e('v_and_b32 v3, 3, v1')
        e('v_lshl_add_u32 v2, v3, 3, v2')
        e('v_add_u32 %s, %d, v2' % (vr(VVA), V_BASE))
        for db in range(1, 8):
            e('v_xor_b32 %s, %d, %s' % (vr(VVA + db), db << 5, vr(VVA)))
        e('v_and_b32 v3, 1, v5')
        e('v_lshlrev_b32 v3, 1, v3')
        e('v_lshrrev_b32 v2, 1, v5')
        e('v_or_b32 v3, v3, v2')
        e('v_and_b32 v2, 7, v6')
        e('v_xor_b32 v3, v3, v2')
        e('v_lshl_add_u32 v3, v3, 4, v4')
        e('v_add_u32 %s, %s, v3' % (vr(VOW), sr(S_M0K)))
        for j in range(1, 4):
            e('v_xor_b32 %s, %d, %s' % (vr(VOW + j), j << 6, vr(VOW)))
        e('v_mov_b32 %s, %s' % (vr(VOR), vr(VDK)))
        e('v_mov_b32 %s, %s' % (vr(VOR + 1), vr(VDK + 1)))
        e('s_lshl_b32 s3, %s, 14' % sr(S_W))
        e('v_lshlrev_b32 v3, 4, v1')
        e('v_add_u32 %s, s3, v3' % vr(VOG))
        c = math.log2(math.e) / math.sqrt(128.0)
        e('s_mov_b32 %s, 0x%08x' % (sr(S_C), f2u(c)))
        e('s_mov_b32 %s, 0x%08x' % (sr(S_C + 1), f2u(c)))
        e('s_mov_b32 %s, 0x%08x' % (sr(S_THR), f2u(2.0 ** o.thr)))
        e('s_mov_b32 %s, 0xffff0000' % sr(S_TMP))
        e('v_and_b32 v3, 3, v1')
        e('v_cmp_eq_u32 vcc, 0, v3')
        e('v_mov_b32 v2, 0x3f803f80')
        e('s_nop 0')
        e('v_cndmask_b32 v3, 0, v2, vcc')
        for j in range(4):
            e('v_accvgpr_write_b32 %s, v3' % ar(A_1 + j))
        for i in range(16):
            e('v_accvgpr_write_b32 %s, 0' % ar(A_L + i))
        for i in range(128):
            e('v_mov_b32 %s, 0' % vr(V_O + i))
        RAW = V_S + 32
        TM = V_S + 48
        for qb in range(4):
            wait('Q%d' % qb)
            if qb == 0:
                L += self.stamp()
            for st in range(4):
                e('ds_read_b128 %s, %s offset:%d' % (vr(RAW + 4 * st, 4), vr(VT + st), 4096 * qb))
            nxt = [x for x in later if x not in ('K3', 'V3')]
            if nxt and qb < o.nmid:
                x = nxt[0]
                later.remove(x)
                dma_tile(x[0], int(x[1]))
            for st in range(4):
                e('s_waitcnt lgkmcnt(%d)' % (3 - st))
                b = RAW + 4 * st
                t0 = TM + 8 * (st & 1)
                for j in range(4):
                    e('v_lshlrev_b32 %s, 16, %s' % (vr(t0 + 2 * j), vr(b + j)))
                    e('v_and_b32 %s, %s, %s' % (vr(t0 + 2 * j + 1), sr(S_TMP), vr(b + j)))
                for j in range(4):
                    e('v_pk_mul_f32 %s, %s, %s' % (vr(t0 + 2 * j, 2), vr(t0 + 2 * j, 2), sr(S_C, 2)))
                for j in range(4):
                    e('v_cvt_pk_bf16_f32 %s, %s, %s' % (vr(t0 + 2 * j), vr(t0 + 2 * j), vr(t0 + 2 * j + 1)))
                for j in range(4):
                    e('v_accvgpr_write_b32 %s, %s' % (ar(A_Q + 16 * qb + 4 * st + j), vr(t0 + 2 * j)))
        L += self.stamp()
        e('s_barrier')
        for kb in range(2):
            for st in range(4):
                e(self.k_read(0, kb, st))
        for x in list(later):
            dma_tile(x[0], int(x[1]))
        assert vm[-24:] == ['V0'] * 4 + ['K1'] * 4 + ['V1'] * 4 + ['K2'] * 4 + ['V2'] * 4 + ['K3'] * 4, vm
        e('s_waitcnt lgkmcnt(0)')
        order = [(kb, st, qb) for kb in range(2) for st in range(4) for qb in range(4)]
        for n, a in enumerate(order):
            e(self.qk_mfma(0, *a, czero=True))
            if n & 3 == 3:
                e(self.k_read(1, a[0], a[1]))
        e('s_nop 3')
        T = VT + 4
        for qb in range(4):
            s = S(0, qb, 0)
            e('v_max3_f32 %s, %s, %s, %s' % (vr(T + qb), vr(s), vr(s + 1), vr(s + 2)))
        for k in range(2):
            for qb in range(4):
                s = S(0, qb, 0)
                e('v_max3_f32 %s, %s, %s, %s' % (vr(T + qb), vr(T + qb), vr(s + 3 + 2 * k), vr(s + 4 + 2 * k)))
        for qb in range(4):
            e('v_max_f32 %s, %s, %s' % (vr(T + qb), vr(T + qb), vr(S(0, qb, 0) + 7)))
        L += self.xlane('v_max_f32', [T + q for q in range(4)], [T + 4 + q for q in range(4)])
        for r in range(4):
            for qb in range(4):
                e('v_sub_f32 %s, 0, %s' % (vr(V_C + 4 * qb + r), vr(T + qb)))
        for kb in range(2):
            for qb in range(4):
                for r in range(4):
                    e('v_sub_f32 %s, %s, %s' % (vr(S(0, qb, kb) + r), vr(S(0, qb, kb) + r), vr(T + qb)))
        seq = self.sm_seq(0)[:32 - o.k0]
        pend = None
        for ex, cv in seq:
            e(ex)
            if pend:
                e(pend)
            pend = cv
        e('s_waitcnt lgkmcnt(0)')
        if pend:
            e(pend)
        e('s_mov_b32 %s, 0' % sr(S_CNT))
        L += self.stamp()
        return L

    def tail(self):
        o = self.o
        u = 31
        L = []
        e = L.append
        seq = self.sm_seq(u)[32 - o.k0:]
        vreads = [self.v_read(u, db, t) for db in range(8) for t in range(2)]
        for _ in range(4):
            e(vreads.pop(0))
        pend = None
        for ex, cv in seq:
            e(ex)
            if pend:
                e(pend)
            pend = cv
        L += vreads
        if pend:
            e(pend)
        e('s_nop 0')
        for qb in range(4):
            e(self.sum_mfma(u, qb))
        e('s_waitcnt lgkmcnt(0)')
        for qb in range(4):
            for db in range(8):
                e(self.pv_mfma(u, db, qb))
        return L

    def check_sums(self):
        L = []
        e = L.append
        T = VT
        for qb in range(4):
            e('v_accvgpr_read_b32 %s, %s' % (vr(T + qb), ar(A_L + 4 * qb)))
        e('v_add_f32 %s, %s, %s' % (vr(T + 5), vr(T), vr(T + 1)))
        e('v_add_f32 %s, %s, %s' % (vr(T + 5), vr(T + 5), vr(T + 2)))
        e('v_add_f32 %s, %s, %s' % (vr(T + 5), vr(T + 5), vr(T + 3)))
        e('v_cmp_ngt_f32 vcc, %s, %s' % (sr(S_THR), vr(T + 5)))
        e('s_nop 3')
        e('s_cbranch_vccnz L_slow' if not self.o.exp else 's_nop 0')
        return L

    def store_out(self):
        L = []
        e = L.append
        T = VT
        for qb in range(4):
            e('v_rcp_f32 %s, %s' % (vr(T + 4 + 2 * qb), vr(T + qb)))
        e('s_waitcnt vmcnt(0)')
        RB = V_S
        for qb in range(4):
            for j in range(4):
                a, b = O(qb, 2 * j), O(qb, 2 * j + 1)
                for k in range(4):
                    e('v_pk_mul_f32 %s, %s, %s op_sel_hi:[1,0]' % (vr(a + 2 * k, 2), vr(a + 2 * k, 2), vr(T + 4 + 2 * qb, 2)))
                e('v_cvt_pk_bf16_f32 %s, %s, %s' % (vr(a), vr(a), vr(a + 1)))
                e('v_cvt_pk_bf16_f32 %s, %s, %s' % (vr(a + 1), vr(a + 2), vr(a + 3)))
                e('v_cvt_pk_bf16_f32 %s, %s, %s' % (vr(a + 2), vr(b), vr(b + 1)))
                e('v_cvt_pk_bf16_f32 %s, %s, %s' % (vr(a + 3), vr(b + 2), vr(b + 3)))
            for j in range(4):
                a = O(qb, 2 * j)
                if j == 3:
                    pass
                e('v_permlane16_swap_b32 %s, %s' % (vr(a), vr(a + 2)))
                e('v_permlane16_swap_b32 %s, %s' % (vr(a + 1), vr(a + 3)))
            for j in range(4):
                e('ds_write_b128 %s, %s offset:%d' % (vr(VOW + j), vr(O(qb, 2 * j), 4), 16384 * qb))
            if qb:
                e('s_waitcnt lgkmcnt(4)')
                L += self.o_stores(qb - 1)
            e('s_waitcnt lgkmcnt(0)')
            for i in range(4):
                e('ds_read_b128 %s, %s offset:%d' % (vr(RB + 16 * (qb & 1) + 4 * i, 4), vr(VOR + (i & 1)), 16384 * qb + 1024 * i))
        e('s_waitcnt lgkmcnt(0)')
        L += self.o_stores(3)
        return L

    def o_stores(self, qb):
        L = []
        if qb:
            L.append('s_movk_i32 s3, %d' % (4096 * qb))
        for i in range(4):
            L.append('buffer_store_dwordx4 %s, %s, %s, %s offen offset:%d %s' % (vr(V_S + 16 * (qb & 1) + 4 * i, 4), vr(VOG), sr(S_OD, 4), 's3' if qb else '0', 1024 * i, self.o.oflag))
        return L

    def slow_path(self):
        L = []
        e = L.append
        T = VT
        M = V_C
        SK = V_S + 32
        SV = SK + 1
        SVA = SK + 4
        e('L_slow:')
        e('s_waitcnt vmcnt(0)')
        e('v_mbcnt_lo_u32_b32 v1, -1, 0')
        e('v_mbcnt_hi_u32_b32 v1, -1, v1')
        e('v_and_b32 v2, 15, v1')
        e('v_lshrrev_b32 v3, 4, v1')
        e('v_lshlrev_b32 v2, 8, v2')
        e('v_lshl_add_u32 %s, v3, 4, v2' % vr(SK))
        e('v_subrev_u32 %s, %s, %s' % (vr(SV), sr(S_M0K), vr(VDV)))
        e('v_subrev_u32 %s, %s, %s' % (vr(SV + 1), sr(S_M0K), vr(VDV + 1)))
        e('s_lshl_b32 s3, %s, 13' % sr(S_W))
        e('s_add_u32 s34, s3, %d' % SPARE)
        e('s_add_u32 s3, s3, %d' % (SPARE - V_BASE))
        for db in range(8):
            e('v_add_u32 %s, s3, %s' % (vr(SVA + db), vr(VVA + db)))
        for i in range(128):
            e('v_mov_b32 %s, 0' % vr(V_O + i))
        for qb in range(4):
            e('v_mov_b32 %s, 0xff7fffff' % vr(M + qb))
            e('v_mov_b32 %s, 0' % vr(M + 4 + qb))
        e('s_mov_b32 %s, 0' % sr(S_CNT))
        e('L_slow_loop:')
        e('s_mov_b32 m0, s34')
        e('s_add_u32 s31, %s, 4096' % sr(S_CNT))
        for i in range(4):
            e('buffer_load_dwordx4 %s, %s, %s offen offset:%d lds' % (vr(SV + (i & 1)), sr(S_V, 4), sr(S_CNT), 1024 * i))
        e('s_add_u32 m0, s34, 4096')
        e('s_nop 0')
        for i in range(4):
            e('buffer_load_dwordx4 %s, %s, s31 offen offset:%d lds' % (vr(SV + (i & 1)), sr(S_V, 4), 1024 * i))
        for kb in range(2):
            for st in range(4):
                e('buffer_load_dwordx4 %s, %s, %s, %s offen offset:%d' % (ar(A_K + 16 * kb + 4 * st, 4), vr(SK), sr(S_K, 4), 's31' if kb else sr(S_CNT), 64 * st))
        e('s_waitcnt vmcnt(0)')
        for kb in range(2):
            for st in range(4):
                for qb in range(4):
                    e(self.qk_mfma(0, kb, st, qb, czero=True))
        for db in range(8):
            for t in range(2):
                e(self.v_read(0, db, t, addr=SVA, base=0))
        for qb in range(4):
            s = S(0, qb, 0)
            e('v_max3_f32 %s, %s, %s, %s' % (vr(T + qb), vr(M + qb), vr(s), vr(s + 1)))
            for k in range(1, 4):
                e('v_max3_f32 %s, %s, %s, %s' % (vr(T + qb), vr(T + qb), vr(s + 2 * k), vr(s + 2 * k + 1)))
        L += self.xlane('v_max_f32', [T + q for q in range(4)], [T + 4 + q for q in range(4)])
        for qb in range(4):
            e('v_sub_f32 %s, %s, %s' % (vr(M + 8 + qb), vr(M + qb), vr(T + qb)))
        for qb in range(4):
            e('v_exp_f32 %s, %s' % (vr(M + 8 + qb), vr(M + 8 + qb)))
        for qb in range(4):
            e('v_mov_b32 %s, %s' % (vr(M + qb), vr(T + qb)))
        for qb in range(4):
            s = S(0, qb, 0)
            for r in range(8):
                e('v_sub_f32 %s, %s, %s' % (vr(s + r), vr(s + r), vr(T + qb)))
            for r in range(8):
                e('v_exp_f32 %s, %s' % (vr(s + r), vr(s + r)))
            e('v_mul_f32 %s, %s, %s' % (vr(M + 4 + qb), vr(M + 4 + qb), vr(M + 8 + qb)))
            for r in range(8):
                e('v_add_f32 %s, %s, %s' % (vr(M + 4 + qb), vr(M + 4 + qb), vr(s + r)))
            for j in range(4):
                e('v_cvt_pk_bf16_f32 %s, %s, %s' % (vr(s + j), vr(s + 2 * j), vr(s + 2 * j + 1)))
            for i in range(32):
                e('v_mul_f32 %s, %s, %s' % (vr(O(qb, 0) + i), vr(O(qb, 0) + i), vr(M + 8 + qb)))
        e('s_waitcnt lgkmcnt(0)')
        e('s_nop 1')
        for db in range(8):
            for qb in range(4):
                e(self.pv_mfma(0, db, qb))
        e('s_nop 7')
        e('s_add_u32 %s, %s, 8192' % (sr(S_CNT), sr(S_CNT)))
        e('s_cmp_lt_u32 %s, 0x40000' % sr(S_CNT))
        e('s_cbranch_scc1 L_slow_loop')
        for qb in range(4):
            e('v_mov_b32 %s, %s' % (vr(T + qb), vr(M + 4 + qb)))
        L += self.xlane('v_add_f32', [T + q for q in range(4)], [T + 4 + q for q in range(4)])
        e('s_branch L_store')
        return L

    def stamps_out(self):
        if not self.o.stamps:
            return []
        L = []
        e = L.append
        if self.o.prost:
            L += self.stamp()
        e('s_waitcnt vmcnt(0) lgkmcnt(0)')
        e('s_memrealtime s[94:95]')
        L += self.stamp()
        e('s_waitcnt lgkmcnt(0)')
        e('s_mov_b32 s84, s90')
        e('s_mov_b32 s85, s91')
        e('s_mov_b32 s86, 0x100000')
        e('s_mov_b32 s87, 0x20000')
        e('s_getreg_b32 s88, hwreg(HW_REG_XCC_ID)')
        e('s_getreg_b32 s89, hwreg(HW_REG_HW_ID)')
        e('s_lshl_b32 s3, s2, 2')
        e('s_add_u32 s3, s3, %s' % sr(S_W))
        e('s_lshl_b32 s3, s3, 8')
        e('v_mov_b32 v1, s3')
        vals = [92, 93, 94, 95, 88, 89] + [S_TS + 4 * k for k in range(10)] + [S_TS + 4 * k + 2 for k in range(10)]
        e('s_mov_b64 exec, 1')
        for k, s in enumerate(vals):
            e('v_mov_b32 v2, s%d' % s)
            e('buffer_store_dword v2, v1, s[84:87], 0 offen offset:%d' % (4 * k))
        if self.o.probe:
            kind, a, b, wg = self.o.probe.split(',')
            a, b = int(a), int(b)
            e('s_cmp_eq_u32 s2, %s' % wg)
            e('s_cbranch_scc0 L_done')
            e('s_cmp_eq_u32 %s, 0' % sr(S_W))
            e('s_cbranch_scc0 L_done')
            if kind == 'rt':
                e('s_sub_u32 s30, s%d, s%d' % (S_TS + 4 * b + 2, S_TS + 4 * a + 2))
                e('s_mul_i32 s30, s30, 10')
            else:
                e('s_sub_u32 s30, s%d, s%d' % (S_TS + 4 * b, S_TS + 4 * a))
                e('s_lshr_b32 s30, s30, 2')
            e('s_add_u32 s30, s30, 10000')
            if self.o.pre:
                e('s_load_dword s92, s[90:91], 0x80000')
                e('s_waitcnt lgkmcnt(0)')
            e('L_spin:')
            e('s_sleep 1')
            e('s_memrealtime s[34:35]')
            e('s_waitcnt lgkmcnt(0)')
            e('s_sub_u32 s34, s34, s92')
            e('s_cmp_lt_u32 s34, s30')
            e('s_cbranch_scc1 L_spin')
        return L

    def build(self):
        o = self.o
        U = 8
        pro = self.prologue()
        body = [self.period(u) for u in range(U)]

        def put_shadow(p, slot, lines):
            n = -1
            for i, l in enumerate(p):
                if l.startswith(MF):
                    n += 1
                    if n == slot:
                        return p[:i + 1] + lines + p[i + 1:]
            raise ValueError
        nm = sum(l.startswith(MF) for l in body[0])
        if nm:
            body[6] = put_shadow(body[6], nm - 2, ['s_cmp_eq_u32 %s, 3' % sr(S_CNT)]) + ['s_cbranch_scc1 L_tail']
            tl = body[6][body[6].index('s_cmp_eq_u32 %s, 3' % sr(S_CNT)) + 1:]
            assert not any(l.startswith('s_add') for l in tl)
            body[7] = put_shadow(body[7], nm - 2, ['s_add_u32 %s, %s, 1' % (sr(S_CNT), sr(S_CNT))]) + ['s_branch L_loop']
        else:
            body[6] += ['s_cmp_eq_u32 %s, 3' % sr(S_CNT), 's_cbranch_scc1 L_tail']
            body[7] += ['s_add_u32 %s, %s, 1' % (sr(S_CNT), sr(S_CNT)), 's_branch L_loop']
        st_loop = self.stamp()
        tail = self.tail()
        tail += self.stamp()
        fin = self.check_sums()
        store = self.store_out()
        so = self.stamps_out()
        slow = self.slow_path()

        text = list(pro)
        if o.align:
            text.append('.p2align %d' % o.align)
        text.append('L_loop:')
        for b in body:
            text += b
        text.append('L_tail:')
        text += st_loop + tail + fin
        text.append('L_store:')
        text += store + so
        text.append('L_done:')
        text.append('s_endpgm')
        text += slow

        trace = list(pro)
        for it in range(4):
            for k, b in enumerate(body):
                if it == 3 and k == len(body) - 1:
                    break
                trace += b
        trace += st_loop + tail + fin
        probs = check_trace(trace + store + so)
        i0 = slow.index('L_slow_loop:')
        i1 = slow.index('s_cbranch_scc1 L_slow_loop')
        probs += check_trace(trace + slow[:i1 + 1] + slow[i0:] + store)
        return text, probs, body

    def emit(self):
        text, probs, body = self.build()
        hdr = open(self.o.ref).read().split('\n')
        out = []
        for l in hdr:
            if l.startswith('; @launch'):
                if self.o.pre:
                    out.append('; @launch kernel=pre_kernel grid=(%d,1,1) block=(64,1,1) lds=0' % self.o.pre)
                    out.append('; @launch kernel=%s_kernel grid=(256,1,1) block=(256,1,1) lds=163840' % NAME)
                else:
                    out.append('; @launch grid=(256,1,1) block=(256,1,1) lds=163840')
            elif l.startswith(';'):
                out.append(l)
            else:
                break
        out += ['.amdgcn_target "amdgcn-amd-amdhsa--gfx950"', '.text', '.globl %s_kernel' % NAME, '.p2align 8',
                '.type %s_kernel,@function' % NAME, '%s_kernel:' % NAME]
        for l in text:
            out.append(l if (l.endswith(':') or l.startswith('.')) else '    ' + l)
        if self.o.pre:
            out += ['.globl pre_kernel', '.p2align 8', '.type pre_kernel,@function', 'pre_kernel:',
                    's_memrealtime s[4:5]', 's_load_dwordx2 s[8:9], s[0:1], 40', 's_cmp_eq_u32 s2, 0', 's_cbranch_scc0 L_pre_done', 's_waitcnt lgkmcnt(0)',
                    's_mov_b32 s10, 0x100000', 's_mov_b32 s11, 0x20000', 'v_mov_b32 v1, 0x80000', 'v_mov_b32 v2, s4', 's_mov_b64 exec, 1',
                    'buffer_store_dword v2, v1, s[8:11], 0 offen', 'L_pre_done:', 's_endpgm',
                    '.section .rodata,"a"', '.p2align 6', '.amdhsa_kernel pre_kernel', '  .amdhsa_next_free_vgpr 8', '  .amdhsa_next_free_sgpr 16', '  .amdhsa_accum_offset 8',
                    '  .amdhsa_group_segment_fixed_size 0', '  .amdhsa_kernarg_size 48', '  .amdhsa_user_sgpr_count 2', '  .amdhsa_user_sgpr_kernarg_segment_ptr 1',
                    '  .amdhsa_system_sgpr_workgroup_id_x 1', '.end_amdhsa_kernel']
        out += ['.section .rodata,"a"', '.p2align 6', '.amdhsa_kernel %s_kernel' % NAME,
                '  .amdhsa_next_free_vgpr 408', '  .amdhsa_next_free_sgpr 102', '  .amdhsa_accum_offset 256',
                '  .amdhsa_group_segment_fixed_size 0', '  .amdhsa_kernarg_size 48', '  .amdhsa_user_sgpr_count 2',
                '  .amdhsa_user_sgpr_kernarg_segment_ptr 1', '  .amdhsa_system_sgpr_workgroup_id_x 1',
                '  .amdhsa_float_denorm_mode_32 3', '  .amdhsa_float_denorm_mode_16_64 3',
                '.end_amdhsa_kernel', '']
        return '\n'.join(out), probs, body


def ilist(s):
    return [int(x) for x in s.split(',')]


def parse(argv):
    ap = argparse.ArgumentParser()
    ap.add_argument('-o', default='cdna_kernels/%s.s' % NAME)
    ap.add_argument('--ref', default='cdna_kernels/%s.s.ref' % NAME)
    ap.add_argument('--k0', type=int, default=8)
    ap.add_argument('--thr', type=float, default=40)
    ap.add_argument('--stamps', action='store_true')
    ap.add_argument('--prost', action='store_true')
    ap.add_argument('--probe', default='')
    ap.add_argument('--pre', type=int, default=0)
    ap.add_argument('--nodma', action='store_true')
    ap.add_argument('--nobar', action='store_true')
    ap.add_argument('--show', action='store_true')
    ap.add_argument('--exp', default='')
    ap.add_argument('--qkord', type=int, default=0)
    ap.add_argument('--pvord', type=int, default=0)
    ap.add_argument('--align', type=int, default=6)
    ap.add_argument('--maxds', type=int, default=2)
    ap.add_argument('--bargap', type=int, default=1)
    ap.add_argument('--vwait', type=int, default=34)
    ap.add_argument('--kwait', type=int, default=66)
    ap.add_argument('--egaps', type=ilist, default=list(range(0, 64, 2)))
    ap.add_argument('--kgaps', type=ilist, default=[35, 37, 39, 43, 45, 47, 51, 53])
    ap.add_argument('--dgaps', type=ilist, default=[38, 41, 49, 57, 64, 65])
    ap.add_argument('--early', type=lambda s: s.split(',') if s else [], default=[])
    ap.add_argument('--nmid', type=int, default=4)
    ap.add_argument('--kvflag', type=lambda s: s.replace('+', ' ') + ' ' if s else '', default='nt ')
    ap.add_argument('--qflag', type=lambda s: s.replace('+', ' ') + ' ' if s else '', default='nt ')
    ap.add_argument('--oflag', type=lambda s: s.replace('+', ' '), default='nt')
    return ap.parse_args(argv)


if __name__ == '__main__':
    o = parse(sys.argv[1:])
    g = Gen(o)
    s, probs, body = g.emit()
    open(o.o, 'w').write(s)
    if o.show:
        for p in body[:2]:
            cur = []
            for l in p + [MF]:
                if l.startswith(MF):
                    print(' | '.join(cur))
                    cur = []
                cur.append(l.split()[0].replace('v_mfma_f32_16x16x32_bf16', 'M').replace('buffer_load_dwordx4', 'DMA'))
    for p in probs[:40]:
        print('HAZARD', p)
    print('%d hazard findings' % len(probs))
```

```python
import sys, math, struct, argparse, re
from asmlib import I, check_trace

NAME = 'standalone__gqa_softmax__near_ridge'

V_O = 8
V_S = 136
V_C = 200
VKA = 216
VVA = 220
VDK = 228
VDV = 232
VOW = 234
VOR = 238
VOG = 240
VT = 244
VLS = 0
A_Q = 0
A_K = 64
A_V = 96
A_L = 128
A_1 = 144
A_K0 = 160

S_Q, S_K, S_V, S_OD = 4, 8, 12, 16
S_W, S_M0K, S_M0V, S_OFFK, S_OFFV, S_CNT = 20, 21, 22, 23, 24, 25
S_C = 26
S_QOFF = 28
S_THR = 29
S_TMP = 30
S_QLDS = 33
S_TS = 40

V_BASE = 65536
SPARE = 131072
MF = 'v_mfma_f32_16x16x32_bf16'


def f2u(x):
    return struct.unpack('<I', struct.pack('<f', x))[0]


def vr(b, n=1):
    return 'v%d' % b if n == 1 else 'v[%d:%d]' % (b, b + n - 1)


def ar(b, n=1):
    return 'a%d' % b if n == 1 else 'a[%d:%d]' % (b, b + n - 1)


def sr(b, n=1):
    return 's%d' % b if n == 1 else 's[%d:%d]' % (b, b + n - 1)


def S(x, qb, kb):
    return V_S + 32 * (x & 1) + 8 * qb + 4 * kb


def O(qb, db):
    return V_O + 32 * qb + 4 * db


class Gen:
    def __init__(self, opt):
        self.o = opt
        self.nts = 0

    def qk_order(self):
        if self.o.qkord == 0:
            return [(kb, st, qb) for kb in range(2) for st in range(4) for qb in range(4)]
        if self.o.qkord == 1:
            return [(kb, st, qb) for kb in range(2) for qb in range(4) for st in range(4)]
        return [(kb, st, 2 * h + j) for kb in range(2) for h in range(2) for st in range(4) for j in range(2)]

    def pv_order(self):
        if self.o.pvord == 0:
            return [(db, qb) for db in range(8) for qb in range(4)]
        if self.o.pvord == 1:
            return [(db, qb) for qb in range(4) for db in range(8)]
        return [(db, 2 * h + j) for h in range(2) for db in range(8) for j in range(2)]

    def qk_mfma(self, x, kb, st, qb, czero=False, ksrc=A_K):
        d = vr(S(x, qb, kb), 4)
        c = d if st else ('0' if czero else vr(V_C + 4 * qb, 4))
        return '%s %s, %s, %s, %s' % (MF, d, ar(ksrc + 16 * kb + 4 * st, 4), ar(A_Q + 16 * qb + 4 * st, 4), c)

    def pv_mfma(self, x, db, qb, src=A_V):
        o = vr(O(qb, db), 4)
        return '%s %s, %s, %s, %s' % (MF, o, ar(src + 4 * db, 4), vr(S(x, qb, 0), 4), o)

    def sum_mfma(self, x, qb):
        l = ar(A_L + 4 * qb, 4)
        return '%s %s, %s, %s, %s' % (MF, l, ar(A_1, 4), vr(S(x, qb, 0), 4), l)

    def k_read(self, x, kb, st, dst=A_K):
        off = ((x >> 1) & 3) * 16384 + (x & 1) * 8192 + kb * 4096
        return 'ds_read_b128 %s, %s offset:%d' % (ar(dst + 16 * kb + 4 * st, 4), vr(VKA + st), off)

    def v_read(self, x, db, t, addr=VVA, base=None, dst=A_V):
        off = ((x >> 1) & 3) * 16384 + (x & 1) * 8192 if base is None else base
        off += t * 4096
        return 'ds_read_b64_tr_b16 %s, %s offset:%d' % (ar(dst + 4 * db + 2 * t, 2), vr(addr + db), off)

    def sm_seq(self, x):
        seq = []
        for kb in range(2):
            for qb in range(4):
                s = S(x, qb, kb)
                for r in range(4):
                    ex = 'v_exp_f32 %s, %s' % (vr(s + r), vr(s + r))
                    cv = None
                    if r & 1:
                        cv = 'v_cvt_pk_bf16_f32 %s, %s, %s' % (vr(S(x, qb, 0) + 2 * kb + (r >> 1)), vr(s + r - 1), vr(s + r))
                    seq.append((ex, cv))
        return seq

    def dma_k(self, i):
        return 'buffer_load_dwordx4 %s, %s, %s offen offset:%d %slds' % (vr(VDK + i), sr(S_K, 4), sr(S_OFFK), 1024 * i, self.o.kvflag)

    def dma_v(self, i):
        return 'buffer_load_dwordx4 %s, %s, %s offen offset:%d %slds' % (vr(VDV + (i & 1)), sr(S_V, 4), sr(S_OFFV), 1024 * i, self.o.kvflag)

    def dma_q(self, i):
        return 'buffer_load_dwordx4 %s, %s, %s offen offset:%d %slds' % (vr(VDK + i), sr(S_Q, 4), sr(S_QOFF), 1024 * i, self.o.qflag)

    def stamp(self, name=None):
        if not self.o.stamps:
            return []
        if name is not None and name not in self.o.st:
            return []
        k = self.nts
        self.nts += 1
        return ['s_memtime %s' % sr(S_TS + 4 * k, 2), 's_memrealtime %s' % sr(S_TS + 4 * k + 2, 2)]

    def place_waits(self, mf, shadow, valu, age):
        N = len(mf)
        pend = []
        for g in range(N):
            if g + 1 < N:
                need = set(I(mf[g + 1]).uses)
                idx = [i for i, (r, _) in enumerate(pend) if need & set(r)]
                if idx:
                    last = max(idx)
                    while last + 1 < len(pend) and pend[last + 1][1] <= g - age:
                        last += 1
                    shadow[g].insert(0, 's_waitcnt lgkmcnt(%d)' % (len(pend) - 1 - last))
                    pend = pend[last + 1:]
            for l in shadow[g]:
                x = I(l)
                if x.kind == 'dsr':
                    pend.append((x.defs, g))
                    if g + 1 < N:
                        assert not (set(x.defs) & set(I(mf[g + 1]).uses)), (g, l)
        return pend

    def add_of(self, ex, qb):
        r = ex.split()[1].rstrip(',')
        return 'v_add_f32 %s, %s, %s' % (vr(VLS + qb), vr(VLS + qb), r)

    def period(self, u, kind='mid', vmw=8, dma=True):
        o = self.o
        nsum = 4 - o.sumadd
        N = 64 + nsum
        PV0 = 32 + nsum
        mf = [self.qk_mfma(u + 1, *a) for a in self.qk_order()]
        mf += [self.sum_mfma(u, qb) for qb in range(nsum)]
        mf += [self.pv_mfma(u, *a) for a in self.pv_order()]
        egaps = o.egaps
        assert len(egaps) == 32 and max(egaps) < N - 1
        shadow = [[] for _ in range(N)]
        valu = [[] for _ in range(N)]
        for k, (g, (ex, cv)) in enumerate(zip(egaps, self.sm_seq(u + 1))):
            qb = (k >> 2) & 3
            valu[g].append(ex)
            g2 = g + 1
            while g2 in egaps:
                g2 += 1
            if qb >= nsum:
                valu[g2].append(self.add_of(ex, qb))
            if cv:
                valu[g2].append(cv)
        even = (u & 1) == 0
        free = lambda g: (0 if g in egaps else 2 - len(valu[g]) - len([x for x in shadow[g] if not x.startswith('s_add')]))
        bargap = o.bargap
        if even and not o.nobar:
            shadow[bargap] += ['s_waitcnt vmcnt(%d)' % vmw, 's_barrier']
        t = u >> 1
        vwait, kwait = PV0 - 1 - o.vwait, N - 1 - o.kwait
        vreads = [self.v_read(u, db, t_) for db in range(8) for t_ in range(2)]
        g = bargap + 1
        dbl = True
        while vreads:
            n = max(0, free(g))
            if n == 2:
                n = 2 if (dbl or g - 1 in egaps) else 1
                dbl = n != 2
            for _ in range(n):
                if vreads:
                    shadow[g].append(vreads.pop(0))
            g += 1
        lastv = g - 1
        if kind == 'last':
            nxt = [self.v_read(u + 1, db, t_, dst=A_K) for db in range(8) for t_ in range(2)]
        else:
            nxt = [self.k_read(u + 2, kb, st) for kb in range(2) for st in range(4)]
        g = max(lastv + 1, 32 if kind != 'mid' else vwait + 1)
        while nxt:
            n = max(0, min(free(g), 2 if kind == 'last' else o.kper))
            if kind != 'mid' and nsum < 4 and g in egaps:
                n = 1
            for _ in range(n):
                if nxt:
                    shadow[g].append(nxt.pop(0))
            g += 1
        lastk = g - 1
        assert lastk <= kwait - 3, (lastk, kwait)
        if kind == 'mid':
            assert lastv <= vwait - 3, lastv
            shadow[vwait].insert(0, 's_waitcnt lgkmcnt(0)')
        else:
            self.place_waits(mf, shadow, valu, 4)
        shadow[kwait].insert(0, 's_waitcnt lgkmcnt(0)')

        def put_dma(x, g, step):
            tt = int(x[1:])
            m0, off, fn = (S_M0V, S_OFFV, self.dma_v) if x[0] == 'V' else (S_M0K, S_OFFK, self.dma_k)
            shadow[g].append('s_add_u32 m0, %s, %d' % (sr(m0), (tt & 3) * 16384))
            g += 1
            for i in range(4):
                while free(g) < 1:
                    g += 1
                shadow[g].append(fn(i))
                g += step
            g -= step - 1
            shadow[g].append('s_add_u32 %s, %s, 16384' % (sr(off), sr(off)))
            return g + 1
        g = o.dgap
        if dma and not o.nodma:
            g = put_dma('K%d' % (t + 3) if even else 'V%d' % (t + 2), g, o.dstride)
            assert g < N - 2, g
        out = []
        for g in range(N):
            out.append(mf[g])
            out += shadow[g] + valu[g]
        if o.exp:
            out = self.experiment(out)
        return out

    def experiment(self, lines):
        ex = self.o.exp.split(',')
        res = []
        for l in lines:
            if 'noexp' in ex and l.startswith('v_exp_f32'):
                continue
            if 'nocvt' in ex and l.startswith('v_cvt_pk'):
                continue
            if 'nolds' in ex and l.startswith('ds_read'):
                continue
            if 'nosum' in ex and l.startswith(MF + ' a['):
                continue
            if 'nomfma' in ex and l.startswith(MF):
                continue
            res.append(l)
        return res

    def xlane(self, op, regs, tmps):
        L = []
        for sw in ('v_permlane32_swap_b32', 'v_permlane16_swap_b32'):
            for r, t in zip(regs, tmps):
                L.append('v_mov_b32 %s, %s' % (vr(t), vr(r)))
            if len(regs) < 3:
                L.append('s_nop 1')
            for r, t in zip(regs, tmps):
                L.append('%s %s, %s' % (sw, vr(r), vr(t)))
            for r, t in zip(regs, tmps):
                L.append('%s %s, %s, %s' % (op, vr(r), vr(r), vr(t)))
        return L

    def common(self):
        o = self.o
        L = []
        e = L.append
        e('s_cmp_ge_u32 s2, 256')
        e('s_cbranch_scc1 L_done')
        e('s_load_dwordx4 s[36:39], s[0:1], 0')
        e('s_load_dwordx4 s[96:99], s[0:1], 16')
        if o.stamps:
            e('s_load_dwordx2 s[90:91], s[0:1], 40')
            e('s_memrealtime s[92:93]')
        L += self.stamp()
        e('v_lshrrev_b32 v2, 6, v0')
        e('v_and_b32 v1, 63, v0')
        e('v_readfirstlane_b32 %s, v2' % sr(S_W))
        e('v_lshrrev_b32 v5, 4, v1')
        e('v_and_b32 v6, 15, v1')
        e('s_and_b32 s30, s2, 7')
        e('s_lshr_b32 s31, s2, 3')
        e('s_lshl_b32 s30, s30, 4')
        e('s_lshr_b32 s3, s31, 1')
        e('s_add_u32 s30, s30, s3')
        e('s_and_b32 s31, s31, 1')
        e('s_lshl_b32 s3, s30, 1')
        e('s_add_u32 s31, s31, s3')
        e('s_lshl_b32 s30, s30, 18')
        e('s_lshl_b32 s31, s31, 16')
        e('s_lshl_b32 %s, %s, 12' % (sr(S_M0K), sr(S_W)))
        e('s_add_u32 %s, %s, %d' % (sr(S_M0V), sr(S_M0K), V_BASE))
        e('s_mul_i32 %s, %s, 12288' % (sr(S_QOFF), sr(S_W)))
        e('s_lshl_b32 %s, %s, 14' % (sr(S_QLDS), sr(S_W)))
        e('s_add_u32 %s, %s, %d' % (sr(S_QLDS), sr(S_QLDS), SPARE))
        e('s_cmp_eq_u32 %s, 2' % sr(S_W))
        e('s_cselect_b32 %s, %d, %s' % (sr(S_QLDS), 3 * 16384, sr(S_QLDS)))
        e('s_cmp_eq_u32 %s, 3' % sr(S_W))
        e('s_cselect_b32 %s, %d, %s' % (sr(S_QLDS), V_BASE + 3 * 16384, sr(S_QLDS)))
        e('v_lshlrev_b32 v7, 8, v5')
        e('v_add_u32 v7, %s, v7' % sr(S_M0K))
        e('v_xor_b32 v3, v6, v5')
        e('v_lshl_add_u32 %s, v3, 4, v7' % vr(VDK))
        for i in range(1, 4):
            e('v_xor_b32 %s, %d, %s' % (vr(VDK + i), i << 6, vr(VDK)))
        if o.cpf:
            e('s_getpc_b64 s[34:35]')
            e('L_pc:')
            e('s_lshr_b32 s3, s2, 3')
            e('s_lshl_b32 s3, s3, 2')
            e('s_add_u32 s3, s3, %s' % sr(S_W))
            e('s_and_b32 s3, s3, 31')
            e('s_min_u32 s3, s3, (L_slow - L_pc) / 1024 - 1')
            e('s_lshl_b32 s3, s3, 10')
            e('s_add_u32 s3, s3, 1024')
            e('s_add_u32 s34, s34, s3')
            e('s_addc_u32 s35, s35, 0')
            e('v_lshlrev_b32 v3, 4, v1')
            e('global_load_dwordx4 %s, v3, s[34:35]' % vr(VT + 8, 4))
        e('s_mov_b32 %s, 0' % sr(S_OFFK))
        e('s_mov_b32 %s, 0' % sr(S_OFFV))
        e('s_mov_b32 s10, 0x40000')
        e('s_mov_b32 s11, 0x20000')
        e('s_mov_b32 s6, 0x10000')
        e('s_mov_b32 s7, 0x20000')
        e('s_mov_b32 s14, 0x40000')
        e('s_mov_b32 s15, 0x20000')
        e('v_lshlrev_b32 v3, 1, v5')
        e('v_xor_b32 v3, v6, v3')
        e('v_lshl_add_u32 %s, v3, 4, v7' % vr(VDV))
        e('v_xor_b32 %s, 0x80, %s' % (vr(VDV + 1), vr(VDV)))
        e('s_mov_b32 m0, %s' % sr(S_M0K))
        e('s_waitcnt lgkmcnt(0)')
        e('s_add_u32 s8, s38, s30')
        e('s_addc_u32 s9, s39, 0')
        for i in range(4):
            e(self.dma_k(i))
        e('s_add_u32 s4, s36, s31')
        e('s_addc_u32 s5, s37, 0')
        e('s_add_u32 s12, s96, s30')
        e('s_addc_u32 s13, s97, 0')
        e('s_add_u32 %s, %s, 16384' % (sr(S_OFFK), sr(S_OFFK)))
        if o.roles:
            e('s_bitcmp1_b32 s2, 3')
            e('s_cbranch_scc1 L_role1')
        return L

    def prologue(self, role):
        o = self.o
        mid = o.mid if role == 0 else o.mid1
        L = []
        e = L.append
        vm = ['K0'] * 4

        def issue(tag, txt):
            vm.append(tag)
            e(txt)

        def wait(tag):
            last = max(i for i, t in enumerate(vm) if t == tag)
            e('s_waitcnt vmcnt(%d)' % (len(vm) - 1 - last))

        def dma_qblk(j):
            e('s_add_u32 m0, %s, %d' % (sr(S_QLDS), 4096 * j))
            if j:
                e('s_add_u32 %s, %s, 4096' % (sr(S_QOFF), sr(S_QOFF)))
            else:
                e('s_nop 0')
            for i in range(4):
                issue('Q%d' % j, self.dma_q(i))

        def dma_tile(x):
            kind, t = x[0], int(x[1])
            if kind == 'V':
                e('s_add_u32 m0, %s, %d' % (sr(S_M0V), t * 16384))
                e('s_nop 0')
                for i in range(4):
                    issue(x, self.dma_v(i))
                e('s_add_u32 %s, %s, 16384' % (sr(S_OFFV), sr(S_OFFV)))
            else:
                e('s_add_u32 m0, %s, %d' % (sr(S_M0K), t * 16384))
                e('s_nop 0')
                for i in range(4):
                    issue(x, self.dma_k(i))
                e('s_add_u32 %s, %s, 16384' % (sr(S_OFFK), sr(S_OFFK)))

        if role == 1:
            for x in o.pre1:
                if x[0] == 'w':
                    wait(x[1:])
                else:
                    dma_tile(x)
        dma_qblk(0)
        dma_qblk(1)
        e('s_add_u32 s16, s98, s31')
        e('s_addc_u32 s17, s99, 0')
        e('s_mov_b32 s18, 0x10000')
        e('s_mov_b32 s19, 0x20000')
        e('v_xor_b32 v3, v5, v6')
        e('v_lshlrev_b32 v4, 8, v6')
        e('v_lshl_add_u32 %s, v3, 4, v4' % vr(VKA))
        for st in range(1, 4):
            e('v_xor_b32 %s, %d, %s' % (vr(VKA + st), st << 6, vr(VKA)))
        for st in range(4):
            e('v_add_u32 %s, %s, %s' % (vr(VT + st), sr(S_QLDS), vr(VKA + st)))
        e('v_lshrrev_b32 v3, 2, v1')
        e('v_lshlrev_b32 v2, 8, v3')
        e('v_and_b32 v3, 7, v3')
        e('v_lshl_add_u32 v2, v3, 5, v2')
        e('v_and_b32 v3, 3, v1')
        e('v_lshl_add_u32 v2, v3, 3, v2')
        e('v_add_u32 %s, %d, v2' % (vr(VVA), V_BASE))
        for db in range(1, 8):
            e('v_xor_b32 %s, %d, %s' % (vr(VVA + db), db << 5, vr(VVA)))
        for i in range(32):
            e('v_mov_b32 %s, 0' % vr(V_O + i))
        dma_qblk(2)
        e('v_and_b32 v3, 1, v5')
        e('v_lshlrev_b32 v3, 1, v3')
        e('v_lshrrev_b32 v2, 1, v5')
        e('v_or_b32 v3, v3, v2')
        e('v_and_b32 v2, 7, v6')
        e('v_xor_b32 v3, v3, v2')
        e('v_lshl_add_u32 v3, v3, 4, v4')
        e('v_add_u32 %s, %s, v3' % (vr(VOW), sr(S_M0K)))
        for j in range(1, 4):
            e('v_xor_b32 %s, %d, %s' % (vr(VOW + j), j << 6, vr(VOW)))
        e('s_lshl_b32 s3, %s, 14' % sr(S_W))
        e('v_lshlrev_b32 v3, 4, v1')
        e('v_add_u32 %s, s3, v3' % vr(VOG))
        c = math.log2(math.e) / math.sqrt(128.0)
        e('s_mov_b32 %s, 0x%08x' % (sr(S_C), f2u(c)))
        e('s_mov_b32 %s, 0x%08x' % (sr(S_C + 1), f2u(c)))
        e('s_mov_b32 %s, 0x%08x' % (sr(S_THR), f2u(2.0 ** o.thr)))
        e('s_mov_b32 %s, 0xffff0000' % sr(S_TMP))
        e('v_and_b32 v3, 3, v1')
        e('v_cmp_eq_u32 vcc, 0, v3')
        e('v_mov_b32 v2, 0x3f803f80')
        e('s_mov_b32 %s, 0' % sr(S_CNT))
        e('v_cndmask_b32 v3, 0, v2, vcc')
        for j in range(4):
            e('v_accvgpr_write_b32 %s, v3' % ar(A_1 + j))
        for i in range(16):
            e('v_accvgpr_write_b32 %s, 0' % ar(A_L + i))
        for i in range(32, 64):
            e('v_mov_b32 %s, 0' % vr(V_O + i))
        dma_qblk(3)
        L += self.stamp('issued')
        for x in mid[0]:
            dma_tile(x)
        for i in range(64, 128):
            e('v_mov_b32 %s, 0' % vr(V_O + i))
        for qb in range(4 - o.sumadd, 4):
            e('v_mov_b32 %s, 0' % vr(VLS + qb))
        RAW = V_S + 32
        TM = V_S + 48

        def prescale(qb, st):
            b = RAW + 4 * st
            t0 = TM + 8 * (st & 1)
            P = []
            for j in range(4):
                P.append('v_lshlrev_b32 %s, 16, %s' % (vr(t0 + 2 * j), vr(b + j)))
                P.append('v_and_b32 %s, %s, %s' % (vr(t0 + 2 * j + 1), sr(S_TMP), vr(b + j)))
            for j in range(4):
                P.append('v_pk_mul_f32 %s, %s, %s' % (vr(t0 + 2 * j, 2), vr(t0 + 2 * j, 2), sr(S_C, 2)))
            for j in range(4):
                P.append('v_cvt_pk_bf16_f32 %s, %s, %s' % (vr(t0 + 2 * j), vr(t0 + 2 * j), vr(t0 + 2 * j + 1)))
            for j in range(4):
                P.append('v_accvgpr_write_b32 %s, %s' % (ar(A_Q + 16 * qb + 4 * st + j), vr(t0 + 2 * j)))
            return P

        F = []
        for qb in range(4):
            wait('Q%d' % qb)
            L += self.stamp('q%d' % qb)
            for st in range(4):
                e('ds_read_b128 %s, %s offset:%d' % (vr(RAW + 4 * st, 4), vr(VT + st), 4096 * qb))
            nk = 0
            if qb == 2:
                for kb in range(2):
                    for st in range(4):
                        e(self.k_read(1, kb, st))
                nk = 8
            for x in mid[qb + 1]:
                dma_tile(x)
            if qb:
                if qb == 1:
                    e('s_waitcnt lgkmcnt(4)')
                for m in self.c0_mfmas(qb - 1):
                    e(m)
                    cost = 0
                    while F and cost + I(F[0]).slots() <= 2:
                        cost += I(F[0]).slots()
                        e(F.pop(0))
                L += F
                F = []
            D = self.dmax(qb - 1) if 0 < qb < 3 else []
            for st in range(4):
                e('s_waitcnt lgkmcnt(%d)' % (3 - st + nk))
                P = prescale(qb, st)
                if st == 0 or not D:
                    L += P
                else:
                    for i, p in enumerate(P):
                        e(p)
                        if i % 3 == 2 and D:
                            e(D.pop(0))
            L += D
            if 0 < qb < 3:
                F = self.deferred(qb - 1)
                keep = []
                cost = 0
                while F and cost + I(F[-1]).slots() <= 16:
                    cost += I(F[-1]).slots()
                    keep.insert(0, F.pop())
                L += F
                F = keep
            if qb == 0:
                e('s_barrier')
                for st in range(4):
                    for kb in range(2):
                        e(self.k_read(0, kb, st, dst=A_K0))
        for x in mid[5]:
            dma_tile(x)
        vm += [x for x in mid[6] for _ in range(4)]
        kv = [x for x in vm if x[0] in 'KV']
        assert kv == [x for x in ['K0', 'V0', 'K1', 'V1', 'K2'] for _ in range(4)], vm
        self.vmw0 = len(vm) - 1 - max(i for i, x in enumerate(vm) if x == 'K1')
        L += self.stamp()
        e('s_waitcnt lgkmcnt(0)')
        return L

    def c0_mfmas(self, qb):
        return [self.qk_mfma(0, kb, st, qb, czero=True, ksrc=A_K0) for st in range(4) for kb in range(2)]

    def dmax(self, qb):
        T = VT + 4 + 2 * (qb & 1)
        sq = S(0, qb, 0)
        D = ['v_max3_f32 %s, %s, %s, %s' % (vr(T), vr(sq), vr(sq + 1), vr(sq + 2)),
             'v_max3_f32 %s, %s, %s, %s' % (vr(T + 1), vr(sq + 4), vr(sq + 5), vr(sq + 6)),
             'v_max3_f32 %s, %s, %s, %s' % (vr(T), vr(T), vr(sq + 3), vr(sq + 7)),
             'v_max_f32 %s, %s, %s' % (vr(T), vr(T), vr(T + 1))]
        for sw in ('v_permlane32_swap_b32', 'v_permlane16_swap_b32'):
            D += ['v_mov_b32 %s, %s' % (vr(T + 1), vr(T)), '%s %s, %s' % (sw, vr(T), vr(T + 1)), 'v_max_f32 %s, %s, %s' % (vr(T), vr(T), vr(T + 1))]
        D += ['v_sub_f32 %s, 0, %s' % (vr(V_C + 4 * qb + r), vr(T)) for r in range(4)]
        return D

    def deferred(self, qb):
        sq = S(0, qb, 0)
        out = ['v_add_f32 %s, %s, %s' % (vr(sq + r), vr(sq + r), vr(V_C + 4 * qb)) for r in range(8)]
        seq = [z for kb in range(2) for z in self.sm_seq(0)[16 * kb + 4 * qb:16 * kb + 4 * qb + 4]]
        pend = []
        for ex, cv in seq:
            out.append(ex)
            out += pend
            pend = ([self.add_of(ex, qb)] if qb >= 4 - self.o.sumadd else []) + ([cv] if cv else [])
        return out + ['s_nop 0'] + pend

    def first_period(self, vmw, late):
        o = self.o
        nsum = 4 - o.sumadd
        mf = self.c0_mfmas(3)
        order = [(kb, st, qb) for qb in range(4) for kb in range(2) for st in range(4)]
        mf += [self.qk_mfma(1, *a) for a in order]
        PV0 = 40 + nsum
        mf += [self.sum_mfma(0, qb) for qb in range(nsum)]
        mf += [self.pv_mfma(0, *a) for a in self.pv_order()]
        N = len(mf)
        shadow = [[] for _ in range(N)]
        valu = [[] for _ in range(N)]

        def spaced(D):
            out = []
            for l in D:
                if l.startswith('v_permlane'):
                    out.append('s_nop 1')
                out.append(l)
            return out
        q1 = [(0, l) for l in spaced(self.dmax(2))] + [(0, l) for l in self.deferred(2)[:8]] + [(11, l) for l in spaced(self.dmax(3))]
        q1 += [(0, l) for l in self.deferred(2)[8:]] + [(0, l) for l in self.deferred(3)]
        sm = self.sm_seq(1)
        q2 = []
        pend = []
        for qb in range(4):
            for kb in range(2):
                ready = 8 + 8 * qb + 4 * kb + 3 + 4
                for ex, cv in sm[16 * kb + 4 * qb:16 * kb + 4 * qb + 4]:
                    q2.append((ready, ex))
                    q2 += pend
                    pend = [(ready, l) for l in ([self.add_of(ex, qb)] if qb >= nsum else []) + ([cv] if cv else [])]
        q2 += [(0, 's_nop 0')] + pend
        bar = o.bargap0
        shadow[bar] += ['s_waitcnt vmcnt(%d)' % vmw, 's_barrier']
        g = bar + 1
        for db in range(8):
            for t_ in range(2):
                shadow[g].append(self.v_read(0, db, t_))
                g += 1
        g = max(g, 40)
        for kb in range(2):
            for st in range(4):
                shadow[g].append(self.k_read(2, kb, st))
                g += o.kstep0
        assert g < N - 4, g
        self.place_waits(mf, shadow, valu, 4)
        shadow[N - 2].insert(0, 's_waitcnt lgkmcnt(0)')
        g = 1
        for x in list(late) + ['K3']:
            if x == 'K3':
                g = max(g, bar + 1)
            tt = int(x[1:])
            m0, off, fn = (S_M0V, S_OFFV, self.dma_v) if x[0] == 'V' else (S_M0K, S_OFFK, self.dma_k)
            shadow[g].append('s_add_u32 m0, %s, %d' % (sr(m0), (tt & 3) * 16384))
            g += 1
            for i in range(4):
                shadow[g].append(fn(i))
                g += o.dstep if x != 'K3' else 6
            shadow[g - 1].append('s_add_u32 %s, %s, 16384' % (sr(off), sr(off)))
            if x != 'K3':
                assert g <= bar, g
        for g in range(N):
            left = sum(I(l).slots() for _, l in q1 + q2)
            cap = 3 if (q1 or left > 2 * (N - g)) else 2
            if g == N - 1:
                cap = 1000
            cost = 0
            while True:
                q = q1 if q1 else q2
                if not q or q[0][0] > g:
                    q = q2 if (q is q1 and q2 and q2[0][0] <= g) else None
                if not q or cost + I(q[0][1]).slots() > cap:
                    break
                cost += I(q[0][1]).slots()
                valu[g].append(q.pop(0)[1])
            if g == 38:
                assert not q1, len(q1)
        out = []
        for g in range(N):
            out.append(mf[g])
            out += shadow[g] + valu[g]
        return out

    def norm_group(self, qb, j, packed):
        rc = VT + 4 + 2 * qb
        a, b = O(qb, 2 * j), O(qb, 2 * j + 1)
        V = []
        if packed:
            for k in range(4):
                V.append('v_pk_mul_f32 %s, %s, %s op_sel_hi:[1,0]' % (vr(a + 2 * k, 2), vr(a + 2 * k, 2), vr(rc, 2)))
        else:
            for k in range(8):
                V.append('v_mul_f32 %s, %s, %s' % (vr(a + k), vr(a + k), vr(rc)))
        V.append('v_cvt_pk_bf16_f32 %s, %s, %s' % (vr(a), vr(a), vr(a + 1)))
        V.append('v_cvt_pk_bf16_f32 %s, %s, %s' % (vr(a + 1), vr(a + 2), vr(a + 3)))
        V.append('v_cvt_pk_bf16_f32 %s, %s, %s' % (vr(a + 2), vr(b), vr(b + 1)))
        V.append('v_cvt_pk_bf16_f32 %s, %s, %s' % (vr(a + 3), vr(b + 2), vr(b + 3)))
        X = ['v_permlane16_swap_b32 %s, %s' % (vr(a), vr(a + 2)), 'v_permlane16_swap_b32 %s, %s' % (vr(a + 1), vr(a + 3))]
        W = 'ds_write_b128 %s, %s offset:%d' % (vr(VOW + j), vr(a, 4), 16384 * qb)
        return V, X, W

    def norm_stream(self, groups, packed):
        out, pend = [], []
        for qb, j in groups:
            V, X, W = self.norm_group(qb, j, packed)
            out.append(V[:2] + pend + V[2:])
            pend = X + [W]
        return out, pend

    def o_reads(self, qb):
        return ['ds_read_b128 %s, %s offset:%d' % (vr(V_S + 16 * qb + 4 * i, 4), vr(VDK + (i & 1)), 16384 * qb + 1024 * i) for i in range(4)]

    def o_stores(self, qb):
        L = []
        if qb:
            L.append('s_movk_i32 s3, %d' % (4096 * qb))
        for i in range(4):
            L.append('buffer_store_dwordx4 %s, %s, %s, %s offen offset:%d %s' % (vr(V_S + 16 * qb + 4 * i, 4), vr(VOG), sr(S_OD, 4), 's3' if qb else '0', 1024 * i, self.o.oflag))
        return L

    def tail(self):
        u = 31
        T = VT
        nsum = 4 - self.o.sumadd
        mf = [self.sum_mfma(u, qb) for qb in range(nsum)]
        mf += [self.pv_mfma(u, db, qb, src=A_K) for qb in range(4) for db in range(8)]
        pre = []
        regs = [VLS + qb for qb in range(nsum, 4)]
        if regs:
            pre = self.xlane('v_add_f32', regs, [T + 4 + q for q in range(len(regs))])
            pre += ['v_mov_b32 %s, %s' % (vr(T + qb), vr(VLS + qb)) for qb in range(nsum, 4)]
        seq = []
        for l in pre:
            seq.append(l)
        while len(seq) < 10:
            seq.append('s_nop 0')
        seq += ['v_accvgpr_read_b32 %s, %s' % (vr(T + qb), ar(A_L + 4 * qb)) for qb in range(nsum)]
        seq += ['v_add_f32 %s, %s, %s' % (vr(T + 5), vr(T), vr(T + 1)), 'v_add_f32 %s, %s, %s' % (vr(T + 7), vr(T + 2), vr(T + 3)),
                'v_add_f32 %s, %s, %s' % (vr(T + 5), vr(T + 5), vr(T + 7)), 'v_cmp_ngt_f32 vcc, %s, %s' % (sr(S_THR), vr(T + 5))]
        seq += ['v_rcp_f32 %s, %s' % (vr(T + 4 + 2 * qb), vr(T + qb)) for qb in range(4)]
        seq.append('s_cbranch_vccnz L_slow' if not self.o.exp else 's_nop 0')
        G, pend = self.norm_stream([(0, j) for j in range(4)], False)
        V0 = [l for x in G for l in x]
        W0 = ['s_nop 1'] + pend
        fill = [[] for _ in mf]
        g = 0
        while seq:
            cost = 0
            while seq and cost + I(seq[0]).slots() <= 2:
                cost += I(seq[0]).slots()
                fill[g].append(seq.pop(0))
            g += 1
        g = max(g, nsum + 9)
        while g < len(mf) and V0:
            n = 2
            if V0[0].startswith('ds_write'):
                n = self.o.wplus + 1
            elif len(V0) > 1 and V0[1].startswith('ds_write'):
                n = 1
            fill[g] = V0[:n]
            V0 = V0[n:]
            g += 1
        L = []
        for m, f in zip(mf, fill):
            L.append(m)
            L += f
        L += V0 + W0
        return L

    def store_rest(self, first):
        G, pend = self.norm_stream([(qb, j) for qb in range(1, 4) for j in range(4)], True)
        G.append(['s_nop 1'] + pend)
        ra, sa = self.o.epi
        after = [[] for _ in range(40)]
        for qb in range(4):
            n = 4 * qb + ra - (1 if qb == 0 else 0) * self.o.r0
            after[n].append(('R', qb))
            for i in range(4):
                after[n + sa + i].append(('S', qb, i))
        L = []
        lds = ['W'] * 4
        for n in range(40):
            if n < len(G):
                for l in G[n]:
                    L.append(l)
                    if l.startswith('ds_write'):
                        lds.append('W%s' % l.split('offset:')[1])
            for a in after[n]:
                if a[0] == 'R':
                    qb = a[1]
                    idx = [i for i, x in enumerate(lds) if x == 'W' or x == 'W%d' % (16384 * qb)]
                    assert qb == 0 or len([x for x in lds if x == 'W%d' % (16384 * qb)]) == 4, (qb, lds)
                    L.append('s_waitcnt lgkmcnt(%d)' % (len(lds) - 1 - max(idx)))
                    L += self.o_reads(qb)
                    lds += ['R%d_%d' % (qb, i) for i in range(4)]
                else:
                    _, qb, i = a
                    k = lds.index('R%d_%d' % (qb, i))
                    L.append('s_waitcnt lgkmcnt(%d)' % min(15, len(lds) - 1 - k))
                    st = self.o_stores(qb)
                    if qb:
                        L.append(st[0])
                        st = st[1:]
                    L.append(st[i])
        return L

    def slow_path(self):
        L = []
        e = L.append
        T = VT
        M = V_C
        SK = V_S + 32
        SV = SK + 1
        SVA = SK + 4
        e('L_slow:')
        e('s_nop 7')
        e('v_mbcnt_lo_u32_b32 v1, -1, 0')
        e('v_mbcnt_hi_u32_b32 v1, -1, v1')
        e('v_and_b32 v2, 15, v1')
        e('v_lshrrev_b32 v3, 4, v1')
        e('v_lshlrev_b32 v2, 8, v2')
        e('v_lshl_add_u32 %s, v3, 4, v2' % vr(SK))
        e('v_subrev_u32 %s, %s, %s' % (vr(SV), sr(S_M0K), vr(VDV)))
        e('v_subrev_u32 %s, %s, %s' % (vr(SV + 1), sr(S_M0K), vr(VDV + 1)))
        e('s_lshl_b32 s3, %s, 13' % sr(S_W))
        e('s_add_u32 s34, s3, %d' % SPARE)
        e('s_add_u32 s3, s3, %d' % (SPARE - V_BASE))
        for db in range(8):
            e('v_add_u32 %s, s3, %s' % (vr(SVA + db), vr(VVA + db)))
        for i in range(128):
            e('v_mov_b32 %s, 0' % vr(V_O + i))
        for qb in range(4):
            e('v_mov_b32 %s, 0xff7fffff' % vr(M + qb))
            e('v_mov_b32 %s, 0' % vr(M + 4 + qb))
        e('s_mov_b32 %s, 0' % sr(S_CNT))
        e('L_slow_loop:')
        e('s_mov_b32 m0, s34')
        e('s_add_u32 s31, %s, 4096' % sr(S_CNT))
        for i in range(4):
            e('buffer_load_dwordx4 %s, %s, %s offen offset:%d lds' % (vr(SV + (i & 1)), sr(S_V, 4), sr(S_CNT), 1024 * i))
        e('s_add_u32 m0, s34, 4096')
        e('s_nop 0')
        for i in range(4):
            e('buffer_load_dwordx4 %s, %s, s31 offen offset:%d lds' % (vr(SV + (i & 1)), sr(S_V, 4), 1024 * i))
        for kb in range(2):
            for st in range(4):
                e('buffer_load_dwordx4 %s, %s, %s, %s offen offset:%d' % (ar(A_K + 16 * kb + 4 * st, 4), vr(SK), sr(S_K, 4), 's31' if kb else sr(S_CNT), 64 * st))
        e('s_waitcnt vmcnt(0)')
        for kb in range(2):
            for st in range(4):
                for qb in range(4):
                    e(self.qk_mfma(0, kb, st, qb, czero=True))
        for db in range(8):
            for t in range(2):
                e(self.v_read(0, db, t, addr=SVA, base=0))
        for qb in range(4):
            s = S(0, qb, 0)
            e('v_max3_f32 %s, %s, %s, %s' % (vr(T + qb), vr(M + qb), vr(s), vr(s + 1)))
            for k in range(1, 4):
                e('v_max3_f32 %s, %s, %s, %s' % (vr(T + qb), vr(T + qb), vr(s + 2 * k), vr(s + 2 * k + 1)))
        L += self.xlane('v_max_f32', [T + q for q in range(4)], [T + 4 + q for q in range(4)])
        for qb in range(4):
            e('v_sub_f32 %s, %s, %s' % (vr(M + 8 + qb), vr(M + qb), vr(T + qb)))
        for qb in range(4):
            e('v_exp_f32 %s, %s' % (vr(M + 8 + qb), vr(M + 8 + qb)))
        for qb in range(4):
            e('v_mov_b32 %s, %s' % (vr(M + qb), vr(T + qb)))
        for qb in range(4):
            s = S(0, qb, 0)
            for r in range(8):
                e('v_sub_f32 %s, %s, %s' % (vr(s + r), vr(s + r), vr(T + qb)))
            for r in range(8):
                e('v_exp_f32 %s, %s' % (vr(s + r), vr(s + r)))
            e('v_mul_f32 %s, %s, %s' % (vr(M + 4 + qb), vr(M + 4 + qb), vr(M + 8 + qb)))
            for r in range(8):
                e('v_add_f32 %s, %s, %s' % (vr(M + 4 + qb), vr(M + 4 + qb), vr(s + r)))
            for j in range(4):
                e('v_cvt_pk_bf16_f32 %s, %s, %s' % (vr(s + j), vr(s + 2 * j), vr(s + 2 * j + 1)))
            for i in range(32):
                e('v_mul_f32 %s, %s, %s' % (vr(O(qb, 0) + i), vr(O(qb, 0) + i), vr(M + 8 + qb)))
        e('s_waitcnt lgkmcnt(0)')
        e('s_nop 1')
        for db in range(8):
            for qb in range(4):
                e(self.pv_mfma(0, db, qb))
        e('s_nop 7')
        e('s_add_u32 %s, %s, 8192' % (sr(S_CNT), sr(S_CNT)))
        e('s_cmp_lt_u32 %s, 0x40000' % sr(S_CNT))
        e('s_cbranch_scc1 L_slow_loop')
        for qb in range(4):
            e('v_mov_b32 %s, %s' % (vr(T + qb), vr(M + 4 + qb)))
        L += self.xlane('v_add_f32', [T + q for q in range(4)], [T + 4 + q for q in range(4)])
        for qb in range(4):
            e('v_rcp_f32 %s, %s' % (vr(T + 4 + 2 * qb), vr(T + qb)))
        e('s_nop 0')
        G, pend = self.norm_stream([(0, j) for j in range(4)], True)
        L += [l for x in G for l in x] + ['s_nop 1'] + pend
        e('s_branch L_store')
        return L

    def stamps_out(self):
        if not self.o.stamps:
            return []
        L = []
        e = L.append
        L += self.stamp('stored')
        e('s_waitcnt vmcnt(0) lgkmcnt(0)')
        e('s_memrealtime s[94:95]')
        L += self.stamp()
        e('s_waitcnt lgkmcnt(0)')
        e('s_mov_b32 s84, s90')
        e('s_mov_b32 s85, s91')
        e('s_mov_b32 s86, 0x100000')
        e('s_mov_b32 s87, 0x20000')
        e('s_getreg_b32 s88, hwreg(HW_REG_XCC_ID)')
        e('s_getreg_b32 s89, hwreg(HW_REG_HW_ID)')
        e('s_lshl_b32 s3, s2, 2')
        e('s_add_u32 s3, s3, %s' % sr(S_W))
        e('s_lshl_b32 s3, s3, 8')
        e('v_mov_b32 v1, s3')
        vals = [92, 93, 94, 95, 88, 89] + [S_TS + 4 * k for k in range(10)] + [S_TS + 4 * k + 2 for k in range(10)]
        e('s_mov_b64 exec, 1')
        for k, s in enumerate(vals):
            e('v_mov_b32 v2, s%d' % s)
            e('buffer_store_dword v2, v1, s[84:87], 0 offen offset:%d' % (4 * k))
        if self.o.probe:
            kind, a, b, wg = self.o.probe.split(',')
            a, b = int(a), int(b)
            e('s_cmp_eq_u32 s2, %s' % wg)
            e('s_cbranch_scc0 L_done')
            e('s_cmp_eq_u32 %s, 0' % sr(S_W))
            e('s_cbranch_scc0 L_done')
            if kind == 'rt':
                e('s_sub_u32 s30, s%d, s%d' % (S_TS + 4 * b + 2, S_TS + 4 * a + 2))
                e('s_mul_i32 s30, s30, 10')
            else:
                e('s_sub_u32 s30, s%d, s%d' % (S_TS + 4 * b, S_TS + 4 * a))
                e('s_lshr_b32 s30, s30, 2')
            e('s_add_u32 s30, s30, 10000')
            if self.o.pre:
                e('s_load_dword s92, s[90:91], 0x80000')
                e('s_waitcnt lgkmcnt(0)')
            e('L_spin:')
            e('s_sleep 1')
            e('s_memrealtime s[34:35]')
            e('s_waitcnt lgkmcnt(0)')
            e('s_sub_u32 s34, s34, s92')
            e('s_cmp_lt_u32 s34, s30')
            e('s_cbranch_scc1 L_spin')
        return L

    def build(self):
        o = self.o
        com = self.common()
        n0 = self.nts
        pro1 = []
        if o.roles:
            pro1 = ['L_role1:'] + self.prologue(1)
            pro1 += self.first_period(self.vmw0, o.mid1[6]) + self.stamp('first') + ['s_branch L_loop']
            self.nts = n0
        pro = com + self.prologue(0)
        first = self.first_period(self.vmw0, o.mid[6]) + self.stamp('first')
        body = [self.period(u) for u in range(1, 9)]
        st_body = self.stamp('body')
        last = [self.period(25), self.period(26, dma=False), self.period(27), self.period(28, dma=False, vmw=4),
                self.period(29, dma=False), self.period(30, kind='last', dma=False, vmw=0)]

        def put_shadow(p, slot, lines):
            n = -1
            for i, l in enumerate(p):
                if l.startswith(MF):
                    n += 1
                    if n == slot:
                        return p[:i + 1] + lines + p[i + 1:]
            raise ValueError
        nm = sum(l.startswith(MF) for l in body[0])
        inc, cmp_ = 's_add_u32 %s, %s, 1' % (sr(S_CNT), sr(S_CNT)), 's_cmp_lt_u32 %s, 3' % sr(S_CNT)
        if nm:
            body[7] = put_shadow(body[7], 2, [inc])
            body[7] = put_shadow(body[7], nm - 3, [cmp_])
            tl = body[7][body[7].index(cmp_) + 1:]
            assert not any(l.startswith('s_add') for l in tl)
            body[7] = put_shadow(body[7], nm - 1, ['s_cbranch_scc1 L_loop_x'])
            k = body[7].index('s_cbranch_scc1 L_loop_x')
            rest = body[7][k + 1:]
            body[7] = body[7][:k] + rest + ['s_cbranch_scc1 L_loop']
        else:
            body[7] += [inc, cmp_, 's_cbranch_scc1 L_loop']
        st_loop = self.stamp()
        tail = self.tail()
        tail += self.stamp('tail')
        store = self.store_rest(1)
        for pat in o.drop:
            store = [l for l in store if not l.startswith(pat)]
        so = self.stamps_out()
        slow = self.slow_path()

        text = list(pro) + first
        if o.align:
            text.append('.p2align %d' % o.align)
        text.append('L_loop:')
        for b in body:
            text += b
        text += st_body
        for b in last:
            text += b
        text += st_loop + tail
        text.append('L_store:')
        text += store + so
        text.append('L_done:')
        text.append('s_endpgm')
        text += pro1
        text += slow

        trace = list(pro) + first
        for it in range(3):
            for b in body:
                trace += b
        for b in last:
            trace += b
        trace += st_loop
        probs = check_trace(trace + tail + store + so)
        if o.roles:
            probs += check_trace(com + pro1 + body[0] + body[1] + body[2])
        i0 = slow.index('L_slow_loop:')
        i1 = slow.index('s_cbranch_scc1 L_slow_loop')
        kb = [i for i, l in enumerate(tail) if 'L_slow' in l]
        if kb:
            probs += check_trace(trace + tail[:kb[0] + 1] + slow[:i1 + 1] + slow[i0:] + store)
        return text, probs, [first, body[0], body[1], last[-1], tail]

    def emit(self):
        text, probs, body = self.build()
        hdr = open(self.o.ref).read().split('\n')
        out = []
        for l in hdr:
            if l.startswith('; @launch'):
                if self.o.pre:
                    out.append('; @launch kernel=pre_kernel grid=(%d,1,1) block=(64,1,1) lds=0' % self.o.pre)
                    out.append('; @launch kernel=%s_kernel grid=(256,1,1) block=(256,1,1) lds=163840' % NAME)
                else:
                    out.append('; @launch grid=(256,1,1) block=(256,1,1) lds=163840')
            elif l.startswith(';'):
                out.append(l)
            else:
                break
        out += ['.amdgcn_target "amdgcn-amd-amdhsa--gfx950"', '.text', '.globl %s_kernel' % NAME, '.p2align 8',
                '.type %s_kernel,@function' % NAME, '%s_kernel:' % NAME]
        for l in text:
            out.append(l if (l.endswith(':') or l.startswith('.')) else '    ' + l)
        if self.o.pre:
            out += ['.globl pre_kernel', '.p2align 8', '.type pre_kernel,@function', 'pre_kernel:',
                    's_memrealtime s[4:5]', 's_load_dwordx2 s[8:9], s[0:1], 40', 's_cmp_eq_u32 s2, 0', 's_cbranch_scc0 L_pre_done', 's_waitcnt lgkmcnt(0)',
                    's_mov_b32 s10, 0x100000', 's_mov_b32 s11, 0x20000', 'v_mov_b32 v1, 0x80000', 'v_mov_b32 v2, s4', 's_mov_b64 exec, 1',
                    'buffer_store_dword v2, v1, s[8:11], 0 offen', 'L_pre_done:', 's_endpgm',
                    '.section .rodata,"a"', '.p2align 6', '.amdhsa_kernel pre_kernel', '  .amdhsa_next_free_vgpr 8', '  .amdhsa_next_free_sgpr 16', '  .amdhsa_accum_offset 8',
                    '  .amdhsa_group_segment_fixed_size 0', '  .amdhsa_kernarg_size 48', '  .amdhsa_user_sgpr_count 2', '  .amdhsa_user_sgpr_kernarg_segment_ptr 1',
                    '  .amdhsa_system_sgpr_workgroup_id_x 1', '.end_amdhsa_kernel']
        out += ['.section .rodata,"a"', '.p2align 6', '.amdhsa_kernel %s_kernel' % NAME,
                '  .amdhsa_next_free_vgpr 448', '  .amdhsa_next_free_sgpr 102', '  .amdhsa_accum_offset 256',
                '  .amdhsa_group_segment_fixed_size 0', '  .amdhsa_kernarg_size 48', '  .amdhsa_user_sgpr_count 2',
                '  .amdhsa_user_sgpr_kernarg_segment_ptr 1', '  .amdhsa_system_sgpr_workgroup_id_x 1',
                '  .amdhsa_float_denorm_mode_32 3', '  .amdhsa_float_denorm_mode_16_64 3',
                '.end_amdhsa_kernel', '']
        return '\n'.join(out), probs, body


def ilist(s):
    return [int(x) for x in s.split(',')]


def parse(argv):
    ap = argparse.ArgumentParser()
    ap.add_argument('-o', default='cdna_kernels/%s.s' % NAME)
    ap.add_argument('--ref', default='cdna_kernels/%s.s.ref' % NAME)
    ap.add_argument('--k0', type=int, default=8)
    ap.add_argument('--thr', type=float, default=40)
    ap.add_argument('--stamps', action='store_true')
    ap.add_argument('--st', type=lambda s: s.split(','), default=['q0', 'q3', 'first', 'body', 'tail', 'stored'])
    ap.add_argument('--probe', default='')
    ap.add_argument('--pre', type=int, default=0)
    ap.add_argument('--cpf', type=int, default=1)
    ap.add_argument('--dstep', type=int, default=3)
    ap.add_argument('--epi', type=ilist, default=[1, 2])
    ap.add_argument('--r0', type=int, default=1)
    ap.add_argument('--wplus', type=int, default=1)
    ap.add_argument('--drop', type=lambda s: s.split(','), default=[])
    ap.add_argument('--nodma', action='store_true')
    ap.add_argument('--nobar', action='store_true')
    ap.add_argument('--show', action='store_true')
    ap.add_argument('--exp', default='')
    ap.add_argument('--qkord', type=int, default=1)
    ap.add_argument('--pvord', type=int, default=2)
    ap.add_argument('--align', type=int, default=6)
    ap.add_argument('--maxds', type=int, default=2)
    ap.add_argument('--bargap', type=int, default=0)
    ap.add_argument('--vwait', type=int, default=2)
    ap.add_argument('--kwait', type=int, default=1)
    ap.add_argument('--sumadd', type=int, default=0)
    ap.add_argument('--kper', type=int, default=1)
    ap.add_argument('--dgap', type=int, default=19)
    ap.add_argument('--dstride', type=int, default=4)
    ap.add_argument('--egaps', type=ilist, default=list(range(7, 62, 2)) + [62, 63, 65, 66])
    ap.add_argument('--kgaps', type=ilist, default=[34, 36, 38, 40, 42, 46, 48, 50])
    ap.add_argument('--dgaps', type=ilist, default=[43, 44, 52, 56, 60, 61])
    ap.add_argument('--mid', type=lambda s: [x.split(',') if x else [] for x in s.split('/')], default=[[], [], ['V0'], ['K1'], [], [], ['V1', 'K2']])
    ap.add_argument('--dgaps0', type=ilist, default=[51, 52, 56, 60, 64, 65])
    ap.add_argument('--roles', type=int, default=1)
    ap.add_argument('--pre1', type=lambda s: s.split(',') if s else [], default=['V0', 'K1'])
    ap.add_argument('--mid1', type=lambda s: [x.split(',') if x else [] for x in s.split('/')], default=[[], [], [], [], [], [], ['V1', 'K2']])
    ap.add_argument('--bargap0', type=int, default=32)
    ap.add_argument('--kstep0', type=int, default=2)
    ap.add_argument('--kvflag', type=lambda s: s.replace('+', ' ') + ' ' if s else '', default='nt ')
    ap.add_argument('--qflag', type=lambda s: s.replace('+', ' ') + ' ' if s else '', default='nt ')
    ap.add_argument('--oflag', type=lambda s: s.replace('+', ' '), default='nt')
    return ap.parse_args(argv)


if __name__ == '__main__':
    o = parse(sys.argv[1:])
    g = Gen(o)
    s, probs, body = g.emit()
    open(o.o, 'w').write(s)
    if o.show:
        for p in body:
            cur = []
            for l in p + [MF]:
                if l.startswith(MF):
                    print(' | '.join(cur))
                    cur = []
                cur.append(l.split()[0].replace('v_mfma_f32_16x16x32_bf16', 'M').replace('buffer_load_dwordx4', 'DMA'))
    for p in probs[:40]:
        print('HAZARD', p)
    print('%d hazard findings' % len(probs))
```

```python
import sys, math, struct, argparse, re
from asmlib import I, check_trace

NAME = 'standalone__gqa_softmax__near_ridge'

V_O = 8
V_S = 136
V_C = 200
VKA = 216
VVA = 220
VDK = 228
VDV = 232
VOW = 234
VOR = 238
VOG = 240
VT = 244
VLS = 0
A_Q = 0
A_K = 64
A_V = 96
A_L = 128
A_1 = 144
A_K0 = 160

S_Q, S_K, S_V, S_OD = 4, 8, 12, 16
S_W, S_M0K, S_M0V, S_OFFK, S_OFFV, S_CNT = 20, 21, 22, 23, 24, 25
S_C = 26
S_QOFF = 28
S_THR = 29
S_TMP = 30
S_QLDS = 33
S_TS = 40

V_BASE = 98304
SPARE = 65536
MF = 'v_mfma_f32_16x16x32_bf16'


def f2u(x):
    return struct.unpack('<I', struct.pack('<f', x))[0]


def vr(b, n=1):
    return 'v%d' % b if n == 1 else 'v[%d:%d]' % (b, b + n - 1)


def ar(b, n=1):
    return 'a%d' % b if n == 1 else 'a[%d:%d]' % (b, b + n - 1)


def sr(b, n=1):
    return 's%d' % b if n == 1 else 's[%d:%d]' % (b, b + n - 1)


def S(x, qb, kb):
    return V_S + 32 * (x & 1) + 8 * qb + 4 * kb


def O(qb, db):
    return V_O + 32 * qb + 4 * db


class Gen:
    def __init__(self, opt):
        self.o = opt
        self.nts = 0

    def qk_order(self):
        if self.o.qkord == 0:
            return [(kb, st, qb) for kb in range(2) for st in range(4) for qb in range(4)]
        if self.o.qkord == 1:
            return [(kb, st, qb) for kb in range(2) for qb in range(4) for st in range(4)]
        return [(kb, st, 2 * h + j) for kb in range(2) for h in range(2) for st in range(4) for j in range(2)]

    def pv_order(self):
        if self.o.pvord == 0:
            return [(db, qb) for db in range(8) for qb in range(4)]
        if self.o.pvord == 1:
            return [(db, qb) for qb in range(4) for db in range(8)]
        return [(db, 2 * h + j) for h in range(2) for db in range(8) for j in range(2)]

    def qk_mfma(self, x, kb, st, qb, czero=False, ksrc=A_K):
        d = vr(S(x, qb, kb), 4)
        c = d if st else ('0' if czero else vr(V_C + 4 * qb, 4))
        return '%s %s, %s, %s, %s' % (MF, d, ar(ksrc + 16 * kb + 4 * st, 4), ar(A_Q + 16 * qb + 4 * st, 4), c)

    def pv_mfma(self, x, db, qb, src=A_V, czero=False):
        o = vr(O(qb, db), 4)
        return '%s %s, %s, %s, %s' % (MF, o, ar(src + 4 * db, 4), vr(S(x, qb, 0), 4), '0' if czero else o)

    def sum_mfma(self, x, qb, czero=False):
        l = ar(A_L + 4 * qb, 4)
        return '%s %s, %s, %s, %s' % (MF, l, ar(A_1, 4), vr(S(x, qb, 0), 4), '0' if czero else l)

    def k_read(self, x, kb, st, dst=A_K):
        off = ((x >> 1) & 3) * 16384 + (x & 1) * 8192 + kb * 4096
        return 'ds_read_b128 %s, %s offset:%d' % (ar(dst + 16 * kb + 4 * st, 4), vr(VKA + st), off)

    def v_read(self, x, db, t, addr=VVA, base=None, dst=A_V):
        off = (((x >> 1) + 1) & 3) * 16384 + (x & 1) * 8192 if base is None else base
        off += t * 4096
        return 'ds_read_b64_tr_b16 %s, %s offset:%d' % (ar(dst + 4 * db + 2 * t, 2), vr(addr + db), off)

    def sm_seq(self, x):
        seq = []
        for kb in range(2):
            for qb in range(4):
                s = S(x, qb, kb)
                for r in range(4):
                    ex = 'v_exp_f32 %s, %s' % (vr(s + r), vr(s + r))
                    cv = None
                    if r & 1:
                        cv = 'v_cvt_pk_bf16_f32 %s, %s, %s' % (vr(S(x, qb, 0) + 2 * kb + (r >> 1)), vr(s + r - 1), vr(s + r))
                    seq.append((ex, cv))
        return seq

    def dma_k(self, i):
        return 'buffer_load_dwordx4 %s, %s, %s offen offset:%d %slds' % (vr(VDK + i), sr(S_K, 4), sr(S_OFFK), 1024 * i, self.o.kvflag)

    def dma_v(self, i):
        return 'buffer_load_dwordx4 %s, %s, %s offen offset:%d %slds' % (vr(VDV + (i & 1)), sr(S_V, 4), sr(S_OFFV), 1024 * i, self.o.kvflag)

    def dma_q(self, i):
        return 'buffer_load_dwordx4 %s, %s, %s offen offset:%d %slds' % (vr(VDK + i), sr(S_Q, 4), sr(S_QOFF), 1024 * i, self.o.qflag)

    def stamp(self, name=None):
        if not self.o.stamps:
            return []
        if name is not None and name not in self.o.st:
            return []
        k = self.nts
        self.nts += 1
        return ['s_memtime %s' % sr(S_TS + 4 * k, 2), 's_memrealtime %s' % sr(S_TS + 4 * k + 2, 2)]

    def place_waits(self, mf, shadow, valu, age):
        N = len(mf)
        pend = []
        for g in range(N):
            if g + 1 < N:
                need = set(I(mf[g + 1]).uses)
                idx = [i for i, (r, _) in enumerate(pend) if need & set(r)]
                if idx:
                    last = max(idx)
                    while last + 1 < len(pend) and pend[last + 1][1] <= g - age:
                        last += 1
                    shadow[g].insert(0, 's_waitcnt lgkmcnt(%d)' % (len(pend) - 1 - last))
                    pend = pend[last + 1:]
            for l in shadow[g]:
                x = I(l)
                if x.kind == 'dsr':
                    pend.append((x.defs, g))
                    if g + 1 < N:
                        assert not (set(x.defs) & set(I(mf[g + 1]).uses)), (g, l)
        return pend

    def add_of(self, ex, qb):
        r = ex.split()[1].rstrip(',')
        return 'v_add_f32 %s, %s, %s' % (vr(VLS + qb), vr(VLS + qb), r)

    def period(self, u, kind='mid', vmw=8, dma=True):
        o = self.o
        nsum = 4 - o.sumadd
        N = 64 + nsum
        PV0 = 32 + nsum
        mf = [self.qk_mfma(u + 1, *a) for a in self.qk_order()]
        mf += [self.sum_mfma(u, qb) for qb in range(nsum)]
        mf += [self.pv_mfma(u, *a) for a in self.pv_order()]
        egaps = o.egaps
        assert len(egaps) == 32 and max(egaps) < N - 1
        shadow = [[] for _ in range(N)]
        valu = [[] for _ in range(N)]
        for k, (g, (ex, cv)) in enumerate(zip(egaps, self.sm_seq(u + 1))):
            qb = (k >> 2) & 3
            valu[g].append(ex)
            g2 = g + 1
            while g2 in egaps:
                g2 += 1
            if qb >= nsum:
                valu[g2].append(self.add_of(ex, qb))
            if cv:
                valu[g2].append(cv)
        even = (u & 1) == 0
        free = lambda g: (0 if g in egaps else 2 - len(valu[g]) - len([x for x in shadow[g] if not x.startswith('s_add')]))
        bargap = o.bargap
        if even and not o.nobar:
            shadow[bargap] += ['s_waitcnt vmcnt(%d)' % vmw, 's_barrier']
        t = u >> 1
        vwait, kwait = PV0 - 1 - o.vwait, N - 1 - o.kwait
        vreads = [self.v_read(u, db, t_) for db in range(8) for t_ in range(2)]
        g = bargap + 1
        dbl = True
        while vreads:
            n = max(0, free(g))
            if n == 2:
                n = 2 if (dbl or g - 1 in egaps) else 1
                dbl = n != 2
            for _ in range(n):
                if vreads:
                    shadow[g].append(vreads.pop(0))
            g += 1
        lastv = g - 1
        if kind == 'last':
            nxt = [self.v_read(u + 1, db, t_, dst=A_K) for db in range(8) for t_ in range(2)]
        else:
            nxt = [self.k_read(u + 2, kb, st) for kb in range(2) for st in range(4)]
        g = max(lastv + 1, 32 if kind != 'mid' else vwait + 1)
        while nxt:
            n = max(0, min(free(g), 2 if kind == 'last' else o.kper))
            if kind != 'mid' and nsum < 4 and g in egaps:
                n = 1
            for _ in range(n):
                if nxt:
                    shadow[g].append(nxt.pop(0))
            g += 1
        lastk = g - 1
        assert lastk <= kwait - 3, (lastk, kwait)
        if kind == 'mid':
            assert lastv <= vwait - 3, lastv
            shadow[vwait].insert(0, 's_waitcnt lgkmcnt(0)')
        else:
            self.place_waits(mf, shadow, valu, 4)
        shadow[kwait].insert(0, 's_waitcnt lgkmcnt(0)')

        def put_dma(x, g, step):
            tt = int(x[1:])
            m0, off, fn = (S_M0V, S_OFFV, self.dma_v) if x[0] == 'V' else (S_M0K, S_OFFK, self.dma_k)
            shadow[g].append('s_add_u32 m0, %s, %d' % (sr(m0), ((tt + (x[0] == 'V')) & 3) * 16384))
            g += 1
            for i in range(4):
                while free(g) < 1:
                    g += 1
                shadow[g].append(fn(i))
                g += step
            g -= step - 1
            shadow[g].append('s_add_u32 %s, %s, 16384' % (sr(off), sr(off)))
            return g + 1
        g = o.dgap
        if dma and not o.nodma:
            g = put_dma('K%d' % (t + 3) if even else 'V%d' % (t + 2), g, o.dstride)
            assert g < N - 2, g
        out = []
        for g in range(N):
            out.append(mf[g])
            out += shadow[g] + valu[g]
        if o.exp:
            out = self.experiment(out)
        return out

    def experiment(self, lines):
        ex = self.o.exp.split(',')
        res = []
        for l in lines:
            if 'noexp' in ex and l.startswith('v_exp_f32'):
                continue
            if 'nocvt' in ex and l.startswith('v_cvt_pk'):
                continue
            if 'nolds' in ex and l.startswith('ds_read'):
                continue
            if 'nosum' in ex and l.startswith(MF + ' a['):
                continue
            if 'nomfma' in ex and l.startswith(MF):
                continue
            res.append(l)
        return res

    def xlane(self, op, regs, tmps):
        L = []
        for sw in ('v_permlane32_swap_b32', 'v_permlane16_swap_b32'):
            for r, t in zip(regs, tmps):
                L.append('v_mov_b32 %s, %s' % (vr(t), vr(r)))
            if len(regs) < 3:
                L.append('s_nop 1')
            for r, t in zip(regs, tmps):
                L.append('%s %s, %s' % (sw, vr(r), vr(t)))
            for r, t in zip(regs, tmps):
                L.append('%s %s, %s, %s' % (op, vr(r), vr(r), vr(t)))
        return L

    def common(self):
        o = self.o
        L = []
        e = L.append
        e('s_cmp_ge_u32 s2, 256')
        e('s_cbranch_scc1 L_done')
        e('s_load_dwordx4 s[36:39], s[0:1], 0')
        e('s_load_dwordx4 s[96:99], s[0:1], 16')
        if o.cpf:
            e('s_getpc_b64 s[34:35]')
            e('L_pc:')
            e('v_lshlrev_b32 v4, 4, v0')
            e('global_load_dwordx4 %s, v4, s[34:35]' % vr(V_C, 4))
        if o.stamps:
            e('s_load_dwordx2 s[90:91], s[0:1], 40')
            e('s_memrealtime s[92:93]')
        L += self.stamp()
        e('v_lshrrev_b32 v2, 6, v0')
        e('v_bfe_u32 v5, v0, 4, 2')
        e('v_readfirstlane_b32 %s, v2' % sr(S_W))
        e('v_and_b32 v6, 15, v0')
        e('v_lshlrev_b32 v7, 8, v5')
        e('v_lshl_add_u32 v7, v2, 12, v7')
        e('v_xor_b32 v3, v6, v5')
        e('v_lshl_add_u32 %s, v3, 4, v7' % vr(VDK))
        for i in range(1, 4):
            e('v_xor_b32 %s, %d, %s' % (vr(VDK + i), i << 6, vr(VDK)))
        e('s_and_b32 s30, s2, 7')
        e('s_lshr_b32 s3, s2, 4')
        e('s_lshl4_add_u32 s30, s30, s3')
        e('s_bfe_u32 s31, s2, 0x10003')
        e('s_lshl1_add_u32 s31, s30, s31')
        e('s_lshl_b32 s30, s30, 18')
        e('s_lshl_b32 s31, s31, 16')
        e('s_lshl_b32 %s, %s, 12' % (sr(S_M0K), sr(S_W)))
        e('s_mul_i32 %s, %s, 12288' % (sr(S_QOFF), sr(S_W)))
        e('s_lshl2_add_u32 %s, %s, 0xc000' % (sr(S_QLDS), sr(S_M0K)))
        e('s_mov_b32 %s, 0' % sr(S_OFFK))
        e('s_mov_b32 s10, 0x40000')
        e('s_mov_b32 s11, 0x20000')
        e('s_mov_b32 s6, 0x10000')
        e('s_mov_b32 s7, 0x20000')
        e('s_mov_b32 m0, %s' % sr(S_M0K))
        e('s_waitcnt lgkmcnt(0)')
        L += self.stamp('karg')
        e('s_add_u32 s8, s38, s30')
        e('s_addc_u32 s9, s39, 0')
        for i in range(4):
            e(self.dma_k(i))
        e('s_add_u32 s4, s36, s31')
        e('s_addc_u32 s5, s37, 0')
        if o.roles:
            e('s_bitcmp1_b32 s2, 3')
            e('s_cbranch_scc1 L_role1')
        return L

    def v_setup(self):
        L = []
        e = L.append
        e('s_add_u32 s12, s96, s30')
        e('s_addc_u32 s13, s97, 0')
        e('s_mov_b32 s14, 0x40000')
        e('s_mov_b32 s15, 0x20000')
        e('s_movk_i32 %s, 0x4000' % sr(S_OFFK))
        e('s_mov_b32 %s, 0' % sr(S_OFFV))
        e('s_add_u32 %s, %s, %d' % (sr(S_M0V), sr(S_M0K), V_BASE))
        e('v_lshlrev_b32 v3, 1, v5')
        e('v_xor_b32 v3, v6, v3')
        e('v_lshl_add_u32 %s, v3, 4, v7' % vr(VDV))
        e('v_xor_b32 %s, 0x80, %s' % (vr(VDV + 1), vr(VDV)))
        return L

    def prologue(self, role):
        o = self.o
        mid = o.mid if role == 0 else o.mid1
        L = []
        e = L.append
        vm = ['K0'] * 4

        def issue(tag, txt):
            vm.append(tag)
            e(txt)

        def wait(tag):
            last = max(i for i, t in enumerate(vm) if t == tag)
            e('s_waitcnt vmcnt(%d)' % (len(vm) - 1 - last))

        def dma_qblk(j):
            e('s_add_u32 m0, %s, %d' % (sr(S_QLDS), 4096 * j))
            if j:
                e('s_add_u32 %s, %s, 4096' % (sr(S_QOFF), sr(S_QOFF)))
            else:
                e('s_nop 0')
            for i in range(4):
                issue('Q%d' % j, self.dma_q(i))

        def dma_tile(x):
            kind, t = x[0], int(x[1])
            if kind == 'Q':
                dma_qblk(t)
            elif kind == 'C':
                if o.cpf:
                    issue('C', 'global_load_dwordx4 %s, %s, s[34:35]' % (vr(V_O, 4), vr(V_O + 4)))
            elif kind == 'V':
                e('s_add_u32 m0, %s, %d' % (sr(S_M0V), ((t + 1) & 3) * 16384))
                e('s_nop 0')
                for i in range(4):
                    issue(x, self.dma_v(i))
                e('s_add_u32 %s, %s, 16384' % (sr(S_OFFV), sr(S_OFFV)))
            else:
                e('s_add_u32 m0, %s, %d' % (sr(S_M0K), t * 16384))
                e('s_nop 0')
                for i in range(4):
                    issue(x, self.dma_k(i))
                e('s_add_u32 %s, %s, 16384' % (sr(S_OFFK), sr(S_OFFK)))

        if role == 1:
            if o.cpf:
                e('s_getpc_b64 s[100:101]')
                issue('D', 'global_load_dwordx4 %s, v4, s[100:101]' % vr(V_C + 4, 4))
            L += self.v_setup()
            for x in o.pre1:
                if x[0] == 'w':
                    wait(x[1:])
                else:
                    dma_tile(x)
        L += self.stamp('ik')
        for j in range(4):
            if j < o.qearly:
                dma_qblk(j)
                L += self.stamp('i%d' % j)
        L += self.stamp('issued')
        e('v_and_b32 v1, 63, v0')
        if o.cpf:
            e('s_lshr_b32 s3, s2, 3')
            e('s_lshl2_add_u32 s3, s3, %s' % sr(S_W))
            e('s_and_b32 s3, s3, 31')
            e('s_min_u32 s3, s3, (L_slow - L_pc) / 1024 - 4')
            e('s_lshl_b32 s3, s3, 10')
            e('s_add_u32 s3, s3, 4096')
            e('s_add_u32 s34, s34, s3')
            e('s_addc_u32 s35, s35, 0')
            e('v_lshlrev_b32 %s, 4, v1' % vr(V_O + 4))
        if role == 0:
            L += self.v_setup()
        for x in mid[0]:
            dma_tile(x)
        e('s_add_u32 s16, s98, s31')
        e('s_addc_u32 s17, s99, 0')
        e('s_mov_b32 s18, 0x10000')
        e('s_mov_b32 s19, 0x20000')
        e('v_xor_b32 v3, v5, v6')
        e('v_lshlrev_b32 v4, 8, v6')
        e('v_lshl_add_u32 %s, v3, 4, v4' % vr(VKA))
        for st in range(1, 4):
            e('v_xor_b32 %s, %d, %s' % (vr(VKA + st), st << 6, vr(VKA)))
        for st in range(4):
            e('v_add_u32 %s, %s, %s' % (vr(VT + st), sr(S_QLDS), vr(VKA + st)))
        c = math.log2(math.e) / math.sqrt(128.0)
        e('s_mov_b32 %s, 0x%08x' % (sr(S_C), f2u(c)))
        e('s_mov_b32 %s, 0x%08x' % (sr(S_C + 1), f2u(c)))
        e('s_mov_b32 %s, 0x%08x' % (sr(S_THR), f2u(2.0 ** o.thr)))
        e('s_mov_b32 %s, 0xffff0000' % sr(S_TMP))
        e('v_lshrrev_b32 v3, 2, v1')
        e('v_lshlrev_b32 v2, 8, v3')
        e('v_and_b32 v3, 7, v3')
        e('v_lshl_add_u32 v2, v3, 5, v2')
        e('v_and_b32 v3, 3, v1')
        e('v_lshl_add_u32 v2, v3, 3, v2')
        e('v_add_u32 %s, %d, v2' % (vr(VVA), V_BASE))
        for db in range(1, 8):
            e('v_xor_b32 %s, %d, %s' % (vr(VVA + db), db << 5, vr(VVA)))
        e('v_and_b32 v3, 1, v5')
        e('v_lshlrev_b32 v3, 1, v3')
        e('v_lshrrev_b32 v2, 1, v5')
        e('v_or_b32 v3, v3, v2')
        e('v_and_b32 v2, 7, v6')
        e('v_xor_b32 v3, v3, v2')
        e('v_lshl_add_u32 v3, v3, 4, v4')
        e('v_add_u32 %s, %s, v3' % (vr(VOW), sr(S_M0K)))
        for j in range(1, 4):
            e('v_xor_b32 %s, %d, %s' % (vr(VOW + j), j << 6, vr(VOW)))
        e('s_lshl_b32 s3, %s, 14' % sr(S_W))
        e('v_lshlrev_b32 v3, 4, v1')
        e('v_add_u32 %s, s3, v3' % vr(VOG))
        e('v_and_b32 v3, 3, v1')
        e('v_cmp_eq_u32 vcc, 0, v3')
        e('v_mov_b32 v2, 0x3f803f80')
        e('s_mov_b32 %s, 0' % sr(S_CNT))
        e('v_cndmask_b32 v3, 0, v2, vcc')
        for j in range(4):
            e('v_accvgpr_write_b32 %s, v3' % ar(A_1 + j))
        for qb in range(4 - o.sumadd, 4):
            e('v_mov_b32 %s, 0' % vr(VLS + qb))
        RAW = V_S + 32
        TM = V_S + 48

        def prescale(qb, st):
            b = RAW + 4 * st
            t0 = TM + 8 * (st & 1)
            P = []
            for j in range(4):
                P.append('v_lshlrev_b32 %s, 16, %s' % (vr(t0 + 2 * j), vr(b + j)))
                P.append('v_and_b32 %s, %s, %s' % (vr(t0 + 2 * j + 1), sr(S_TMP), vr(b + j)))
            for j in range(4):
                P.append('v_pk_mul_f32 %s, %s, %s' % (vr(t0 + 2 * j, 2), vr(t0 + 2 * j, 2), sr(S_C, 2)))
            for j in range(4):
                P.append('v_cvt_pk_bf16_f32 %s, %s, %s' % (vr(t0 + 2 * j), vr(t0 + 2 * j), vr(t0 + 2 * j + 1)))
            for j in range(4):
                P.append('v_accvgpr_write_b32 %s, %s' % (ar(A_Q + 16 * qb + 4 * st + j), vr(t0 + 2 * j)))
            return P

        F = []
        if o.stamps and 'code' in o.st:
            e('s_waitcnt vmcnt(%d)' % len(vm))
            L += self.stamp('code')
        if o.stamps and 'k0' in o.st:
            wait('K0')
            L += self.stamp('k0')
        for qb in range(4):
            wait('Q%d' % qb)
            L += self.stamp('q%d' % qb)
            for st in range(4):
                e('ds_read_b128 %s, %s offset:%d' % (vr(RAW + 4 * st, 4), vr(VT + st), 4096 * qb))
            nk = 0
            if qb == 2:
                for kb in range(2):
                    for st in range(4):
                        e(self.k_read(1, kb, st))
                nk = 8
            for x in mid[qb + 1]:
                dma_tile(x)
            if qb:
                if qb == 1:
                    e('s_waitcnt lgkmcnt(4)')
                for m in self.c0_mfmas(qb - 1):
                    e(m)
                    cost = 0
                    while F and cost + I(F[0]).slots() <= 2:
                        cost += I(F[0]).slots()
                        e(F.pop(0))
                L += F
                F = []
            D = self.dmax(qb - 1) if 0 < qb < 3 else []
            for st in range(4):
                e('s_waitcnt lgkmcnt(%d)' % (3 - st + nk))
                P = prescale(qb, st)
                if st == 0 or not D:
                    L += P
                else:
                    for i, p in enumerate(P):
                        e(p)
                        if i % 3 == 2 and D:
                            e(D.pop(0))
            L += D
            if 0 < qb < 3:
                F = self.deferred(qb - 1)
                keep = []
                cost = 0
                while F and cost + I(F[-1]).slots() <= 16:
                    cost += I(F[-1]).slots()
                    keep.insert(0, F.pop())
                L += F
                F = keep
            if qb == 0:
                e('s_barrier')
                for st in range(4):
                    for kb in range(2):
                        e(self.k_read(0, kb, st, dst=A_K0))
        for x in mid[5]:
            dma_tile(x)
        vm += [x for x in mid[6] for _ in range(4)]
        kv = [x for x in vm if x[0] in 'KV']
        assert kv == [x for x in ['K0', 'V0', 'K1', 'V1', 'K2'] for _ in range(4)], vm
        self.vmw0 = len(vm) - 1 - max(i for i, x in enumerate(vm) if x in ('K1', 'C', 'D'))
        L += self.stamp()
        e('s_waitcnt lgkmcnt(0)')
        return L

    def c0_mfmas(self, qb):
        return [self.qk_mfma(0, kb, st, qb, czero=True, ksrc=A_K0) for st in range(4) for kb in range(2)]

    def dmax(self, qb):
        T = VT + 4 + 2 * (qb & 1)
        sq = S(0, qb, 0)
        D = ['v_max3_f32 %s, %s, %s, %s' % (vr(T), vr(sq), vr(sq + 1), vr(sq + 2)),
             'v_max3_f32 %s, %s, %s, %s' % (vr(T + 1), vr(sq + 4), vr(sq + 5), vr(sq + 6)),
             'v_max3_f32 %s, %s, %s, %s' % (vr(T), vr(T), vr(sq + 3), vr(sq + 7)),
             'v_max_f32 %s, %s, %s' % (vr(T), vr(T), vr(T + 1))]
        for sw in ('v_permlane32_swap_b32', 'v_permlane16_swap_b32'):
            D += ['v_mov_b32 %s, %s' % (vr(T + 1), vr(T)), '%s %s, %s' % (sw, vr(T), vr(T + 1)), 'v_max_f32 %s, %s, %s' % (vr(T), vr(T), vr(T + 1))]
        D += ['v_sub_f32 %s, 0, %s' % (vr(V_C + 4 * qb + r), vr(T)) for r in range(4)]
        return D

    def deferred(self, qb):
        sq = S(0, qb, 0)
        out = ['v_add_f32 %s, %s, %s' % (vr(sq + r), vr(sq + r), vr(V_C + 4 * qb)) for r in range(8)]
        seq = [z for kb in range(2) for z in self.sm_seq(0)[16 * kb + 4 * qb:16 * kb + 4 * qb + 4]]
        pend = []
        for ex, cv in seq:
            out.append(ex)
            out += pend
            pend = ([self.add_of(ex, qb)] if qb >= 4 - self.o.sumadd else []) + ([cv] if cv else [])
        return out + ['s_nop 0'] + pend

    def first_period(self, vmw, late):
        o = self.o
        nsum = 4 - o.sumadd
        mf = self.c0_mfmas(3)
        order = [(kb, st, qb) for qb in range(4) for kb in range(2) for st in range(4)]
        mf += [self.qk_mfma(1, *a) for a in order]
        PV0 = 40 + nsum
        mf += [self.sum_mfma(0, qb, czero=True) for qb in range(nsum)]
        mf += [self.pv_mfma(0, *a, czero=True) for a in self.pv_order()]
        N = len(mf)
        shadow = [[] for _ in range(N)]
        valu = [[] for _ in range(N)]

        def spaced(D):
            out = []
            for l in D:
                if l.startswith('v_permlane'):
                    out.append('s_nop 1')
                out.append(l)
            return out
        q1 = [(0, l) for l in spaced(self.dmax(2))] + [(0, l) for l in self.deferred(2)[:8]] + [(11, l) for l in spaced(self.dmax(3))]
        q1 += [(0, l) for l in self.deferred(2)[8:]] + [(0, l) for l in self.deferred(3)]
        sm = self.sm_seq(1)
        q2 = []
        pend = []
        for qb in range(4):
            for kb in range(2):
                ready = 8 + 8 * qb + 4 * kb + 3 + 4
                for ex, cv in sm[16 * kb + 4 * qb:16 * kb + 4 * qb + 4]:
                    q2.append((ready, ex))
                    q2 += pend
                    pend = [(ready, l) for l in ([self.add_of(ex, qb)] if qb >= nsum else []) + ([cv] if cv else [])]
        q2 += [(0, 's_nop 0')] + pend
        bar = o.bargap0
        shadow[bar] += ['s_waitcnt vmcnt(%d)' % vmw, 's_barrier']
        g = bar + 1
        for db in range(8):
            for t_ in range(2):
                shadow[g].append(self.v_read(0, db, t_))
                g += 1
        g = max(g, 40)
        for kb in range(2):
            for st in range(4):
                shadow[g].append(self.k_read(2, kb, st))
                g += o.kstep0
        assert g < N - 4, g
        self.place_waits(mf, shadow, valu, 4)
        shadow[N - 2].insert(0, 's_waitcnt lgkmcnt(0)')
        g = 1
        for x in list(late) + ['K3']:
            if x == 'K3':
                g = max(g, bar + 1)
            tt = int(x[1:])
            m0, off, fn = (S_M0V, S_OFFV, self.dma_v) if x[0] == 'V' else (S_M0K, S_OFFK, self.dma_k)
            shadow[g].append('s_add_u32 m0, %s, %d' % (sr(m0), ((tt + (x[0] == 'V')) & 3) * 16384))
            g += 1
            for i in range(4):
                shadow[g].append(fn(i))
                g += o.dstep if x != 'K3' else 6
            shadow[g - 1].append('s_add_u32 %s, %s, 16384' % (sr(off), sr(off)))
            if x != 'K3':
                assert g <= bar, g
        for g in range(N):
            left = sum(I(l).slots() for _, l in q1 + q2)
            cap = 3 if (q1 or left > 2 * (N - g)) else 2
            if g == N - 1:
                cap = 1000
            cost = 0
            while True:
                q = q1 if q1 else q2
                if not q or q[0][0] > g:
                    q = q2 if (q is q1 and q2 and q2[0][0] <= g) else None
                if not q or cost + I(q[0][1]).slots() > cap:
                    break
                cost += I(q[0][1]).slots()
                valu[g].append(q.pop(0)[1])
            if g == 38:
                assert not q1, len(q1)
        out = []
        for g in range(N):
            out.append(mf[g])
            out += shadow[g] + valu[g]
        return out

    def norm_group(self, qb, j, packed):
        rc = VT + 4 + 2 * qb
        a, b = O(qb, 2 * j), O(qb, 2 * j + 1)
        V = []
        if packed:
            for k in range(4):
                V.append('v_pk_mul_f32 %s, %s, %s op_sel_hi:[1,0]' % (vr(a + 2 * k, 2), vr(a + 2 * k, 2), vr(rc, 2)))
        else:
            for k in range(8):
                V.append('v_mul_f32 %s, %s, %s' % (vr(a + k), vr(a + k), vr(rc)))
        V.append('v_cvt_pk_bf16_f32 %s, %s, %s' % (vr(a), vr(a), vr(a + 1)))
        V.append('v_cvt_pk_bf16_f32 %s, %s, %s' % (vr(a + 1), vr(a + 2), vr(a + 3)))
        V.append('v_cvt_pk_bf16_f32 %s, %s, %s' % (vr(a + 2), vr(b), vr(b + 1)))
        V.append('v_cvt_pk_bf16_f32 %s, %s, %s' % (vr(a + 3), vr(b + 2), vr(b + 3)))
        X = ['v_permlane16_swap_b32 %s, %s' % (vr(a), vr(a + 2)), 'v_permlane16_swap_b32 %s, %s' % (vr(a + 1), vr(a + 3))]
        W = 'ds_write_b128 %s, %s offset:%d' % (vr(VOW + j), vr(a, 4), 16384 * qb)
        return V, X, W

    def norm_stream(self, groups, packed):
        out, pend = [], []
        for qb, j in groups:
            V, X, W = self.norm_group(qb, j, packed)
            out.append(V[:2] + pend + V[2:])
            pend = X + [W]
        return out, pend

    def o_reads(self, qb):
        return ['ds_read_b128 %s, %s offset:%d' % (vr(V_S + 16 * qb + 4 * i, 4), vr(VDK + (i & 1)), 16384 * qb + 1024 * i) for i in range(4)]

    def o_stores(self, qb):
        L = []
        if qb:
            L.append('s_movk_i32 s3, %d' % (4096 * qb))
        for i in range(4):
            L.append('buffer_store_dwordx4 %s, %s, %s, %s offen offset:%d %s' % (vr(V_S + 16 * qb + 4 * i, 4), vr(VOG), sr(S_OD, 4), 's3' if qb else '0', 1024 * i, self.o.oflag))
        return L

    def tail(self):
        u = 31
        T = VT
        nsum = 4 - self.o.sumadd
        mf = [self.sum_mfma(u, qb) for qb in range(nsum)]
        mf += [self.pv_mfma(u, db, qb, src=A_K) for qb in range(4) for db in range(8)]
        pre = []
        regs = [VLS + qb for qb in range(nsum, 4)]
        if regs:
            pre = self.xlane('v_add_f32', regs, [T + 4 + q for q in range(len(regs))])
            pre += ['v_mov_b32 %s, %s' % (vr(T + qb), vr(VLS + qb)) for qb in range(nsum, 4)]
        seq = []
        for l in pre:
            seq.append(l)
        while len(seq) < 10:
            seq.append('s_nop 0')
        seq += ['v_accvgpr_read_b32 %s, %s' % (vr(T + qb), ar(A_L + 4 * qb)) for qb in range(nsum)]
        seq += ['v_add_f32 %s, %s, %s' % (vr(T + 5), vr(T), vr(T + 1)), 'v_add_f32 %s, %s, %s' % (vr(T + 7), vr(T + 2), vr(T + 3)),
                'v_add_f32 %s, %s, %s' % (vr(T + 5), vr(T + 5), vr(T + 7)), 'v_cmp_ngt_f32 vcc, %s, %s' % (sr(S_THR), vr(T + 5))]
        seq += ['v_rcp_f32 %s, %s' % (vr(T + 4 + 2 * qb), vr(T + qb)) for qb in range(4)]
        seq.append('s_cbranch_vccnz L_slow' if not self.o.exp else 's_nop 0')
        G, pend = self.norm_stream([(0, j) for j in range(4)], False)
        V0 = [l for x in G for l in x]
        W0 = ['s_nop 1'] + pend
        fill = [[] for _ in mf]
        g = 0
        while seq:
            cost = 0
            while seq and cost + I(seq[0]).slots() <= 2:
                cost += I(seq[0]).slots()
                fill[g].append(seq.pop(0))
            g += 1
        g = max(g, nsum + 9)
        while g < len(mf) and V0:
            n = 2
            if V0[0].startswith('ds_write'):
                n = self.o.wplus + 1
            elif len(V0) > 1 and V0[1].startswith('ds_write'):
                n = 1
            fill[g] = V0[:n]
            V0 = V0[n:]
            g += 1
        L = []
        for m, f in zip(mf, fill):
            L.append(m)
            L += f
        L += V0 + W0
        return L

    def store_rest(self, first):
        G, pend = self.norm_stream([(qb, j) for qb in range(1, 4) for j in range(4)], True)
        G.append(['s_nop 1'] + pend)
        ra, sa = self.o.epi
        after = [[] for _ in range(40)]
        for qb in range(4):
            n = 4 * qb + ra - (1 if qb == 0 else 0) * self.o.r0
            after[n].append(('R', qb))
            for i in range(4):
                after[n + sa + i].append(('S', qb, i))
        L = []
        lds = ['W'] * 4
        for n in range(40):
            if n < len(G):
                for l in G[n]:
                    L.append(l)
                    if l.startswith('ds_write'):
                        lds.append('W%s' % l.split('offset:')[1])
            for a in after[n]:
                if a[0] == 'R':
                    qb = a[1]
                    idx = [i for i, x in enumerate(lds) if x == 'W' or x == 'W%d' % (16384 * qb)]
                    assert qb == 0 or len([x for x in lds if x == 'W%d' % (16384 * qb)]) == 4, (qb, lds)
                    L.append('s_waitcnt lgkmcnt(%d)' % (len(lds) - 1 - max(idx)))
                    L += self.o_reads(qb)
                    lds += ['R%d_%d' % (qb, i) for i in range(4)]
                else:
                    _, qb, i = a
                    k = lds.index('R%d_%d' % (qb, i))
                    L.append('s_waitcnt lgkmcnt(%d)' % min(15, len(lds) - 1 - k))
                    st = self.o_stores(qb)
                    if qb:
                        L.append(st[0])
                        st = st[1:]
                    L.append(st[i])
        return L

    def slow_path(self):
        L = []
        e = L.append
        T = VT
        M = V_C
        SK = V_S + 32
        SV = SK + 1
        SVA = SK + 4
        e('L_slow:')
        e('s_nop 7')
        e('v_mbcnt_lo_u32_b32 v1, -1, 0')
        e('v_mbcnt_hi_u32_b32 v1, -1, v1')
        e('v_and_b32 v2, 15, v1')
        e('v_lshrrev_b32 v3, 4, v1')
        e('v_lshlrev_b32 v2, 8, v2')
        e('v_lshl_add_u32 %s, v3, 4, v2' % vr(SK))
        e('v_subrev_u32 %s, %s, %s' % (vr(SV), sr(S_M0K), vr(VDV)))
        e('v_subrev_u32 %s, %s, %s' % (vr(SV + 1), sr(S_M0K), vr(VDV + 1)))
        e('s_lshl_b32 s3, %s, 13' % sr(S_W))
        e('s_add_u32 s34, s3, %d' % SPARE)
        e('s_add_u32 s3, s3, %d' % (SPARE - V_BASE))
        for db in range(8):
            e('v_add_u32 %s, s3, %s' % (vr(SVA + db), vr(VVA + db)))
        for i in range(128):
            e('v_mov_b32 %s, 0' % vr(V_O + i))
        for qb in range(4):
            e('v_mov_b32 %s, 0xff7fffff' % vr(M + qb))
            e('v_mov_b32 %s, 0' % vr(M + 4 + qb))
        e('s_mov_b32 %s, 0' % sr(S_CNT))
        e('L_slow_loop:')
        e('s_mov_b32 m0, s34')
        e('s_add_u32 s31, %s, 4096' % sr(S_CNT))
        for i in range(4):
            e('buffer_load_dwordx4 %s, %s, %s offen offset:%d lds' % (vr(SV + (i & 1)), sr(S_V, 4), sr(S_CNT), 1024 * i))
        e('s_add_u32 m0, s34, 4096')
        e('s_nop 0')
        for i in range(4):
            e('buffer_load_dwordx4 %s, %s, s31 offen offset:%d lds' % (vr(SV + (i & 1)), sr(S_V, 4), 1024 * i))
        for kb in range(2):
            for st in range(4):
                e('buffer_load_dwordx4 %s, %s, %s, %s offen offset:%d' % (ar(A_K + 16 * kb + 4 * st, 4), vr(SK), sr(S_K, 4), 's31' if kb else sr(S_CNT), 64 * st))
        e('s_waitcnt vmcnt(0)')
        for kb in range(2):
            for st in range(4):
                for qb in range(4):
                    e(self.qk_mfma(0, kb, st, qb, czero=True))
        for db in range(8):
            for t in range(2):
                e(self.v_read(0, db, t, addr=SVA, base=0))
        for qb in range(4):
            s = S(0, qb, 0)
            e('v_max3_f32 %s, %s, %s, %s' % (vr(T + qb), vr(M + qb), vr(s), vr(s + 1)))
            for k in range(1, 4):
                e('v_max3_f32 %s, %s, %s, %s' % (vr(T + qb), vr(T + qb), vr(s + 2 * k), vr(s + 2 * k + 1)))
        L += self.xlane('v_max_f32', [T + q for q in range(4)], [T + 4 + q for q in range(4)])
        for qb in range(4):
            e('v_sub_f32 %s, %s, %s' % (vr(M + 8 + qb), vr(M + qb), vr(T + qb)))
        for qb in range(4):
            e('v_exp_f32 %s, %s' % (vr(M + 8 + qb), vr(M + 8 + qb)))
        for qb in range(4):
            e('v_mov_b32 %s, %s' % (vr(M + qb), vr(T + qb)))
        for qb in range(4):
            s = S(0, qb, 0)
            for r in range(8):
                e('v_sub_f32 %s, %s, %s' % (vr(s + r), vr(s + r), vr(T + qb)))
            for r in range(8):
                e('v_exp_f32 %s, %s' % (vr(s + r), vr(s + r)))
            e('v_mul_f32 %s, %s, %s' % (vr(M + 4 + qb), vr(M + 4 + qb), vr(M + 8 + qb)))
            for r in range(8):
                e('v_add_f32 %s, %s, %s' % (vr(M + 4 + qb), vr(M + 4 + qb), vr(s + r)))
            for j in range(4):
                e('v_cvt_pk_bf16_f32 %s, %s, %s' % (vr(s + j), vr(s + 2 * j), vr(s + 2 * j + 1)))
            for i in range(32):
                e('v_mul_f32 %s, %s, %s' % (vr(O(qb, 0) + i), vr(O(qb, 0) + i), vr(M + 8 + qb)))
        e('s_waitcnt lgkmcnt(0)')
        e('s_nop 1')
        for db in range(8):
            for qb in range(4):
                e(self.pv_mfma(0, db, qb))
        e('s_nop 7')
        e('s_add_u32 %s, %s, 8192' % (sr(S_CNT), sr(S_CNT)))
        e('s_cmp_lt_u32 %s, 0x40000' % sr(S_CNT))
        e('s_cbranch_scc1 L_slow_loop')
        for qb in range(4):
            e('v_mov_b32 %s, %s' % (vr(T + qb), vr(M + 4 + qb)))
        L += self.xlane('v_add_f32', [T + q for q in range(4)], [T + 4 + q for q in range(4)])
        for qb in range(4):
            e('v_rcp_f32 %s, %s' % (vr(T + 4 + 2 * qb), vr(T + qb)))
        e('s_nop 0')
        G, pend = self.norm_stream([(0, j) for j in range(4)], True)
        L += [l for x in G for l in x] + ['s_nop 1'] + pend
        e('s_branch L_store')
        return L

    def stamps_out(self):
        if not self.o.stamps:
            return []
        L = []
        e = L.append
        L += self.stamp('stored')
        e('s_waitcnt vmcnt(0) lgkmcnt(0)')
        e('s_memrealtime s[94:95]')
        L += self.stamp()
        e('s_waitcnt lgkmcnt(0)')
        e('s_mov_b32 s84, s90')
        e('s_mov_b32 s85, s91')
        e('s_mov_b32 s86, 0x100000')
        e('s_mov_b32 s87, 0x20000')
        e('s_getreg_b32 s88, hwreg(HW_REG_XCC_ID)')
        e('s_getreg_b32 s89, hwreg(HW_REG_HW_ID)')
        e('s_lshl_b32 s3, s2, 2')
        e('s_add_u32 s3, s3, %s' % sr(S_W))
        e('s_lshl_b32 s3, s3, 8')
        e('v_mov_b32 v1, s3')
        vals = [92, 93, 94, 95, 88, 89] + [S_TS + 4 * k for k in range(10)] + [S_TS + 4 * k + 2 for k in range(10)]
        e('s_mov_b64 exec, 1')
        for k, s in enumerate(vals):
            e('v_mov_b32 v2, s%d' % s)
            e('buffer_store_dword v2, v1, s[84:87], 0 offen offset:%d' % (4 * k))
        if self.o.probe:
            kind, a, b, wg = self.o.probe.split(',')
            a, b = int(a), int(b)
            e('s_cmp_eq_u32 s2, %s' % wg)
            e('s_cbranch_scc0 L_done')
            e('s_cmp_eq_u32 %s, 0' % sr(S_W))
            e('s_cbranch_scc0 L_done')
            if kind == 'rt':
                e('s_sub_u32 s30, s%d, s%d' % (S_TS + 4 * b + 2, S_TS + 4 * a + 2))
                e('s_mul_i32 s30, s30, 10')
            else:
                e('s_sub_u32 s30, s%d, s%d' % (S_TS + 4 * b, S_TS + 4 * a))
                e('s_lshr_b32 s30, s30, 2')
            e('s_add_u32 s30, s30, 10000')
            if self.o.pre:
                e('s_load_dword s92, s[90:91], 0x80000')
                e('s_waitcnt lgkmcnt(0)')
            e('L_spin:')
            e('s_sleep 1')
            e('s_memrealtime s[34:35]')
            e('s_waitcnt lgkmcnt(0)')
            e('s_sub_u32 s34, s34, s92')
            e('s_cmp_lt_u32 s34, s30')
            e('s_cbranch_scc1 L_spin')
        return L

    def build(self):
        o = self.o
        com = self.common()
        n0 = self.nts
        pro1 = []
        if o.roles:
            pro1 = ['L_role1:'] + self.prologue(1)
            pro1 += self.first_period(self.vmw0, o.mid1[6]) + self.stamp('first') + ['s_branch L_loop']
            self.nts = n0
        pro = com + self.prologue(0)
        first = self.first_period(self.vmw0, o.mid[6]) + self.stamp('first')
        body = [self.period(u) for u in range(1, 9)]
        st_body = self.stamp('body')
        last = [self.period(25), self.period(26, dma=False), self.period(27), self.period(28, dma=False, vmw=4),
                self.period(29, dma=False), self.period(30, kind='last', dma=False, vmw=0)]

        def put_shadow(p, slot, lines):
            n = -1
            for i, l in enumerate(p):
                if l.startswith(MF):
                    n += 1
                    if n == slot:
                        return p[:i + 1] + lines + p[i + 1:]
            raise ValueError
        nm = sum(l.startswith(MF) for l in body[0])
        inc, cmp_ = 's_add_u32 %s, %s, 1' % (sr(S_CNT), sr(S_CNT)), 's_cmp_lt_u32 %s, 3' % sr(S_CNT)
        if nm:
            body[7] = put_shadow(body[7], 2, [inc])
            body[7] = put_shadow(body[7], nm - 3, [cmp_])
            tl = body[7][body[7].index(cmp_) + 1:]
            assert not any(l.startswith('s_add') for l in tl)
            body[7] = put_shadow(body[7], nm - 1, ['s_cbranch_scc1 L_loop_x'])
            k = body[7].index('s_cbranch_scc1 L_loop_x')
            rest = body[7][k + 1:]
            body[7] = body[7][:k] + rest + ['s_cbranch_scc1 L_loop']
        else:
            body[7] += [inc, cmp_, 's_cbranch_scc1 L_loop']
        st_loop = self.stamp()
        tail = self.tail()
        tail += self.stamp('tail')
        store = self.store_rest(1)
        for pat in o.drop:
            store = [l for l in store if not l.startswith(pat)]
        so = self.stamps_out()
        slow = self.slow_path()

        text = list(pro) + first
        if o.align:
            text.append('.p2align %d' % o.align)
        text.append('L_loop:')
        for b in body:
            text += b
        text += st_body
        for b in last:
            text += b
        text += st_loop + tail
        text.append('L_store:')
        text += store + so
        text.append('L_done:')
        text.append('s_endpgm')
        text += pro1
        text += slow

        trace = list(pro) + first
        for it in range(3):
            for b in body:
                trace += b
        for b in last:
            trace += b
        trace += st_loop
        probs = check_trace(trace + tail + store + so)
        if o.roles:
            probs += check_trace(com + pro1 + body[0] + body[1] + body[2])
        i0 = slow.index('L_slow_loop:')
        i1 = slow.index('s_cbranch_scc1 L_slow_loop')
        kb = [i for i, l in enumerate(tail) if 'L_slow' in l]
        if kb:
            probs += check_trace(trace + tail[:kb[0] + 1] + slow[:i1 + 1] + slow[i0:] + store)
        return text, probs, [first, body[0], body[1], last[-1], tail]

    def emit(self):
        text, probs, body = self.build()
        hdr = open(self.o.ref).read().split('\n')
        out = []
        for l in hdr:
            if l.startswith('; @launch'):
                if self.o.pre:
                    out.append('; @launch kernel=pre_kernel grid=(%d,1,1) block=(64,1,1) lds=0' % self.o.pre)
                    out.append('; @launch kernel=%s_kernel grid=(256,1,1) block=(256,1,1) lds=163840' % NAME)
                else:
                    out.append('; @launch grid=(256,1,1) block=(256,1,1) lds=163840')
            elif l.startswith(';'):
                out.append(l)
            else:
                break
        out += ['.amdgcn_target "amdgcn-amd-amdhsa--gfx950"', '.text', '.globl %s_kernel' % NAME, '.p2align 8',
                '.type %s_kernel,@function' % NAME, '%s_kernel:' % NAME]
        for l in text:
            out.append(l if (l.endswith(':') or l.startswith('.')) else '    ' + l)
        if self.o.pre:
            out += ['.globl pre_kernel', '.p2align 8', '.type pre_kernel,@function', 'pre_kernel:',
                    's_memrealtime s[4:5]', 's_load_dwordx2 s[8:9], s[0:1], 40', 's_cmp_eq_u32 s2, 0', 's_cbranch_scc0 L_pre_done', 's_waitcnt lgkmcnt(0)',
                    's_mov_b32 s10, 0x100000', 's_mov_b32 s11, 0x20000', 'v_mov_b32 v1, 0x80000', 'v_mov_b32 v2, s4', 's_mov_b64 exec, 1',
                    'buffer_store_dword v2, v1, s[8:11], 0 offen', 'L_pre_done:', 's_endpgm',
                    '.section .rodata,"a"', '.p2align 6', '.amdhsa_kernel pre_kernel', '  .amdhsa_next_free_vgpr 8', '  .amdhsa_next_free_sgpr 16', '  .amdhsa_accum_offset 8',
                    '  .amdhsa_group_segment_fixed_size 0', '  .amdhsa_kernarg_size 48', '  .amdhsa_user_sgpr_count 2', '  .amdhsa_user_sgpr_kernarg_segment_ptr 1',
                    '  .amdhsa_system_sgpr_workgroup_id_x 1', '.end_amdhsa_kernel']
        out += ['.section .rodata,"a"', '.p2align 6', '.amdhsa_kernel %s_kernel' % NAME,
                '  .amdhsa_next_free_vgpr 448', '  .amdhsa_next_free_sgpr 102', '  .amdhsa_accum_offset 256',
                '  .amdhsa_group_segment_fixed_size 0', '  .amdhsa_kernarg_size 48', '  .amdhsa_user_sgpr_count 2',
                '  .amdhsa_user_sgpr_kernarg_segment_ptr 1', '  .amdhsa_system_sgpr_workgroup_id_x 1',
                '  .amdhsa_float_denorm_mode_32 3', '  .amdhsa_float_denorm_mode_16_64 3',
                '.end_amdhsa_kernel', '']
        return '\n'.join(out), probs, body


def ilist(s):
    return [int(x) for x in s.split(',')]


def parse(argv):
    ap = argparse.ArgumentParser()
    ap.add_argument('-o', default='cdna_kernels/%s.s' % NAME)
    ap.add_argument('--ref', default='cdna_kernels/%s.s.ref' % NAME)
    ap.add_argument('--k0', type=int, default=8)
    ap.add_argument('--thr', type=float, default=40)
    ap.add_argument('--stamps', action='store_true')
    ap.add_argument('--st', type=lambda s: s.split(','), default=['q0', 'q3', 'first', 'body', 'tail', 'stored'])
    ap.add_argument('--probe', default='')
    ap.add_argument('--pre', type=int, default=0)
    ap.add_argument('--cpf', type=int, default=1)
    ap.add_argument('--dstep', type=int, default=3)
    ap.add_argument('--epi', type=ilist, default=[1, 1])
    ap.add_argument('--r0', type=int, default=1)
    ap.add_argument('--wplus', type=int, default=1)
    ap.add_argument('--drop', type=lambda s: s.split(','), default=[])
    ap.add_argument('--touch', default='')
    ap.add_argument('--qearly', type=int, default=2)
    ap.add_argument('--nodma', action='store_true')
    ap.add_argument('--nobar', action='store_true')
    ap.add_argument('--show', action='store_true')
    ap.add_argument('--exp', default='')
    ap.add_argument('--qkord', type=int, default=1)
    ap.add_argument('--pvord', type=int, default=2)
    ap.add_argument('--align', type=int, default=6)
    ap.add_argument('--maxds', type=int, default=2)
    ap.add_argument('--bargap', type=int, default=0)
    ap.add_argument('--vwait', type=int, default=2)
    ap.add_argument('--kwait', type=int, default=1)
    ap.add_argument('--sumadd', type=int, default=0)
    ap.add_argument('--kper', type=int, default=1)
    ap.add_argument('--dgap', type=int, default=19)
    ap.add_argument('--dstride', type=int, default=4)
    ap.add_argument('--egaps', type=ilist, default=list(range(7, 62, 2)) + [62, 63, 65, 66])
    ap.add_argument('--kgaps', type=ilist, default=[34, 36, 38, 40, 42, 46, 48, 50])
    ap.add_argument('--dgaps', type=ilist, default=[43, 44, 52, 56, 60, 61])
    ap.add_argument('--mid', type=lambda s: [x.split(',') if x else [] for x in s.split('/')], default=[[], ['Q2', 'Q3', 'C0'], ['V0'], ['K1'], [], [], ['V1', 'K2']])
    ap.add_argument('--dgaps0', type=ilist, default=[51, 52, 56, 60, 64, 65])
    ap.add_argument('--roles', type=int, default=1)
    ap.add_argument('--pre1', type=lambda s: s.split(',') if s else [], default=['V0', 'K1'])
    ap.add_argument('--mid1', type=lambda s: [x.split(',') if x else [] for x in s.split('/')], default=[[], ['Q2', 'Q3', 'C0'], [], [], [], [], ['V1', 'K2']])
    ap.add_argument('--bargap0', type=int, default=32)
    ap.add_argument('--kstep0', type=int, default=2)
    ap.add_argument('--kvflag', type=lambda s: s.replace('+', ' ') + ' ' if s else '', default='')
    ap.add_argument('--qflag', type=lambda s: s.replace('+', ' ') + ' ' if s else '', default='')
    ap.add_argument('--oflag', type=lambda s: s.replace('+', ' '), default='nt')
    return ap.parse_args(argv)


if __name__ == '__main__':
    o = parse(sys.argv[1:])
    g = Gen(o)
    s, probs, body = g.emit()
    open(o.o, 'w').write(s)
    if o.show:
        for p in body:
            cur = []
            for l in p + [MF]:
                if l.startswith(MF):
                    print(' | '.join(cur))
                    cur = []
                cur.append(l.split()[0].replace('v_mfma_f32_16x16x32_bf16', 'M').replace('buffer_load_dwordx4', 'DMA'))
    for p in probs[:40]:
        print('HAZARD', p)
    print('%d hazard findings' % len(probs))
```

```python
import sys, math, struct, argparse, re
from asmlib import I, check_trace

NAME = 'standalone__gqa_softmax__near_ridge'

V_O = 8
V_S = 136
V_C = 200
VKA = 216
VVA = 220
VDK = 228
VDV = 232
VOW = 234
VOR = 238
VOG = 240
VT = 244
VLS = 0
A_Q = 0
A_K = 64
A_V = 96
A_L = 128
A_1 = 144
A_K0 = 160

S_Q, S_K, S_V, S_OD = 4, 8, 12, 16
S_W, S_M0K, S_M0V, S_OFFK, S_OFFV, S_CNT = 20, 21, 22, 23, 24, 25
S_C = 26
S_QOFF = 28
S_THR = 29
S_TMP = 30
S_QLDS = 33
S_TS = 40

V_BASE = 98304
SPARE = 65536
MF = 'v_mfma_f32_16x16x32_bf16'


def f2u(x):
    return struct.unpack('<I', struct.pack('<f', x))[0]


def vr(b, n=1):
    return 'v%d' % b if n == 1 else 'v[%d:%d]' % (b, b + n - 1)


def ar(b, n=1):
    return 'a%d' % b if n == 1 else 'a[%d:%d]' % (b, b + n - 1)


def sr(b, n=1):
    return 's%d' % b if n == 1 else 's[%d:%d]' % (b, b + n - 1)


def S(x, qb, kb):
    return V_S + 32 * (x & 1) + 8 * qb + 4 * kb


def O(qb, db):
    return V_O + 32 * qb + 4 * db


class Gen:
    def __init__(self, opt):
        self.o = opt
        self.nts = 0

    def qk_order(self):
        if self.o.qkord == 0:
            return [(kb, st, qb) for kb in range(2) for st in range(4) for qb in range(4)]
        if self.o.qkord == 1:
            return [(kb, st, qb) for kb in range(2) for qb in range(4) for st in range(4)]
        return [(kb, st, 2 * h + j) for kb in range(2) for h in range(2) for st in range(4) for j in range(2)]

    def pv_order(self):
        if self.o.pvord == 0:
            return [(db, qb) for db in range(8) for qb in range(4)]
        if self.o.pvord == 1:
            return [(db, qb) for qb in range(4) for db in range(8)]
        return [(db, 2 * h + j) for h in range(2) for db in range(8) for j in range(2)]

    def qk_mfma(self, x, kb, st, qb, czero=False, ksrc=A_K):
        d = vr(S(x, qb, kb), 4)
        c = d if st else ('0' if czero else vr(V_C + 4 * qb, 4))
        return '%s %s, %s, %s, %s' % (MF, d, ar(ksrc + 16 * kb + 4 * st, 4), ar(A_Q + 16 * qb + 4 * st, 4), c)

    def pv_mfma(self, x, db, qb, src=A_V, czero=False):
        o = vr(O(qb, db), 4)
        return '%s %s, %s, %s, %s' % (MF, o, ar(src + 4 * db, 4), vr(S(x, qb, 0), 4), '0' if czero else o)

    def sum_mfma(self, x, qb, czero=False):
        l = ar(A_L + 4 * qb, 4)
        return '%s %s, %s, %s, %s' % (MF, l, ar(A_1, 4), vr(S(x, qb, 0), 4), '0' if czero else l)

    def k_read(self, x, kb, st, dst=A_K):
        off = ((x >> 1) & 3) * 16384 + (x & 1) * 8192 + kb * 4096
        return 'ds_read_b128 %s, %s offset:%d' % (ar(dst + 16 * kb + 4 * st, 4), vr(VKA + st), off)

    def v_read(self, x, db, t, addr=VVA, base=None, dst=A_V):
        off = (((x >> 1) + 1) & 3) * 16384 + (x & 1) * 8192 if base is None else base
        off += t * 4096
        return 'ds_read_b64_tr_b16 %s, %s offset:%d' % (ar(dst + 4 * db + 2 * t, 2), vr(addr + db), off)

    def sm_seq(self, x):
        seq = []
        for kb in range(2):
            for qb in range(4):
                s = S(x, qb, kb)
                for r in range(4):
                    ex = 'v_exp_f32 %s, %s' % (vr(s + r), vr(s + r))
                    cv = None
                    if r & 1:
                        cv = 'v_cvt_pk_bf16_f32 %s, %s, %s' % (vr(S(x, qb, 0) + 2 * kb + (r >> 1)), vr(s + r - 1), vr(s + r))
                    seq.append((ex, cv))
        return seq

    def dma_k(self, i):
        return 'buffer_load_dwordx4 %s, %s, %s offen offset:%d %slds' % (vr(VDK + i), sr(S_K, 4), sr(S_OFFK), 1024 * i, self.o.kvflag)

    def dma_v(self, i):
        return 'buffer_load_dwordx4 %s, %s, %s offen offset:%d %slds' % (vr(VDV + (i & 1)), sr(S_V, 4), sr(S_OFFV), 1024 * i, self.o.kvflag)

    def dma_q(self, i):
        return 'buffer_load_dwordx4 %s, %s, %s offen offset:%d %slds' % (vr(VDK + i), sr(S_Q, 4), sr(S_QOFF), 1024 * i, self.o.qflag)

    def stamp(self, name=None):
        if not self.o.stamps:
            return []
        if name is not None and name not in self.o.st:
            return []
        k = self.nts
        self.nts += 1
        return ['s_memtime %s' % sr(S_TS + 4 * k, 2), 's_memrealtime %s' % sr(S_TS + 4 * k + 2, 2)]

    def place_waits(self, mf, shadow, valu, age):
        N = len(mf)
        pend = []
        for g in range(N):
            if g + 1 < N:
                need = set(I(mf[g + 1]).uses)
                idx = [i for i, (r, _) in enumerate(pend) if need & set(r)]
                if idx:
                    last = max(idx)
                    while last + 1 < len(pend) and pend[last + 1][1] <= g - age:
                        last += 1
                    shadow[g].insert(0, 's_waitcnt lgkmcnt(%d)' % (len(pend) - 1 - last))
                    pend = pend[last + 1:]
            for l in shadow[g]:
                x = I(l)
                if x.kind == 'dsr':
                    pend.append((x.defs, g))
                    if g + 1 < N:
                        assert not (set(x.defs) & set(I(mf[g + 1]).uses)), (g, l)
        return pend

    def add_of(self, ex, qb):
        r = ex.split()[1].rstrip(',')
        return 'v_add_f32 %s, %s, %s' % (vr(VLS + qb), vr(VLS + qb), r)

    def period(self, u, kind='mid', vmw=8, dma=True):
        o = self.o
        nsum = 4 - o.sumadd
        N = 64 + nsum
        PV0 = 32 + nsum
        mf = [self.qk_mfma(u + 1, *a) for a in self.qk_order()]
        mf += [self.sum_mfma(u, qb) for qb in range(nsum)]
        mf += [self.pv_mfma(u, *a) for a in self.pv_order()]
        egaps = o.egaps
        assert len(egaps) == 32 and max(egaps) < N - 1
        shadow = [[] for _ in range(N)]
        valu = [[] for _ in range(N)]
        for k, (g, (ex, cv)) in enumerate(zip(egaps, self.sm_seq(u + 1))):
            qb = (k >> 2) & 3
            valu[g].append(ex)
            g2 = g + 1
            while g2 in egaps:
                g2 += 1
            if qb >= nsum:
                valu[g2].append(self.add_of(ex, qb))
            if cv:
                valu[g2].append(cv)
        even = (u & 1) == 0
        free = lambda g: (0 if g in egaps else 2 - len(valu[g]) - len([x for x in shadow[g] if not x.startswith('s_add')]))
        bargap = o.bargap
        if even and not o.nobar:
            shadow[bargap] += ['s_waitcnt vmcnt(%d)' % vmw, 's_barrier']
        t = u >> 1
        vwait, kwait = PV0 - 1 - o.vwait, N - 1 - o.kwait
        vreads = [self.v_read(u, db, t_) for db in range(8) for t_ in range(2)]
        g = bargap + 1
        dbl = True
        while vreads:
            n = max(0, free(g))
            if n == 2:
                n = 2 if (dbl or g - 1 in egaps) else 1
                dbl = n != 2
            for _ in range(n):
                if vreads:
                    shadow[g].append(vreads.pop(0))
            g += 1
        lastv = g - 1
        if kind == 'last':
            nxt = [self.v_read(u + 1, db, t_, dst=A_K) for db in range(8) for t_ in range(2)]
        else:
            nxt = [self.k_read(u + 2, kb, st) for kb in range(2) for st in range(4)]
        g = max(lastv + 1, 32 if kind != 'mid' else vwait + 1)
        while nxt:
            n = max(0, min(free(g), 2 if kind == 'last' else o.kper))
            if kind != 'mid' and nsum < 4 and g in egaps:
                n = 1
            for _ in range(n):
                if nxt:
                    shadow[g].append(nxt.pop(0))
            g += 1
        lastk = g - 1
        assert lastk <= kwait - 3, (lastk, kwait)
        if kind == 'mid':
            assert lastv <= vwait - 3, lastv
            shadow[vwait].insert(0, 's_waitcnt lgkmcnt(0)')
        else:
            self.place_waits(mf, shadow, valu, 4)
        shadow[kwait].insert(0, 's_waitcnt lgkmcnt(0)')

        def put_dma(x, g, step):
            tt = int(x[1:])
            m0, off, fn = (S_M0V, S_OFFV, self.dma_v) if x[0] == 'V' else (S_M0K, S_OFFK, self.dma_k)
            shadow[g].append('s_add_u32 m0, %s, %d' % (sr(m0), ((tt + (x[0] == 'V')) & 3) * 16384))
            g += 1
            for i in range(4):
                while free(g) < 1:
                    g += 1
                shadow[g].append(fn(i))
                g += step
            g -= step - 1
            shadow[g].append('s_add_u32 %s, %s, 16384' % (sr(off), sr(off)))
            return g + 1
        g = o.dgap
        if dma and not o.nodma:
            g = put_dma('K%d' % (t + 3) if even else 'V%d' % (t + 2), g, o.dstride)
            assert g < N - 2, g
        out = []
        for g in range(N):
            out.append(mf[g])
            out += shadow[g] + valu[g]
        if o.exp:
            out = self.experiment(out)
        return out

    def experiment(self, lines):
        ex = self.o.exp.split(',')
        res = []
        for l in lines:
            if 'noexp' in ex and l.startswith('v_exp_f32'):
                continue
            if 'nocvt' in ex and l.startswith('v_cvt_pk'):
                continue
            if 'nolds' in ex and l.startswith('ds_read'):
                continue
            if 'nosum' in ex and l.startswith(MF + ' a['):
                continue
            if 'nomfma' in ex and l.startswith(MF):
                continue
            res.append(l)
        return res

    def xlane(self, op, regs, tmps):
        L = []
        for sw in ('v_permlane32_swap_b32', 'v_permlane16_swap_b32'):
            for r, t in zip(regs, tmps):
                L.append('v_mov_b32 %s, %s' % (vr(t), vr(r)))
            if len(regs) < 3:
                L.append('s_nop 1')
            for r, t in zip(regs, tmps):
                L.append('%s %s, %s' % (sw, vr(r), vr(t)))
            for r, t in zip(regs, tmps):
                L.append('%s %s, %s, %s' % (op, vr(r), vr(r), vr(t)))
        return L

    def common(self):
        o = self.o
        L = []
        e = L.append
        e('s_cmp_ge_u32 s2, 256')
        e('s_cbranch_scc1 L_done')
        e('s_load_dwordx4 s[36:39], s[0:1], 0')
        e('s_load_dwordx4 s[96:99], s[0:1], 16')
        if o.cpf:
            e('s_getpc_b64 s[34:35]')
            e('L_pc:')
            e('v_lshlrev_b32 v4, 4, v0')
            e('global_load_dwordx4 %s, v4, s[34:35]' % vr(V_C, 4))
        if o.stamps:
            e('s_load_dwordx2 s[90:91], s[0:1], 40')
            e('s_memrealtime s[92:93]')
        L += self.stamp()
        e('v_lshrrev_b32 v2, 6, v0')
        e('v_bfe_u32 v5, v0, 4, 2')
        e('v_readfirstlane_b32 %s, v2' % sr(S_W))
        e('v_and_b32 v6, 15, v0')
        e('v_lshlrev_b32 v7, 8, v5')
        e('v_lshl_add_u32 v7, v2, 12, v7')
        e('v_xor_b32 v3, v6, v5')
        e('v_lshl_add_u32 %s, v3, 4, v7' % vr(VDK))
        for i in range(1, 4):
            e('v_xor_b32 %s, %d, %s' % (vr(VDK + i), i << 6, vr(VDK)))
        e('s_and_b32 s30, s2, 7')
        e('s_lshr_b32 s3, s2, 4')
        e('s_lshl4_add_u32 s30, s30, s3')
        e('s_bfe_u32 s31, s2, 0x10003')
        e('s_lshl1_add_u32 s31, s30, s31')
        e('s_lshl_b32 s30, s30, 18')
        e('s_lshl_b32 s31, s31, 16')
        e('s_lshl_b32 %s, %s, 12' % (sr(S_M0K), sr(S_W)))
        e('s_mul_i32 %s, %s, 12288' % (sr(S_QOFF), sr(S_W)))
        e('s_lshl2_add_u32 %s, %s, 0xc000' % (sr(S_QLDS), sr(S_M0K)))
        e('s_mov_b32 %s, 0' % sr(S_OFFK))
        e('s_mov_b32 s10, 0x40000')
        e('s_mov_b32 s11, 0x20000')
        e('s_mov_b32 s6, 0x10000')
        e('s_mov_b32 s7, 0x20000')
        e('s_mov_b32 m0, %s' % sr(S_M0K))
        e('s_waitcnt lgkmcnt(0)')
        L += self.stamp('karg')
        e('s_add_u32 s8, s38, s30')
        e('s_addc_u32 s9, s39, 0')
        for i in range(4):
            e(self.dma_k(i))
        e('s_add_u32 s4, s36, s31')
        e('s_addc_u32 s5, s37, 0')
        if o.roles:
            e('s_bitcmp1_b32 s2, 3')
            e('s_cbranch_scc1 L_role1')
        return L

    def v_setup(self):
        L = []
        e = L.append
        e('s_add_u32 s12, s96, s30')
        e('s_addc_u32 s13, s97, 0')
        e('s_mov_b32 s14, 0x40000')
        e('s_mov_b32 s15, 0x20000')
        e('s_movk_i32 %s, 0x4000' % sr(S_OFFK))
        e('s_mov_b32 %s, 0' % sr(S_OFFV))
        e('s_add_u32 %s, %s, %d' % (sr(S_M0V), sr(S_M0K), V_BASE))
        e('v_lshlrev_b32 v3, 1, v5')
        e('v_xor_b32 v3, v6, v3')
        e('v_lshl_add_u32 %s, v3, 4, v7' % vr(VDV))
        e('v_xor_b32 %s, 0x80, %s' % (vr(VDV + 1), vr(VDV)))
        return L

    def prologue(self, role):
        o = self.o
        mid = o.mid if role == 0 else o.mid1
        L = []
        e = L.append
        vm = ['K0'] * 4

        def issue(tag, txt):
            vm.append(tag)
            e(txt)

        def wait(tag):
            last = max(i for i, t in enumerate(vm) if t == tag)
            e('s_waitcnt vmcnt(%d)' % (len(vm) - 1 - last))

        def dma_qblk(j):
            e('s_add_u32 m0, %s, %d' % (sr(S_QLDS), 4096 * j))
            if j:
                e('s_add_u32 %s, %s, 4096' % (sr(S_QOFF), sr(S_QOFF)))
            else:
                e('s_nop 0')
            for i in range(4):
                issue('Q%d' % j, self.dma_q(i))

        def dma_tile(x):
            kind, t = x[0], int(x[1])
            if kind == 'Q':
                dma_qblk(t)
            elif kind == 'C':
                if o.cpf:
                    issue('C', 'global_load_dwordx4 %s, %s, s[34:35]' % (vr(V_O, 4), vr(V_O + 4)))
            elif kind == 'V':
                e('s_add_u32 m0, %s, %d' % (sr(S_M0V), ((t + 1) & 3) * 16384))
                e('s_nop 0')
                for i in range(4):
                    issue(x, self.dma_v(i))
                e('s_add_u32 %s, %s, 16384' % (sr(S_OFFV), sr(S_OFFV)))
            else:
                e('s_add_u32 m0, %s, %d' % (sr(S_M0K), t * 16384))
                e('s_nop 0')
                for i in range(4):
                    issue(x, self.dma_k(i))
                e('s_add_u32 %s, %s, 16384' % (sr(S_OFFK), sr(S_OFFK)))

        if role == 1:
            if o.cpf:
                e('s_getpc_b64 s[100:101]')
                issue('D', 'global_load_dwordx4 %s, v4, s[100:101]' % vr(V_C + 4, 4))
            L += self.v_setup()
            for x in o.pre1:
                if x[0] == 'w':
                    wait(x[1:])
                else:
                    dma_tile(x)
        L += self.stamp('ik')
        for j in range(4):
            if j < o.qearly:
                dma_qblk(j)
                L += self.stamp('i%d' % j)
        L += self.stamp('issued')
        e('v_and_b32 v1, 63, v0')
        if o.cpf:
            e('s_lshr_b32 s3, s2, 3')
            e('s_lshl2_add_u32 s3, s3, %s' % sr(S_W))
            e('s_and_b32 s3, s3, 31')
            e('s_min_u32 s3, s3, (L_slow - L_pc) / 1024 - 4')
            e('s_lshl_b32 s3, s3, 10')
            e('s_add_u32 s3, s3, 4096')
            e('s_add_u32 s34, s34, s3')
            e('s_addc_u32 s35, s35, 0')
            e('v_lshlrev_b32 %s, 4, v1' % vr(V_O + 4))
        if role == 0:
            L += self.v_setup()
        for x in mid[0]:
            dma_tile(x)
        e('s_add_u32 s16, s98, s31')
        e('s_addc_u32 s17, s99, 0')
        e('s_mov_b32 s18, 0x10000')
        e('s_mov_b32 s19, 0x20000')
        e('v_xor_b32 v3, v5, v6')
        e('v_lshlrev_b32 v4, 8, v6')
        e('v_lshl_add_u32 %s, v3, 4, v4' % vr(VKA))
        for st in range(1, 4):
            e('v_xor_b32 %s, %d, %s' % (vr(VKA + st), st << 6, vr(VKA)))
        for st in range(4):
            e('v_add_u32 %s, %s, %s' % (vr(VT + st), sr(S_QLDS), vr(VKA + st)))
        c = math.log2(math.e) / math.sqrt(128.0)
        e('s_mov_b32 %s, 0x%08x' % (sr(S_C), f2u(c)))
        e('s_mov_b32 %s, 0x%08x' % (sr(S_C + 1), f2u(c)))
        e('s_mov_b32 %s, 0x%08x' % (sr(S_THR), f2u(2.0 ** o.thr)))
        e('s_mov_b32 %s, 0xffff0000' % sr(S_TMP))
        e('v_lshrrev_b32 v3, 2, v1')
        e('v_lshlrev_b32 v2, 8, v3')
        e('v_and_b32 v3, 7, v3')
        e('v_lshl_add_u32 v2, v3, 5, v2')
        e('v_and_b32 v3, 3, v1')
        e('v_lshl_add_u32 v2, v3, 3, v2')
        e('v_add_u32 %s, %d, v2' % (vr(VVA), V_BASE))
        for db in range(1, 8):
            e('v_xor_b32 %s, %d, %s' % (vr(VVA + db), db << 5, vr(VVA)))
        e('v_and_b32 v3, 1, v5')
        e('v_lshlrev_b32 v3, 1, v3')
        e('v_lshrrev_b32 v2, 1, v5')
        e('v_or_b32 v3, v3, v2')
        e('v_and_b32 v2, 7, v6')
        e('v_xor_b32 v3, v3, v2')
        e('v_lshl_add_u32 v3, v3, 4, v4')
        e('v_add_u32 %s, %s, v3' % (vr(VOW), sr(S_M0K)))
        for j in range(1, 4):
            e('v_xor_b32 %s, %d, %s' % (vr(VOW + j), j << 6, vr(VOW)))
        e('s_lshl_b32 s3, %s, 14' % sr(S_W))
        e('v_lshlrev_b32 v3, 4, v1')
        e('v_add_u32 %s, s3, v3' % vr(VOG))
        e('v_and_b32 v3, 3, v1')
        e('v_cmp_eq_u32 vcc, 0, v3')
        e('v_mov_b32 v2, 0x3f803f80')
        e('s_mov_b32 %s, 0' % sr(S_CNT))
        e('v_cndmask_b32 v3, 0, v2, vcc')
        for j in range(4):
            e('v_accvgpr_write_b32 %s, v3' % ar(A_1 + j))
        for qb in range(4 - o.sumadd, 4):
            e('v_mov_b32 %s, 0' % vr(VLS + qb))
        RAW = V_S + 32
        TM = V_S + 48

        def prescale(qb, st):
            b = RAW + 4 * st
            t0 = TM + 8 * (st & 1)
            P = []
            for j in range(4):
                P.append('v_lshlrev_b32 %s, 16, %s' % (vr(t0 + 2 * j), vr(b + j)))
                P.append('v_and_b32 %s, %s, %s' % (vr(t0 + 2 * j + 1), sr(S_TMP), vr(b + j)))
            for j in range(4):
                P.append('v_pk_mul_f32 %s, %s, %s' % (vr(t0 + 2 * j, 2), vr(t0 + 2 * j, 2), sr(S_C, 2)))
            for j in range(4):
                P.append('v_cvt_pk_bf16_f32 %s, %s, %s' % (vr(t0 + 2 * j), vr(t0 + 2 * j), vr(t0 + 2 * j + 1)))
            for j in range(4):
                P.append('v_accvgpr_write_b32 %s, %s' % (ar(A_Q + 16 * qb + 4 * st + j), vr(t0 + 2 * j)))
            return P

        F = []
        if o.stamps and 'code' in o.st:
            e('s_waitcnt vmcnt(%d)' % len(vm))
            L += self.stamp('code')
        if o.stamps and 'k0' in o.st:
            wait('K0')
            L += self.stamp('k0')
        for qb in range(4):
            wait('Q%d' % qb)
            L += self.stamp('q%d' % qb)
            for st in range(4):
                e('ds_read_b128 %s, %s offset:%d' % (vr(RAW + 4 * st, 4), vr(VT + st), 4096 * qb))
            nk = 0
            if qb == 2:
                for kb in range(2):
                    for st in range(4):
                        e(self.k_read(1, kb, st))
                nk = 8
            for x in mid[qb + 1]:
                dma_tile(x)
            if qb:
                if qb == 1:
                    e('s_waitcnt lgkmcnt(4)')
                for m in self.c0_mfmas(qb - 1):
                    e(m)
                    cost = 0
                    while F and cost + I(F[0]).slots() <= 2:
                        cost += I(F[0]).slots()
                        e(F.pop(0))
                L += F
                F = []
            D = self.dmax(qb - 1) if 0 < qb < 3 else []
            for st in range(4):
                e('s_waitcnt lgkmcnt(%d)' % (3 - st + nk))
                P = prescale(qb, st)
                if st == 0 or not D:
                    L += P
                else:
                    for i, p in enumerate(P):
                        e(p)
                        if i % 3 == 2 and D:
                            e(D.pop(0))
            L += D
            if 0 < qb < 3:
                F = self.deferred(qb - 1)
                keep = []
                cost = 0
                while F and cost + I(F[-1]).slots() <= 16:
                    cost += I(F[-1]).slots()
                    keep.insert(0, F.pop())
                L += F
                F = keep
            if qb == 0:
                e('s_barrier')
                for st in range(4):
                    for kb in range(2):
                        e(self.k_read(0, kb, st, dst=A_K0))
        for x in mid[5]:
            dma_tile(x)
        vm += [x for x in mid[6] for _ in range(4)]
        kv = [x for x in vm if x[0] in 'KV']
        assert kv == [x for x in ['K0', 'V0', 'K1', 'V1', 'K2'] for _ in range(4)], vm
        self.vmw0 = len(vm) - 1 - max(i for i, x in enumerate(vm) if x in ('K1', 'C', 'D'))
        L += self.stamp()
        e('s_waitcnt lgkmcnt(0)')
        return L

    def c0_mfmas(self, qb):
        return [self.qk_mfma(0, kb, st, qb, czero=True, ksrc=A_K0) for st in range(4) for kb in range(2)]

    def dmax(self, qb):
        T = VT + 4 + 2 * (qb & 1)
        sq = S(0, qb, 0)
        D = ['v_max3_f32 %s, %s, %s, %s' % (vr(T), vr(sq), vr(sq + 1), vr(sq + 2)),
             'v_max3_f32 %s, %s, %s, %s' % (vr(T + 1), vr(sq + 4), vr(sq + 5), vr(sq + 6)),
             'v_max3_f32 %s, %s, %s, %s' % (vr(T), vr(T), vr(sq + 3), vr(sq + 7)),
             'v_max_f32 %s, %s, %s' % (vr(T), vr(T), vr(T + 1))]
        for sw in ('v_permlane32_swap_b32', 'v_permlane16_swap_b32'):
            D += ['v_mov_b32 %s, %s' % (vr(T + 1), vr(T)), '%s %s, %s' % (sw, vr(T), vr(T + 1)), 'v_max_f32 %s, %s, %s' % (vr(T), vr(T), vr(T + 1))]
        D += ['v_sub_f32 %s, 0, %s' % (vr(V_C + 4 * qb + r), vr(T)) for r in range(4)]
        return D

    def deferred(self, qb):
        sq = S(0, qb, 0)
        out = ['v_add_f32 %s, %s, %s' % (vr(sq + r), vr(sq + r), vr(V_C + 4 * qb)) for r in range(8)]
        seq = [z for kb in range(2) for z in self.sm_seq(0)[16 * kb + 4 * qb:16 * kb + 4 * qb + 4]]
        pend = []
        for ex, cv in seq:
            out.append(ex)
            out += pend
            pend = ([self.add_of(ex, qb)] if qb >= 4 - self.o.sumadd else []) + ([cv] if cv else [])
        return out + ['s_nop 0'] + pend

    def first_period(self, vmw, late):
        o = self.o
        nsum = 4 - o.sumadd
        mf = self.c0_mfmas(3)
        order = [(kb, st, qb) for qb in range(4) for kb in range(2) for st in range(4)]
        mf += [self.qk_mfma(1, *a) for a in order]
        PV0 = 40 + nsum
        mf += [self.sum_mfma(0, qb, czero=True) for qb in range(nsum)]
        mf += [self.pv_mfma(0, *a, czero=True) for a in self.pv_order()]
        N = len(mf)
        shadow = [[] for _ in range(N)]
        valu = [[] for _ in range(N)]

        def spaced(D):
            out = []
            for l in D:
                if l.startswith('v_permlane'):
                    out.append('s_nop 1')
                out.append(l)
            return out
        q1 = [(0, l) for l in spaced(self.dmax(2))] + [(0, l) for l in self.deferred(2)[:8]] + [(11, l) for l in spaced(self.dmax(3))]
        q1 += [(0, l) for l in self.deferred(2)[8:]] + [(0, l) for l in self.deferred(3)]
        sm = self.sm_seq(1)
        q2 = []
        pend = []
        for qb in range(4):
            for kb in range(2):
                ready = 8 + 8 * qb + 4 * kb + 3 + 4
                for ex, cv in sm[16 * kb + 4 * qb:16 * kb + 4 * qb + 4]:
                    q2.append((ready, ex))
                    q2 += pend
                    pend = [(ready, l) for l in ([self.add_of(ex, qb)] if qb >= nsum else []) + ([cv] if cv else [])]
        q2 += [(0, 's_nop 0')] + pend
        bar = o.bargap0
        shadow[bar] += ['s_waitcnt vmcnt(%d)' % vmw, 's_barrier']
        g = bar + 1
        for db in range(8):
            for t_ in range(2):
                shadow[g].append(self.v_read(0, db, t_))
                g += 1
        g = max(g, 40)
        for kb in range(2):
            for st in range(4):
                shadow[g].append(self.k_read(2, kb, st))
                g += o.kstep0
        assert g < N - 4, g
        self.place_waits(mf, shadow, valu, 4)
        shadow[N - 2].insert(0, 's_waitcnt lgkmcnt(0)')
        g = 1
        for x in list(late) + ['K3']:
            if x == 'K3':
                g = max(g, bar + 1)
            tt = int(x[1:])
            m0, off, fn = (S_M0V, S_OFFV, self.dma_v) if x[0] == 'V' else (S_M0K, S_OFFK, self.dma_k)
            shadow[g].append('s_add_u32 m0, %s, %d' % (sr(m0), ((tt + (x[0] == 'V')) & 3) * 16384))
            g += 1
            for i in range(4):
                shadow[g].append(fn(i))
                g += o.dstep if x != 'K3' else 6
            shadow[g - 1].append('s_add_u32 %s, %s, 16384' % (sr(off), sr(off)))
            if x != 'K3':
                assert g <= bar, g
        for g in range(N):
            left = sum(I(l).slots() for _, l in q1 + q2)
            cap = 3 if (q1 or left > 2 * (N - g)) else 2
            if g == N - 1:
                cap = 1000
            cost = 0
            while True:
                q = q1 if q1 else q2
                if not q or q[0][0] > g:
                    q = q2 if (q is q1 and q2 and q2[0][0] <= g) else None
                if not q or cost + I(q[0][1]).slots() > cap:
                    break
                cost += I(q[0][1]).slots()
                valu[g].append(q.pop(0)[1])
            if g == 38:
                assert not q1, len(q1)
        out = []
        for g in range(N):
            out.append(mf[g])
            out += shadow[g] + valu[g]
        return out

    def norm_group(self, qb, j, packed):
        rc = VT + 4 + 2 * qb
        a, b = O(qb, 2 * j), O(qb, 2 * j + 1)
        V = []
        if packed:
            for k in range(4):
                V.append('v_pk_mul_f32 %s, %s, %s op_sel_hi:[1,0]' % (vr(a + 2 * k, 2), vr(a + 2 * k, 2), vr(rc, 2)))
        else:
            for k in range(8):
                V.append('v_mul_f32 %s, %s, %s' % (vr(a + k), vr(a + k), vr(rc)))
        V.append('v_cvt_pk_bf16_f32 %s, %s, %s' % (vr(a), vr(a), vr(a + 1)))
        V.append('v_cvt_pk_bf16_f32 %s, %s, %s' % (vr(a + 1), vr(a + 2), vr(a + 3)))
        V.append('v_cvt_pk_bf16_f32 %s, %s, %s' % (vr(a + 2), vr(b), vr(b + 1)))
        V.append('v_cvt_pk_bf16_f32 %s, %s, %s' % (vr(a + 3), vr(b + 2), vr(b + 3)))
        X = ['v_permlane16_swap_b32 %s, %s' % (vr(a), vr(a + 2)), 'v_permlane16_swap_b32 %s, %s' % (vr(a + 1), vr(a + 3))]
        W = 'ds_write_b128 %s, %s offset:%d' % (vr(VOW + j), vr(a, 4), 16384 * qb)
        return V, X, W

    def norm_stream(self, groups, packed):
        out, pend = [], []
        for qb, j in groups:
            V, X, W = self.norm_group(qb, j, packed)
            out.append(V[:2] + pend + V[2:])
            pend = X + [W]
        return out, pend

    def o_reads(self, qb):
        return ['ds_read_b128 %s, %s offset:%d' % (vr(V_S + 16 * qb + 4 * i, 4), vr(VDK + (i & 1)), 16384 * qb + 1024 * i) for i in range(4)]

    def o_stores(self, qb):
        L = []
        if qb:
            L.append('s_movk_i32 s3, %d' % (4096 * qb))
        for i in range(4):
            L.append('buffer_store_dwordx4 %s, %s, %s, %s offen offset:%d %s' % (vr(V_S + 16 * qb + 4 * i, 4), vr(VOG), sr(S_OD, 4), 's3' if qb else '0', 1024 * i, self.o.oflag))
        return L

    def tail(self):
        u = 31
        T = VT
        nsum = 4 - self.o.sumadd
        mf = [self.sum_mfma(u, qb) for qb in range(nsum)]
        mf += [self.pv_mfma(u, db, qb, src=A_K) for qb in range(4) for db in range(8)]
        pre = []
        regs = [VLS + qb for qb in range(nsum, 4)]
        if regs:
            pre = self.xlane('v_add_f32', regs, [T + 4 + q for q in range(len(regs))])
            pre += ['v_mov_b32 %s, %s' % (vr(T + qb), vr(VLS + qb)) for qb in range(nsum, 4)]
        seq = []
        for l in pre:
            seq.append(l)
        while len(seq) < 10:
            seq.append('s_nop 0')
        seq += ['v_accvgpr_read_b32 %s, %s' % (vr(T + qb), ar(A_L + 4 * qb)) for qb in range(nsum)]
        seq += ['v_add_f32 %s, %s, %s' % (vr(T + 5), vr(T), vr(T + 1)), 'v_add_f32 %s, %s, %s' % (vr(T + 7), vr(T + 2), vr(T + 3)),
                'v_add_f32 %s, %s, %s' % (vr(T + 5), vr(T + 5), vr(T + 7)), 'v_cmp_ngt_f32 vcc, %s, %s' % (sr(S_THR), vr(T + 5))]
        seq += ['v_rcp_f32 %s, %s' % (vr(T + 4 + 2 * qb), vr(T + qb)) for qb in range(4)]
        seq.append('s_cbranch_vccnz L_slow' if not self.o.exp else 's_nop 0')
        G, pend = self.norm_stream([(0, j) for j in range(4)], False)
        V0 = [l for x in G for l in x]
        W0 = ['s_nop 1'] + pend
        fill = [[] for _ in mf]
        g = 0
        while seq:
            cost = 0
            while seq and cost + I(seq[0]).slots() <= 2:
                cost += I(seq[0]).slots()
                fill[g].append(seq.pop(0))
            g += 1
        g = max(g, nsum + 9)
        while g < len(mf) and V0:
            n = 2
            if V0[0].startswith('ds_write'):
                n = self.o.wplus + 1
            elif len(V0) > 1 and V0[1].startswith('ds_write'):
                n = 1
            fill[g] = V0[:n]
            V0 = V0[n:]
            g += 1
        L = []
        for m, f in zip(mf, fill):
            L.append(m)
            L += f
        L += V0 + W0
        return L

    def store_rest(self, first):
        G, pend = self.norm_stream([(qb, j) for qb in range(1, 4) for j in range(4)], True)
        G.append(['s_nop 1'] + pend)
        ra, sa = self.o.epi
        after = [[] for _ in range(40)]
        for qb in range(4):
            n = 4 * qb + ra - (1 if qb == 0 else 0) * self.o.r0
            after[n].append(('R', qb))
            for i in range(4):
                after[n + sa + i].append(('S', qb, i))
        L = []
        lds = ['W'] * 4
        for n in range(40):
            if n < len(G):
                for l in G[n]:
                    L.append(l)
                    if l.startswith('ds_write'):
                        lds.append('W%s' % l.split('offset:')[1])
            for a in after[n]:
                if a[0] == 'R':
                    qb = a[1]
                    idx = [i for i, x in enumerate(lds) if x == 'W' or x == 'W%d' % (16384 * qb)]
                    assert qb == 0 or len([x for x in lds if x == 'W%d' % (16384 * qb)]) == 4, (qb, lds)
                    L.append('s_waitcnt lgkmcnt(%d)' % (len(lds) - 1 - max(idx)))
                    L += self.o_reads(qb)
                    lds += ['R%d_%d' % (qb, i) for i in range(4)]
                else:
                    _, qb, i = a
                    k = lds.index('R%d_%d' % (qb, i))
                    L.append('s_waitcnt lgkmcnt(%d)' % min(15, len(lds) - 1 - k))
                    st = self.o_stores(qb)
                    if qb:
                        L.append(st[0])
                        st = st[1:]
                    L.append(st[i])
        return L

    def slow_path(self):
        L = []
        e = L.append
        T = VT
        M = V_C
        SK = V_S + 32
        SV = SK + 1
        SVA = SK + 4
        e('L_slow:')
        e('s_nop 7')
        e('v_mbcnt_lo_u32_b32 v1, -1, 0')
        e('v_mbcnt_hi_u32_b32 v1, -1, v1')
        e('v_and_b32 v2, 15, v1')
        e('v_lshrrev_b32 v3, 4, v1')
        e('v_lshlrev_b32 v2, 8, v2')
        e('v_lshl_add_u32 %s, v3, 4, v2' % vr(SK))
        e('v_subrev_u32 %s, %s, %s' % (vr(SV), sr(S_M0K), vr(VDV)))
        e('v_subrev_u32 %s, %s, %s' % (vr(SV + 1), sr(S_M0K), vr(VDV + 1)))
        e('s_lshl_b32 s3, %s, 13' % sr(S_W))
        e('s_add_u32 s34, s3, %d' % SPARE)
        e('s_add_u32 s3, s3, %d' % (SPARE - V_BASE))
        for db in range(8):
            e('v_add_u32 %s, s3, %s' % (vr(SVA + db), vr(VVA + db)))
        for i in range(128):
            e('v_mov_b32 %s, 0' % vr(V_O + i))
        for qb in range(4):
            e('v_mov_b32 %s, 0xff7fffff' % vr(M + qb))
            e('v_mov_b32 %s, 0' % vr(M + 4 + qb))
        e('s_mov_b32 %s, 0' % sr(S_CNT))
        e('L_slow_loop:')
        e('s_mov_b32 m0, s34')
        e('s_add_u32 s31, %s, 4096' % sr(S_CNT))
        for i in range(4):
            e('buffer_load_dwordx4 %s, %s, %s offen offset:%d lds' % (vr(SV + (i & 1)), sr(S_V, 4), sr(S_CNT), 1024 * i))
        e('s_add_u32 m0, s34, 4096')
        e('s_nop 0')
        for i in range(4):
            e('buffer_load_dwordx4 %s, %s, s31 offen offset:%d lds' % (vr(SV + (i & 1)), sr(S_V, 4), 1024 * i))
        for kb in range(2):
            for st in range(4):
                e('buffer_load_dwordx4 %s, %s, %s, %s offen offset:%d' % (ar(A_K + 16 * kb + 4 * st, 4), vr(SK), sr(S_K, 4), 's31' if kb else sr(S_CNT), 64 * st))
        e('s_waitcnt vmcnt(0)')
        for kb in range(2):
            for st in range(4):
                for qb in range(4):
                    e(self.qk_mfma(0, kb, st, qb, czero=True))
        for db in range(8):
            for t in range(2):
                e(self.v_read(0, db, t, addr=SVA, base=0))
        for qb in range(4):
            s = S(0, qb, 0)
            e('v_max3_f32 %s, %s, %s, %s' % (vr(T + qb), vr(M + qb), vr(s), vr(s + 1)))
            for k in range(1, 4):
                e('v_max3_f32 %s, %s, %s, %s' % (vr(T + qb), vr(T + qb), vr(s + 2 * k), vr(s + 2 * k + 1)))
        L += self.xlane('v_max_f32', [T + q for q in range(4)], [T + 4 + q for q in range(4)])
        for qb in range(4):
            e('v_sub_f32 %s, %s, %s' % (vr(M + 8 + qb), vr(M + qb), vr(T + qb)))
        for qb in range(4):
            e('v_exp_f32 %s, %s' % (vr(M + 8 + qb), vr(M + 8 + qb)))
        for qb in range(4):
            e('v_mov_b32 %s, %s' % (vr(M + qb), vr(T + qb)))
        for qb in range(4):
            s = S(0, qb, 0)
            for r in range(8):
                e('v_sub_f32 %s, %s, %s' % (vr(s + r), vr(s + r), vr(T + qb)))
            for r in range(8):
                e('v_exp_f32 %s, %s' % (vr(s + r), vr(s + r)))
            e('v_mul_f32 %s, %s, %s' % (vr(M + 4 + qb), vr(M + 4 + qb), vr(M + 8 + qb)))
            for r in range(8):
                e('v_add_f32 %s, %s, %s' % (vr(M + 4 + qb), vr(M + 4 + qb), vr(s + r)))
            for j in range(4):
                e('v_cvt_pk_bf16_f32 %s, %s, %s' % (vr(s + j), vr(s + 2 * j), vr(s + 2 * j + 1)))
            for i in range(32):
                e('v_mul_f32 %s, %s, %s' % (vr(O(qb, 0) + i), vr(O(qb, 0) + i), vr(M + 8 + qb)))
        e('s_waitcnt lgkmcnt(0)')
        e('s_nop 1')
        for db in range(8):
            for qb in range(4):
                e(self.pv_mfma(0, db, qb))
        e('s_nop 7')
        e('s_add_u32 %s, %s, 8192' % (sr(S_CNT), sr(S_CNT)))
        e('s_cmp_lt_u32 %s, 0x40000' % sr(S_CNT))
        e('s_cbranch_scc1 L_slow_loop')
        for qb in range(4):
            e('v_mov_b32 %s, %s' % (vr(T + qb), vr(M + 4 + qb)))
        L += self.xlane('v_add_f32', [T + q for q in range(4)], [T + 4 + q for q in range(4)])
        for qb in range(4):
            e('v_rcp_f32 %s, %s' % (vr(T + 4 + 2 * qb), vr(T + qb)))
        e('s_nop 0')
        G, pend = self.norm_stream([(0, j) for j in range(4)], True)
        L += [l for x in G for l in x] + ['s_nop 1'] + pend
        e('s_branch L_store')
        return L

    def stamps_out(self):
        if not self.o.stamps:
            return []
        L = []
        e = L.append
        L += self.stamp('stored')
        e('s_waitcnt vmcnt(0) lgkmcnt(0)')
        e('s_memrealtime s[94:95]')
        L += self.stamp()
        e('s_waitcnt lgkmcnt(0)')
        e('s_mov_b32 s84, s90')
        e('s_mov_b32 s85, s91')
        e('s_mov_b32 s86, 0x100000')
        e('s_mov_b32 s87, 0x20000')
        e('s_getreg_b32 s88, hwreg(HW_REG_XCC_ID)')
        e('s_getreg_b32 s89, hwreg(HW_REG_HW_ID)')
        e('s_lshl_b32 s3, s2, 2')
        e('s_add_u32 s3, s3, %s' % sr(S_W))
        e('s_lshl_b32 s3, s3, 8')
        e('v_mov_b32 v1, s3')
        vals = [92, 93, 94, 95, 88, 89] + [S_TS + 4 * k for k in range(10)] + [S_TS + 4 * k + 2 for k in range(10)]
        e('s_mov_b64 exec, 1')
        for k, s in enumerate(vals):
            e('v_mov_b32 v2, s%d' % s)
            e('buffer_store_dword v2, v1, s[84:87], 0 offen offset:%d' % (4 * k))
        if self.o.probe:
            kind, a, b, wg = self.o.probe.split(',')
            a, b = int(a), int(b)
            e('s_cmp_eq_u32 s2, %s' % wg)
            e('s_cbranch_scc0 L_done')
            e('s_cmp_eq_u32 %s, 0' % sr(S_W))
            e('s_cbranch_scc0 L_done')
            if kind == 'rt':
                e('s_sub_u32 s30, s%d, s%d' % (S_TS + 4 * b + 2, S_TS + 4 * a + 2))
                e('s_mul_i32 s30, s30, 10')
            else:
                e('s_sub_u32 s30, s%d, s%d' % (S_TS + 4 * b, S_TS + 4 * a))
                e('s_lshr_b32 s30, s30, 2')
            e('s_add_u32 s30, s30, 10000')
            if self.o.pre:
                e('s_load_dword s92, s[90:91], 0x80000')
                e('s_waitcnt lgkmcnt(0)')
            e('L_spin:')
            e('s_sleep 1')
            e('s_memrealtime s[34:35]')
            e('s_waitcnt lgkmcnt(0)')
            e('s_sub_u32 s34, s34, s92')
            e('s_cmp_lt_u32 s34, s30')
            e('s_cbranch_scc1 L_spin')
        return L

    def build(self):
        o = self.o
        com = self.common()
        n0 = self.nts
        pro1 = []
        if o.roles:
            pro1 = ['L_role1:'] + self.prologue(1)
            pro1 += self.first_period(self.vmw0, o.mid1[6]) + self.stamp('first') + ['s_branch L_loop']
            self.nts = n0
        pro = com + self.prologue(0)
        first = self.first_period(self.vmw0, o.mid[6]) + self.stamp('first')
        body = [self.period(u) for u in range(1, 9)]
        st_body = self.stamp('body')
        last = [self.period(25), self.period(26, dma=False), self.period(27), self.period(28, dma=False, vmw=4),
                self.period(29, dma=False), self.period(30, kind='last', dma=False, vmw=0)]

        def put_shadow(p, slot, lines):
            n = -1
            for i, l in enumerate(p):
                if l.startswith(MF):
                    n += 1
                    if n == slot:
                        return p[:i + 1] + lines + p[i + 1:]
            raise ValueError
        nm = sum(l.startswith(MF) for l in body[0])
        inc, cmp_ = 's_add_u32 %s, %s, 1' % (sr(S_CNT), sr(S_CNT)), 's_cmp_lt_u32 %s, 3' % sr(S_CNT)
        if nm:
            body[7] = put_shadow(body[7], 2, [inc])
            body[7] = put_shadow(body[7], nm - 3, [cmp_])
            tl = body[7][body[7].index(cmp_) + 1:]
            assert not any(l.startswith('s_add') for l in tl)
            body[7] = put_shadow(body[7], nm - 1, ['s_cbranch_scc1 L_loop_x'])
            k = body[7].index('s_cbranch_scc1 L_loop_x')
            rest = body[7][k + 1:]
            body[7] = body[7][:k] + rest + ['s_cbranch_scc1 L_loop']
        else:
            body[7] += [inc, cmp_, 's_cbranch_scc1 L_loop']
        st_loop = self.stamp()
        tail = self.tail()
        tail += self.stamp('tail')
        store = self.store_rest(1)
        for pat in o.drop:
            store = [l for l in store if not l.startswith(pat)]
        so = self.stamps_out()
        slow = self.slow_path()

        text = list(pro) + first
        if o.align:
            text.append('.p2align %d' % o.align)
        text.append('L_loop:')
        for b in body:
            text += b
        text += st_body
        for b in last:
            text += b
        text += st_loop + tail
        text.append('L_store:')
        text += store + so
        text.append('L_done:')
        text.append('s_endpgm')
        text += pro1
        text += slow

        trace = list(pro) + first
        for it in range(3):
            for b in body:
                trace += b
        for b in last:
            trace += b
        trace += st_loop
        probs = check_trace(trace + tail + store + so)
        if o.roles:
            probs += check_trace(com + pro1 + body[0] + body[1] + body[2])
        i0 = slow.index('L_slow_loop:')
        i1 = slow.index('s_cbranch_scc1 L_slow_loop')
        kb = [i for i, l in enumerate(tail) if 'L_slow' in l]
        if kb:
            probs += check_trace(trace + tail[:kb[0] + 1] + slow[:i1 + 1] + slow[i0:] + store)
        return text, probs, [first, body[0], body[1], last[-1], tail]

    def emit(self):
        text, probs, body = self.build()
        hdr = open(self.o.ref).read().split('\n')
        out = []
        for l in hdr:
            if l.startswith('; @launch'):
                if self.o.pre:
                    out.append('; @launch kernel=pre_kernel grid=(%d,1,1) block=(64,1,1) lds=0' % self.o.pre)
                    out.append('; @launch kernel=%s_kernel grid=(256,1,1) block=(256,1,1) lds=163840' % NAME)
                else:
                    out.append('; @launch grid=(256,1,1) block=(256,1,1) lds=163840')
            elif l.startswith(';'):
                out.append(l)
            else:
                break
        out += ['.amdgcn_target "amdgcn-amd-amdhsa--gfx950"', '.text', '.globl %s_kernel' % NAME, '.p2align 8',
                '.type %s_kernel,@function' % NAME, '%s_kernel:' % NAME]
        for l in text:
            out.append(l if (l.endswith(':') or l.startswith('.')) else '    ' + l)
        if self.o.pre:
            out += ['.globl pre_kernel', '.p2align 8', '.type pre_kernel,@function', 'pre_kernel:',
                    's_memrealtime s[4:5]', 's_load_dwordx2 s[8:9], s[0:1], 40', 's_cmp_eq_u32 s2, 0', 's_cbranch_scc0 L_pre_done', 's_waitcnt lgkmcnt(0)',
                    's_mov_b32 s10, 0x100000', 's_mov_b32 s11, 0x20000', 'v_mov_b32 v1, 0x80000', 'v_mov_b32 v2, s4', 's_mov_b64 exec, 1',
                    'buffer_store_dword v2, v1, s[8:11], 0 offen', 'L_pre_done:', 's_endpgm',
                    '.section .rodata,"a"', '.p2align 6', '.amdhsa_kernel pre_kernel', '  .amdhsa_next_free_vgpr 8', '  .amdhsa_next_free_sgpr 16', '  .amdhsa_accum_offset 8',
                    '  .amdhsa_group_segment_fixed_size 0', '  .amdhsa_kernarg_size 48', '  .amdhsa_user_sgpr_count 2', '  .amdhsa_user_sgpr_kernarg_segment_ptr 1',
                    '  .amdhsa_system_sgpr_workgroup_id_x 1', '.end_amdhsa_kernel']
        out += ['.section .rodata,"a"', '.p2align 6', '.amdhsa_kernel %s_kernel' % NAME,
                '  .amdhsa_next_free_vgpr 448', '  .amdhsa_next_free_sgpr 102', '  .amdhsa_accum_offset 256',
                '  .amdhsa_group_segment_fixed_size 0', '  .amdhsa_kernarg_size 48', '  .amdhsa_user_sgpr_count 2',
                '  .amdhsa_user_sgpr_kernarg_segment_ptr 1', '  .amdhsa_system_sgpr_workgroup_id_x 1',
                '  .amdhsa_float_denorm_mode_32 3', '  .amdhsa_float_denorm_mode_16_64 3',
                '.end_amdhsa_kernel', '']
        return '\n'.join(out), probs, body


def ilist(s):
    return [int(x) for x in s.split(',')]


def parse(argv):
    ap = argparse.ArgumentParser()
    ap.add_argument('-o', default='cdna_kernels/%s.s' % NAME)
    ap.add_argument('--ref', default='cdna_kernels/%s.s.ref' % NAME)
    ap.add_argument('--k0', type=int, default=8)
    ap.add_argument('--thr', type=float, default=40)
    ap.add_argument('--stamps', action='store_true')
    ap.add_argument('--st', type=lambda s: s.split(','), default=['q0', 'q3', 'first', 'body', 'tail', 'stored'])
    ap.add_argument('--probe', default='')
    ap.add_argument('--pre', type=int, default=0)
    ap.add_argument('--cpf', type=int, default=1)
    ap.add_argument('--dstep', type=int, default=3)
    ap.add_argument('--epi', type=ilist, default=[1, 1])
    ap.add_argument('--r0', type=int, default=1)
    ap.add_argument('--wplus', type=int, default=1)
    ap.add_argument('--drop', type=lambda s: s.split(','), default=[])
    ap.add_argument('--touch', default='')
    ap.add_argument('--qearly', type=int, default=3)
    ap.add_argument('--nodma', action='store_true')
    ap.add_argument('--nobar', action='store_true')
    ap.add_argument('--show', action='store_true')
    ap.add_argument('--exp', default='')
    ap.add_argument('--qkord', type=int, default=1)
    ap.add_argument('--pvord', type=int, default=2)
    ap.add_argument('--align', type=int, default=6)
    ap.add_argument('--maxds', type=int, default=2)
    ap.add_argument('--bargap', type=int, default=0)
    ap.add_argument('--vwait', type=int, default=2)
    ap.add_argument('--kwait', type=int, default=1)
    ap.add_argument('--sumadd', type=int, default=0)
    ap.add_argument('--kper', type=int, default=1)
    ap.add_argument('--dgap', type=int, default=19)
    ap.add_argument('--dstride', type=int, default=4)
    ap.add_argument('--egaps', type=ilist, default=list(range(7, 62, 2)) + [62, 63, 65, 66])
    ap.add_argument('--kgaps', type=ilist, default=[34, 36, 38, 40, 42, 46, 48, 50])
    ap.add_argument('--dgaps', type=ilist, default=[43, 44, 52, 56, 60, 61])
    ap.add_argument('--mid', type=lambda s: [x.split(',') if x else [] for x in s.split('/')], default=[[], ['Q3', 'C0'], ['V0'], ['K1'], [], [], ['V1', 'K2']])
    ap.add_argument('--dgaps0', type=ilist, default=[51, 52, 56, 60, 64, 65])
    ap.add_argument('--roles', type=int, default=1)
    ap.add_argument('--pre1', type=lambda s: s.split(',') if s else [], default=['V0'])
    ap.add_argument('--mid1', type=lambda s: [x.split(',') if x else [] for x in s.split('/')], default=[[], ['Q3', 'C0'], ['K1'], [], [], [], ['V1', 'K2']])
    ap.add_argument('--bargap0', type=int, default=32)
    ap.add_argument('--kstep0', type=int, default=2)
    ap.add_argument('--kvflag', type=lambda s: s.replace('+', ' ') + ' ' if s else '', default='')
    ap.add_argument('--qflag', type=lambda s: s.replace('+', ' ') + ' ' if s else '', default='')
    ap.add_argument('--oflag', type=lambda s: s.replace('+', ' '), default='nt')
    return ap.parse_args(argv)


if __name__ == '__main__':
    o = parse(sys.argv[1:])
    g = Gen(o)
    s, probs, body = g.emit()
    open(o.o, 'w').write(s)
    if o.show:
        for p in body:
            cur = []
            for l in p + [MF]:
                if l.startswith(MF):
                    print(' | '.join(cur))
                    cur = []
                cur.append(l.split()[0].replace('v_mfma_f32_16x16x32_bf16', 'M').replace('buffer_load_dwordx4', 'DMA'))
    for p in probs[:40]:
        print('HAZARD', p)
    print('%d hazard findings' % len(probs))
```

```python
import sys, math, struct, argparse, re
from asmlib import I, check_trace

NAME = 'standalone__gqa_softmax__near_ridge'

V_O = 8
V_S = 136
V_C = 200
VKA = 216
VVA = 220
VDK = 228
VDV = 232
VOW = 234
VOR = 238
VOG = 240
VT = 244
VLS = 0
A_Q = 0
A_K = 64
A_V = 96
A_L = 128
A_1 = 144
A_K0 = 160

S_Q, S_K, S_V, S_OD = 4, 8, 12, 16
S_W, S_M0K, S_M0V, S_OFFK, S_OFFV, S_CNT = 20, 21, 22, 23, 24, 25
S_C = 26
S_QOFF = 28
S_THR = 29
S_TMP = 30
S_QLDS = 33
S_STG = 32
S_OQ = 80
OPITCH = 272
S_TS = 40

V_BASE = 98304
SPARE = 65536
MF = 'v_mfma_f32_16x16x32_bf16'


def f2u(x):
    return struct.unpack('<I', struct.pack('<f', x))[0]


def vr(b, n=1):
    return 'v%d' % b if n == 1 else 'v[%d:%d]' % (b, b + n - 1)


def ar(b, n=1):
    return 'a%d' % b if n == 1 else 'a[%d:%d]' % (b, b + n - 1)


def sr(b, n=1):
    return 's%d' % b if n == 1 else 's[%d:%d]' % (b, b + n - 1)


def S(x, qb, kb):
    return V_S + 32 * (x & 1) + 8 * qb + 4 * kb


def O(qb, db):
    return V_O + 32 * qb + 4 * db


class Gen:
    def __init__(self, opt):
        self.o = opt
        self.nts = 0

    def qk_order(self):
        if self.o.qkord == 0:
            return [(kb, st, qb) for kb in range(2) for st in range(4) for qb in range(4)]
        if self.o.qkord == 1:
            return [(kb, st, qb) for kb in range(2) for qb in range(4) for st in range(4)]
        return [(kb, st, 2 * h + j) for kb in range(2) for h in range(2) for st in range(4) for j in range(2)]

    def pv_order(self):
        if self.o.pvord == 0:
            return [(db, qb) for db in range(8) for qb in range(4)]
        if self.o.pvord == 1:
            return [(db, qb) for qb in range(4) for db in range(8)]
        return [(db, 2 * h + j) for h in range(2) for db in range(8) for j in range(2)]

    def qk_mfma(self, x, kb, st, qb, czero=False, ksrc=A_K):
        d = vr(S(x, qb, kb), 4)
        c = d if st else ('0' if czero else vr(V_C + 4 * qb, 4))
        return '%s %s, %s, %s, %s' % (MF, d, ar(ksrc + 16 * kb + 4 * st, 4), ar(A_Q + 16 * qb + 4 * st, 4), c)

    def pv_mfma(self, x, db, qb, src=A_V, czero=False):
        o = vr(O(qb, db), 4)
        return '%s %s, %s, %s, %s' % (MF, o, ar(src + 4 * db, 4), vr(S(x, qb, 0), 4), '0' if czero else o)

    def sum_mfma(self, x, qb, czero=False):
        l = ar(A_L + 4 * qb, 4)
        return '%s %s, %s, %s, %s' % (MF, l, ar(A_1, 4), vr(S(x, qb, 0), 4), '0' if czero else l)

    def k_read(self, x, kb, st, dst=A_K):
        off = ((x >> 1) & 3) * 16384 + (x & 1) * 8192 + kb * 4096
        return 'ds_read_b128 %s, %s offset:%d' % (ar(dst + 16 * kb + 4 * st, 4), vr(VKA + st), off)

    def v_read(self, x, db, t, addr=VVA, base=None, dst=A_V):
        off = (((x >> 1) + 1) & 3) * 16384 + (x & 1) * 8192 if base is None else base
        off += t * 4096
        return 'ds_read_b64_tr_b16 %s, %s offset:%d' % (ar(dst + 4 * db + 2 * t, 2), vr(addr + db), off)

    def sm_seq(self, x):
        seq = []
        for kb in range(2):
            for qb in range(4):
                s = S(x, qb, kb)
                for r in range(4):
                    ex = 'v_exp_f32 %s, %s' % (vr(s + r), vr(s + r))
                    cv = None
                    if r & 1:
                        cv = 'v_cvt_pk_bf16_f32 %s, %s, %s' % (vr(S(x, qb, 0) + 2 * kb + (r >> 1)), vr(s + r - 1), vr(s + r))
                    seq.append((ex, cv))
        return seq

    def dma_k(self, i):
        return 'buffer_load_dwordx4 %s, %s, %s offen offset:%d %slds' % (vr(VDK + i), sr(S_K, 4), sr(S_OFFK), 1024 * i, self.o.kvflag)

    def dma_v(self, i):
        return 'buffer_load_dwordx4 %s, %s, %s offen offset:%d %slds' % (vr(VDV + (i & 1)), sr(S_V, 4), sr(S_OFFV), 1024 * i, self.o.kvflag)

    def dma_q(self, i):
        return 'buffer_load_dwordx4 %s, %s, %s offen offset:%d %slds' % (vr(VDK + i), sr(S_Q, 4), sr(S_QOFF), 1024 * i, self.o.qflag)

    def stamp(self, name=None):
        if not self.o.stamps:
            return []
        if name is not None and name not in self.o.st:
            return []
        k = self.nts
        self.nts += 1
        return ['s_memtime %s' % sr(S_TS + 4 * k, 2), 's_memrealtime %s' % sr(S_TS + 4 * k + 2, 2)]

    def place_waits(self, mf, shadow, valu, age):
        N = len(mf)
        pend = []
        for g in range(N):
            if g + 1 < N:
                need = set(I(mf[g + 1]).uses)
                idx = [i for i, (r, _) in enumerate(pend) if need & set(r)]
                if idx:
                    last = max(idx)
                    while last + 1 < len(pend) and pend[last + 1][1] <= g - age:
                        last += 1
                    shadow[g].insert(0, 's_waitcnt lgkmcnt(%d)' % (len(pend) - 1 - last))
                    pend = pend[last + 1:]
            for l in shadow[g]:
                x = I(l)
                if x.kind == 'dsr':
                    pend.append((x.defs, g))
                    if g + 1 < N:
                        assert not (set(x.defs) & set(I(mf[g + 1]).uses)), (g, l)
        return pend

    def add_of(self, ex, qb):
        r = ex.split()[1].rstrip(',')
        return 'v_add_f32 %s, %s, %s' % (vr(VLS + qb), vr(VLS + qb), r)

    def period(self, u, kind='mid', vmw=8, dma=True):
        o = self.o
        nsum = 4 - o.sumadd
        N = 64 + nsum
        PV0 = 32 + nsum
        mf = [self.qk_mfma(u + 1, *a) for a in self.qk_order()]
        mf += [self.sum_mfma(u, qb) for qb in range(nsum)]
        mf += [self.pv_mfma(u, *a) for a in self.pv_order()]
        egaps = o.egaps
        assert len(egaps) == 32 and max(egaps) < N - 1
        shadow = [[] for _ in range(N)]
        valu = [[] for _ in range(N)]
        for k, (g, (ex, cv)) in enumerate(zip(egaps, self.sm_seq(u + 1))):
            qb = (k >> 2) & 3
            valu[g].append(ex)
            g2 = g + 1
            while g2 in egaps:
                g2 += 1
            if qb >= nsum:
                valu[g2].append(self.add_of(ex, qb))
            if cv:
                valu[g2].append(cv)
        even = (u & 1) == 0
        free = lambda g: (0 if g in egaps else 2 - len(valu[g]) - len([x for x in shadow[g] if not x.startswith('s_add')]))
        bargap = o.bargap
        if even and not o.nobar:
            shadow[bargap] += ['s_waitcnt vmcnt(%d)' % vmw, 's_barrier']
        t = u >> 1
        vwait, kwait = PV0 - 1 - o.vwait, N - 1 - o.kwait
        vreads = [self.v_read(u, db, t_) for db in range(8) for t_ in range(2)]
        g = bargap + 1
        dbl = True
        while vreads:
            n = max(0, free(g))
            if n == 2:
                n = 2 if (dbl or g - 1 in egaps) else 1
                dbl = n != 2
            for _ in range(n):
                if vreads:
                    shadow[g].append(vreads.pop(0))
            g += 1
        lastv = g - 1
        if kind == 'last':
            nxt = [self.v_read(u + 1, db, t_, dst=A_K) for db in range(8) for t_ in range(2)]
        else:
            nxt = [self.k_read(u + 2, kb, st) for kb in range(2) for st in range(4)]
        g = max(lastv + 1, 32 if kind != 'mid' else vwait + 1)
        while nxt:
            n = max(0, min(free(g), 2 if kind == 'last' else o.kper))
            if kind != 'mid' and nsum < 4 and g in egaps:
                n = 1
            for _ in range(n):
                if nxt:
                    shadow[g].append(nxt.pop(0))
            g += 1
        lastk = g - 1
        assert lastk <= kwait - 3, (lastk, kwait)
        if kind == 'mid':
            assert lastv <= vwait - 3, lastv
            shadow[vwait].insert(0, 's_waitcnt lgkmcnt(0)')
        else:
            self.place_waits(mf, shadow, valu, 4)
        shadow[kwait].insert(0, 's_waitcnt lgkmcnt(0)')

        def put_dma(x, g, step):
            tt = int(x[1:])
            m0, off, fn = (S_M0V, S_OFFV, self.dma_v) if x[0] == 'V' else (S_M0K, S_OFFK, self.dma_k)
            shadow[g].append('s_add_u32 m0, %s, %d' % (sr(m0), ((tt + (x[0] == 'V')) & 3) * 16384))
            g += 1
            for i in range(4):
                while free(g) < 1:
                    g += 1
                shadow[g].append(fn(i))
                g += step
            g -= step - 1
            shadow[g].append('s_add_u32 %s, %s, 16384' % (sr(off), sr(off)))
            return g + 1
        g = o.dgap
        if dma and not o.nodma:
            g = put_dma('K%d' % (t + 3) if even else 'V%d' % (t + 2), g, o.dstride)
            assert g < N - 2, g
        out = []
        for g in range(N):
            out.append(mf[g])
            out += shadow[g] + valu[g]
        if o.exp:
            out = self.experiment(out)
        return out

    def experiment(self, lines):
        ex = self.o.exp.split(',')
        res = []
        for l in lines:
            if 'noexp' in ex and l.startswith('v_exp_f32'):
                continue
            if 'nocvt' in ex and l.startswith('v_cvt_pk'):
                continue
            if 'nolds' in ex and l.startswith('ds_read'):
                continue
            if 'nosum' in ex and l.startswith(MF + ' a['):
                continue
            if 'nomfma' in ex and l.startswith(MF):
                continue
            res.append(l)
        return res

    def xlane(self, op, regs, tmps):
        L = []
        for sw in ('v_permlane32_swap_b32', 'v_permlane16_swap_b32'):
            for r, t in zip(regs, tmps):
                L.append('v_mov_b32 %s, %s' % (vr(t), vr(r)))
            if len(regs) < 3:
                L.append('s_nop 1')
            for r, t in zip(regs, tmps):
                L.append('%s %s, %s' % (sw, vr(r), vr(t)))
            for r, t in zip(regs, tmps):
                L.append('%s %s, %s, %s' % (op, vr(r), vr(r), vr(t)))
        return L

    def common(self):
        o = self.o
        L = []
        e = L.append
        e('s_cmp_ge_u32 s2, 256')
        e('s_cbranch_scc1 L_done')
        e('s_load_dwordx4 s[36:39], s[0:1], 0')
        e('s_load_dwordx4 s[96:99], s[0:1], 16')
        if o.cpf:
            e('s_getpc_b64 s[34:35]')
            e('L_pc:')
            e('v_lshlrev_b32 v4, 4, v0')
            e('global_load_dwordx4 %s, v4, s[34:35]' % vr(V_C, 4))
        if o.stamps:
            e('s_load_dwordx2 s[90:91], s[0:1], 40')
            e('s_memrealtime s[92:93]')
        L += self.stamp()
        e('v_lshrrev_b32 v2, 6, v0')
        e('v_bfe_u32 v5, v0, 4, 2')
        e('v_readfirstlane_b32 %s, v2' % sr(S_W))
        e('v_and_b32 v6, 15, v0')
        e('v_lshlrev_b32 v7, 8, v5')
        e('v_lshl_add_u32 v7, v2, 12, v7')
        e('v_xor_b32 v3, v6, v5')
        e('v_lshl_add_u32 %s, v3, 4, v7' % vr(VDK))
        for i in range(1, 4):
            e('v_xor_b32 %s, %d, %s' % (vr(VDK + i), i << 6, vr(VDK)))
        e('s_and_b32 s30, s2, 7')
        e('s_lshr_b32 s3, s2, 4')
        e('s_lshl4_add_u32 s30, s30, s3')
        e('s_bfe_u32 s31, s2, 0x10003')
        e('s_lshl1_add_u32 s31, s30, s31')
        e('s_lshl_b32 s30, s30, 18')
        e('s_lshl_b32 s31, s31, 16')
        e('s_lshl_b32 %s, %s, 12' % (sr(S_M0K), sr(S_W)))
        e('s_mul_i32 %s, %s, 12288' % (sr(S_QOFF), sr(S_W)))
        e('s_lshl2_add_u32 %s, %s, 0xc000' % (sr(S_QLDS), sr(S_M0K)))
        e('s_mov_b32 %s, 0' % sr(S_OFFK))
        e('s_mov_b32 s10, 0x40000')
        e('s_mov_b32 s11, 0x20000')
        e('s_mov_b32 s6, 0x10000')
        e('s_mov_b32 s7, 0x20000')
        e('s_mov_b32 m0, %s' % sr(S_M0K))
        e('s_waitcnt lgkmcnt(0)')
        L += self.stamp('karg')
        e('s_add_u32 s8, s38, s30')
        e('s_addc_u32 s9, s39, 0')
        for i in range(4):
            e(self.dma_k(i))
        e('s_add_u32 s4, s36, s31')
        e('s_addc_u32 s5, s37, 0')
        if o.roles:
            e('s_bitcmp1_b32 s2, 3')
            e('s_cbranch_scc1 L_role1')
        return L

    def v_setup(self):
        L = []
        e = L.append
        e('s_add_u32 s12, s96, s30')
        e('s_addc_u32 s13, s97, 0')
        e('s_mov_b32 s14, 0x40000')
        e('s_mov_b32 s15, 0x20000')
        e('s_movk_i32 %s, 0x4000' % sr(S_OFFK))
        e('s_mov_b32 %s, 0' % sr(S_OFFV))
        e('s_add_u32 %s, %s, %d' % (sr(S_M0V), sr(S_M0K), V_BASE))
        e('v_lshlrev_b32 v3, 1, v5')
        e('v_xor_b32 v3, v6, v3')
        e('v_lshl_add_u32 %s, v3, 4, v7' % vr(VDV))
        e('v_xor_b32 %s, 0x80, %s' % (vr(VDV + 1), vr(VDV)))
        return L

    def prologue(self, role):
        o = self.o
        mid = o.mid if role == 0 else o.mid1
        L = []
        e = L.append
        vm = ['K0'] * 4

        def issue(tag, txt):
            vm.append(tag)
            e(txt)

        def wait(tag):
            last = max(i for i, t in enumerate(vm) if t == tag)
            e('s_waitcnt vmcnt(%d)' % (len(vm) - 1 - last))

        def dma_qblk(j):
            e('s_add_u32 m0, %s, %d' % (sr(S_QLDS), 4096 * j))
            if j:
                e('s_add_u32 %s, %s, 4096' % (sr(S_QOFF), sr(S_QOFF)))
            else:
                e('s_nop 0')
            for i in range(4):
                issue('Q%d' % j, self.dma_q(i))

        def dma_tile(x):
            kind, t = x[0], int(x[1])
            if kind == 'Q':
                dma_qblk(t)
            elif kind == 'C':
                if o.cpf:
                    issue('C', 'global_load_dwordx4 %s, %s, s[34:35]' % (vr(V_O, 4), vr(V_O + 4)))
            elif kind == 'V':
                e('s_add_u32 m0, %s, %d' % (sr(S_M0V), ((t + 1) & 3) * 16384))
                e('s_nop 0')
                for i in range(4):
                    issue(x, self.dma_v(i))
                e('s_add_u32 %s, %s, 16384' % (sr(S_OFFV), sr(S_OFFV)))
            else:
                e('s_add_u32 m0, %s, %d' % (sr(S_M0K), t * 16384))
                e('s_nop 0')
                for i in range(4):
                    issue(x, self.dma_k(i))
                e('s_add_u32 %s, %s, 16384' % (sr(S_OFFK), sr(S_OFFK)))

        if role == 1:
            if o.cpf:
                e('s_getpc_b64 s[100:101]')
                issue('D', 'global_load_dwordx4 %s, v4, s[100:101]' % vr(V_C + 4, 4))
            L += self.v_setup()
            for x in o.pre1:
                if x[0] == 'w':
                    wait(x[1:])
                else:
                    dma_tile(x)
        L += self.stamp('ik')
        for j in range(4):
            if j < o.qearly:
                dma_qblk(j)
                L += self.stamp('i%d' % j)
        L += self.stamp('issued')
        e('v_and_b32 v1, 63, v0')
        if o.cpf:
            e('s_lshr_b32 s3, s2, 3')
            e('s_lshl2_add_u32 s3, s3, %s' % sr(S_W))
            e('s_and_b32 s3, s3, 31')
            e('s_min_u32 s3, s3, (L_slow - L_pc) / 1024 - 4')
            e('s_lshl_b32 s3, s3, 10')
            e('s_add_u32 s3, s3, 4096')
            e('s_add_u32 s34, s34, s3')
            e('s_addc_u32 s35, s35, 0')
            e('v_lshlrev_b32 %s, 4, v1' % vr(V_O + 4))
        if role == 0:
            L += self.v_setup()
        for x in mid[0]:
            dma_tile(x)
        e('s_add_u32 s16, s98, s31')
        e('s_addc_u32 s17, s99, 0')
        e('s_mov_b32 s18, 0x10000')
        e('s_mov_b32 s19, 0x20000')
        e('v_xor_b32 v3, v5, v6')
        e('v_lshlrev_b32 v4, 8, v6')
        e('v_lshl_add_u32 %s, v3, 4, v4' % vr(VKA))
        for st in range(1, 4):
            e('v_xor_b32 %s, %d, %s' % (vr(VKA + st), st << 6, vr(VKA)))
        for st in range(4):
            e('v_add_u32 %s, %s, %s' % (vr(VT + st), sr(S_QLDS), vr(VKA + st)))
        c = math.log2(math.e) / math.sqrt(128.0)
        e('s_mov_b32 %s, 0x%08x' % (sr(S_C), f2u(c)))
        e('s_mov_b32 %s, 0x%08x' % (sr(S_C + 1), f2u(c)))
        e('s_mov_b32 %s, 0x%08x' % (sr(S_THR), f2u(2.0 ** o.thr)))
        e('s_mov_b32 %s, 0xffff0000' % sr(S_TMP))
        e('v_lshrrev_b32 v3, 2, v1')
        e('v_lshlrev_b32 v2, 8, v3')
        e('v_and_b32 v3, 7, v3')
        e('v_lshl_add_u32 v2, v3, 5, v2')
        e('v_and_b32 v3, 3, v1')
        e('v_lshl_add_u32 v2, v3, 3, v2')
        e('v_add_u32 %s, %d, v2' % (vr(VVA), V_BASE))
        for db in range(1, 8):
            e('v_xor_b32 %s, %d, %s' % (vr(VVA + db), db << 5, vr(VVA)))
        e('s_mul_i32 %s, %s, %d' % (sr(S_STG), sr(S_W), 4 * OPITCH * 16))
        e('v_mul_u32_u24 v3, %d, v6' % OPITCH)
        e('v_lshl_add_u32 v3, v5, 3, v3')
        e('v_add_u32 %s, %s, v3' % (vr(VOW), sr(S_STG)))
        for qb in range(1, 4):
            e('v_add_u32 %s, %d, %s' % (vr(VOW + qb), qb * OPITCH * 16, vr(VOW)))
        e('v_mul_u32_u24 v3, %d, v5' % OPITCH)
        e('v_lshl_add_u32 v3, v6, 4, v3')
        e('v_add_u32 %s, %s, v3' % (vr(VOR), sr(S_STG)))
        e('s_lshl_b32 s3, %s, 14' % sr(S_W))
        e('v_lshlrev_b32 v3, 4, v1')
        e('v_add_u32 %s, s3, v3' % vr(VOG))
        for qb in range(1, 4):
            e('s_movk_i32 %s, %d' % (sr(S_OQ + qb), 4096 * qb))
        e('v_and_b32 v3, 3, v1')
        e('v_cmp_eq_u32 vcc, 0, v3')
        e('v_mov_b32 v2, 0x3f803f80')
        e('s_mov_b32 %s, 0' % sr(S_CNT))
        e('v_cndmask_b32 v3, 0, v2, vcc')
        for j in range(4):
            e('v_accvgpr_write_b32 %s, v3' % ar(A_1 + j))
        for qb in range(4 - o.sumadd, 4):
            e('v_mov_b32 %s, 0' % vr(VLS + qb))
        RAW = V_S + 32
        TM = V_S + 48

        def prescale(qb, st):
            b = RAW + 4 * st
            t0 = TM + 8 * (st & 1)
            P = []
            for j in range(4):
                P.append('v_lshlrev_b32 %s, 16, %s' % (vr(t0 + 2 * j), vr(b + j)))
                P.append('v_and_b32 %s, %s, %s' % (vr(t0 + 2 * j + 1), sr(S_TMP), vr(b + j)))
            for j in range(4):
                P.append('v_pk_mul_f32 %s, %s, %s' % (vr(t0 + 2 * j, 2), vr(t0 + 2 * j, 2), sr(S_C, 2)))
            for j in range(4):
                P.append('v_cvt_pk_bf16_f32 %s, %s, %s' % (vr(t0 + 2 * j), vr(t0 + 2 * j), vr(t0 + 2 * j + 1)))
            for j in range(4):
                P.append('v_accvgpr_write_b32 %s, %s' % (ar(A_Q + 16 * qb + 4 * st + j), vr(t0 + 2 * j)))
            return P

        F = []
        if o.stamps and 'code' in o.st:
            e('s_waitcnt vmcnt(%d)' % len(vm))
            L += self.stamp('code')
        if o.stamps and 'k0' in o.st:
            wait('K0')
            L += self.stamp('k0')
        for qb in range(4):
            wait('Q%d' % qb)
            L += self.stamp('q%d' % qb)
            for st in range(4):
                e('ds_read_b128 %s, %s offset:%d' % (vr(RAW + 4 * st, 4), vr(VT + st), 4096 * qb))
            nk = 0
            if qb == 2:
                for kb in range(2):
                    for st in range(4):
                        e(self.k_read(1, kb, st))
                nk = 8
            for x in mid[qb + 1]:
                dma_tile(x)
            if qb:
                if qb == 1:
                    e('s_waitcnt lgkmcnt(4)')
                for m in self.c0_mfmas(qb - 1):
                    e(m)
                    cost = 0
                    while F and cost + I(F[0]).slots() <= 2:
                        cost += I(F[0]).slots()
                        e(F.pop(0))
                L += F
                F = []
            D = self.dmax(qb - 1) if 0 < qb < 3 else []
            for st in range(4):
                e('s_waitcnt lgkmcnt(%d)' % (3 - st + nk))
                P = prescale(qb, st)
                if st == 0 or not D:
                    L += P
                else:
                    for i, p in enumerate(P):
                        e(p)
                        if i % 3 == 2 and D:
                            e(D.pop(0))
            L += D
            if 0 < qb < 3:
                F = self.deferred(qb - 1)
                keep = []
                cost = 0
                while F and cost + I(F[-1]).slots() <= 16:
                    cost += I(F[-1]).slots()
                    keep.insert(0, F.pop())
                L += F
                F = keep
            if qb == 0:
                e('s_barrier')
                for st in range(4):
                    for kb in range(2):
                        e(self.k_read(0, kb, st, dst=A_K0))
        for x in mid[5]:
            dma_tile(x)
        vm += [x for x in mid[6] for _ in range(4)]
        kv = [x for x in vm if x[0] in 'KV']
        assert kv == [x for x in ['K0', 'V0', 'K1', 'V1', 'K2'] for _ in range(4)], vm
        self.vmw0 = len(vm) - 1 - max(i for i, x in enumerate(vm) if x in ('K1', 'C', 'D'))
        L += self.stamp()
        e('s_waitcnt lgkmcnt(0)')
        return L

    def c0_mfmas(self, qb):
        return [self.qk_mfma(0, kb, st, qb, czero=True, ksrc=A_K0) for st in range(4) for kb in range(2)]

    def dmax(self, qb):
        T = VT + 4 + 2 * (qb & 1)
        sq = S(0, qb, 0)
        D = ['v_max3_f32 %s, %s, %s, %s' % (vr(T), vr(sq), vr(sq + 1), vr(sq + 2)),
             'v_max3_f32 %s, %s, %s, %s' % (vr(T + 1), vr(sq + 4), vr(sq + 5), vr(sq + 6)),
             'v_max3_f32 %s, %s, %s, %s' % (vr(T), vr(T), vr(sq + 3), vr(sq + 7)),
             'v_max_f32 %s, %s, %s' % (vr(T), vr(T), vr(T + 1))]
        for sw in ('v_permlane32_swap_b32', 'v_permlane16_swap_b32'):
            D += ['v_mov_b32 %s, %s' % (vr(T + 1), vr(T)), '%s %s, %s' % (sw, vr(T), vr(T + 1)), 'v_max_f32 %s, %s, %s' % (vr(T), vr(T), vr(T + 1))]
        D += ['v_sub_f32 %s, 0, %s' % (vr(V_C + 4 * qb + r), vr(T)) for r in range(4)]
        return D

    def deferred(self, qb):
        sq = S(0, qb, 0)
        out = ['v_add_f32 %s, %s, %s' % (vr(sq + r), vr(sq + r), vr(V_C + 4 * qb)) for r in range(8)]
        seq = [z for kb in range(2) for z in self.sm_seq(0)[16 * kb + 4 * qb:16 * kb + 4 * qb + 4]]
        pend = []
        for ex, cv in seq:
            out.append(ex)
            out += pend
            pend = ([self.add_of(ex, qb)] if qb >= 4 - self.o.sumadd else []) + ([cv] if cv else [])
        return out + ['s_nop 0'] + pend

    def first_period(self, vmw, late):
        o = self.o
        nsum = 4 - o.sumadd
        mf = self.c0_mfmas(3)
        order = [(kb, st, qb) for qb in range(4) for kb in range(2) for st in range(4)]
        mf += [self.qk_mfma(1, *a) for a in order]
        PV0 = 40 + nsum
        mf += [self.sum_mfma(0, qb, czero=True) for qb in range(nsum)]
        mf += [self.pv_mfma(0, *a, czero=True) for a in self.pv_order()]
        N = len(mf)
        shadow = [[] for _ in range(N)]
        valu = [[] for _ in range(N)]

        def spaced(D):
            out = []
            for l in D:
                if l.startswith('v_permlane'):
                    out.append('s_nop 1')
                out.append(l)
            return out
        q1 = [(0, l) for l in spaced(self.dmax(2))] + [(0, l) for l in self.deferred(2)[:8]] + [(11, l) for l in spaced(self.dmax(3))]
        q1 += [(0, l) for l in self.deferred(2)[8:]] + [(0, l) for l in self.deferred(3)]
        sm = self.sm_seq(1)
        q2 = []
        pend = []
        for qb in range(4):
            for kb in range(2):
                ready = 8 + 8 * qb + 4 * kb + 3 + 4
                for ex, cv in sm[16 * kb + 4 * qb:16 * kb + 4 * qb + 4]:
                    q2.append((ready, ex))
                    q2 += pend
                    pend = [(ready, l) for l in ([self.add_of(ex, qb)] if qb >= nsum else []) + ([cv] if cv else [])]
        q2 += [(0, 's_nop 0')] + pend
        bar = o.bargap0
        shadow[bar] += ['s_waitcnt vmcnt(%d)' % vmw, 's_barrier']
        g = bar + 1
        for db in range(8):
            for t_ in range(2):
                shadow[g].append(self.v_read(0, db, t_))
                g += 1
        g = max(g, 40)
        for kb in range(2):
            for st in range(4):
                shadow[g].append(self.k_read(2, kb, st))
                g += o.kstep0
        assert g < N - 4, g
        self.place_waits(mf, shadow, valu, 4)
        shadow[N - 2].insert(0, 's_waitcnt lgkmcnt(0)')
        g = 1
        for x in list(late) + ['K3']:
            if x == 'K3':
                g = max(g, bar + 1)
            tt = int(x[1:])
            m0, off, fn = (S_M0V, S_OFFV, self.dma_v) if x[0] == 'V' else (S_M0K, S_OFFK, self.dma_k)
            shadow[g].append('s_add_u32 m0, %s, %d' % (sr(m0), ((tt + (x[0] == 'V')) & 3) * 16384))
            g += 1
            for i in range(4):
                shadow[g].append(fn(i))
                g += o.dstep if x != 'K3' else 6
            shadow[g - 1].append('s_add_u32 %s, %s, 16384' % (sr(off), sr(off)))
            if x != 'K3':
                assert g <= bar, g
        for g in range(N):
            left = sum(I(l).slots() for _, l in q1 + q2)
            cap = 3 if (q1 or left > 2 * (N - g)) else 2
            if g == N - 1:
                cap = 1000
            cost = 0
            while True:
                q = q1 if q1 else q2
                if not q or q[0][0] > g:
                    q = q2 if (q is q1 and q2 and q2[0][0] <= g) else None
                if not q or cost + I(q[0][1]).slots() > cap:
                    break
                cost += I(q[0][1]).slots()
                valu[g].append(q.pop(0)[1])
            if g == 38:
                assert not q1, len(q1)
        out = []
        for g in range(N):
            out.append(mf[g])
            out += shadow[g] + valu[g]
        return out

    def norm_group(self, qb, j, packed):
        rc = VT + 4 + 2 * qb
        a, b = O(qb, 2 * j), O(qb, 2 * j + 1)
        V = []
        if packed:
            for k in range(4):
                V.append('v_pk_mul_f32 %s, %s, %s op_sel_hi:[1,0]' % (vr(a + 2 * k, 2), vr(a + 2 * k, 2), vr(rc, 2)))
        else:
            for k in range(8):
                V.append('v_mul_f32 %s, %s, %s' % (vr(a + k), vr(a + k), vr(rc)))
        V.append('v_cvt_pk_bf16_f32 %s, %s, %s' % (vr(a), vr(a), vr(a + 1)))
        V.append('v_cvt_pk_bf16_f32 %s, %s, %s' % (vr(a + 1), vr(a + 2), vr(a + 3)))
        V.append('v_cvt_pk_bf16_f32 %s, %s, %s' % (vr(a + 2), vr(b), vr(b + 1)))
        V.append('v_cvt_pk_bf16_f32 %s, %s, %s' % (vr(a + 3), vr(b + 2), vr(b + 3)))
        W = 'ds_write2_b64 %s, %s, %s offset0:%d offset1:%d' % (vr(VOW + qb), vr(a, 2), vr(a + 2, 2), 8 * j, 8 * j + 4)
        return V, [], W

    def norm_stream(self, groups, packed):
        out, pend = [], []
        for qb, j in groups:
            V, X, W = self.norm_group(qb, j, packed)
            out.append(V + [W])
        return out, pend

    def o_reads(self, qb):
        return ['ds_read_b128 %s, %s offset:%d' % (vr(O(qb, 2 * i + 1), 4), vr(VOR), OPITCH * (16 * qb + 4 * i)) for i in range(4)]

    def o_stores(self, qb):
        return ['buffer_store_dwordx4 %s, %s, %s, %s offen offset:%d %s' % (vr(O(qb, 2 * i + 1), 4), vr(VOG), sr(S_OD, 4), sr(S_OQ + qb) if qb else '0', 1024 * i, self.o.oflag)
                for i in range(4)]

    @staticmethod
    def cost(l):
        x = I(l)
        if x.kind == 'valu' and (x.trans or x.op.startswith('v_permlane')):
            return 2
        if x.kind == 'nop':
            return x.n
        return 1

    def pack(self, mf, streams, cap):
        out = []
        N = len(mf)
        ismem = lambda l: I(l).kind in ('dsr', 'dsw', 'vst', 'dma', 'wait', 'barrier', 'sctl', 'salu')
        for g in range(N):
            mem, val = [], []
            c = 0
            for q in streams:
                while q and q[0][0] <= g and ismem(q[0][1]) and len(mem) < self.o.fmem:
                    mem.append(q.pop(0)[1])
                    c += 1
            for q in streams:
                while q and q[0][0] <= g and not ismem(q[0][1]) and c + self.cost(q[0][1]) <= cap(g):
                    c += self.cost(q[0][1])
                    val.append(q.pop(0)[1])
            out.append(mf[g])
            out += mem + val
        rest = [l for q in streams for _, l in q]
        return out, rest

    @staticmethod
    def auto_lgkm(lines, age=16):
        out, pend = [], []
        for k, l in enumerate(lines):
            x = I(l)
            if x.kind == 'wait' and x.lgkm is not None:
                pend = pend[len(pend) - x.lgkm:] if x.lgkm else []
            touched = set(x.uses) | set(x.defs)
            idx = [i for i, (r, _) in enumerate(pend) if touched & set(r)]
            if idx:
                last = max(idx)
                while last + 1 < len(pend) and pend[last + 1][1] <= k - age:
                    last += 1
                n = min(15, len(pend) - 1 - last)
                out.append('s_waitcnt lgkmcnt(%d)' % n)
                pend = pend[len(pend) - n:] if n else []
            out.append(l)
            if x.kind == 'dsr':
                pend.append((x.defs, k))
            if x.kind == 'dsw':
                pend.append(([], k))
        return out

    @staticmethod
    def fix_hazards(prefix, lines):
        lines = list(lines)
        for _ in range(200):
            pr = [p for p in check_trace(prefix + lines) if int(p.split(':')[0]) >= len(prefix)]
            if not pr:
                return lines
            p = pr[0]
            m = re.search(r'needs (\d+),? has (\d+)', p)
            n = int(m.group(1)) - int(m.group(2)) if m else 1
            assert m or 'needs' in p or 'WAR' in p, p
            lines.insert(int(p.split(':')[0]) - len(prefix), 's_nop %d' % (n - 1))
        raise RuntimeError('hazards keep coming')

    def final_phase(self):
        o = self.o
        T = VT
        assert o.sumadd == 0
        mf = [self.qk_mfma(31, kb, st, qb) for qb in range(4) for kb in range(2) for st in range(4)]
        B0 = [32 + 18 * qb for qb in range(4)]
        for qb in range(4):
            mf += [self.sum_mfma(30, qb), self.sum_mfma(31, qb)]
            for db in range(8):
                mf += [self.pv_mfma(30, db, qb), self.pv_mfma(31, db, qb, src=A_K0)]
        s1 = [(0, 's_waitcnt vmcnt(0)'), (0, 's_barrier')]
        k = 0
        for db in range(8):
            for x, dst in ((30, A_V), (31, A_K0)):
                for t_ in range(2):
                    s1.append((1 + (k * o.fvr) // 8, self.v_read(x, db, t_, dst=dst)))
                    k += 1
        s1.append((31, 's_waitcnt lgkmcnt(0)'))
        sm = self.sm_seq(31)
        s2, pend = [], []
        for qb in range(4):
            for kb in range(2):
                ready = 8 * qb + 4 * kb + 3 + 3
                for ex, cv in sm[16 * kb + 4 * qb:16 * kb + 4 * qb + 4]:
                    s2.append((ready, ex))
                    s2 += pend
                    pend = [(ready, cv)] if cv else []
        s2 += [(0, 's_nop 0')] + pend
        s3 = []
        for qb in range(4):
            r = B0[qb] + 1 + 3
            s3 += [(r, 'v_accvgpr_read_b32 %s, %s' % (vr(T + qb), ar(A_L + 4 * qb))),
                   (r, 'v_cmp_ngt_f32 vcc, %s, %s' % (sr(S_THR), vr(T + qb))),
                   (r, 'v_rcp_f32 %s, %s' % (vr(T + 4 + 2 * qb), vr(T + qb))),
                   (r + 1, 's_cbranch_vccnz L_slow' if not o.exp else 's_nop 0')]
        groups = [(qb, j) for qb in range(4) for j in range(4)]
        s4, pend = [], []
        assert o.fsd >= 1
        stores = []
        for n, (qb, j) in enumerate(groups):
            ready = max(B0[qb] + 2 + 4 * j + 3 + 3, B0[qb] + 7)
            late = ready >= len(mf) - o.fpk
            V, X, W = self.norm_group(qb, j, late)
            if late:
                ready = len(mf) + 1
            s4 += [(ready, l) for l in V + [W]]
            if j == 3:
                s4 += [(ready, l) for l in self.o_reads(qb)]
                st = self.o_stores(qb)
                for i in range(4):
                    stores.append((n + o.fsd + i, [st[i]]))
            for z in [z for z in stores if z[0] == n]:
                s4 += [(ready, l) for l in z[1]]
        s4 += [(len(mf) + 1, l) for l in pend]
        for z in stores:
            if z[0] >= len(groups):
                s4 += [(len(mf) + 1, l) for l in z[1]]
        cap = lambda g: o.fcap[0] if g < o.fcap[1] else o.fcap[2]
        out, rest = self.pack(mf, [s1, s3, s2, s4], cap)
        return self.auto_lgkm(out + rest)

    def plain_store(self):
        G, pend = self.norm_stream([(qb, j) for qb in range(4) for j in range(4)], True)
        L = [l for x in G for l in x] + pend
        for qb in range(4):
            L += self.o_reads(qb)
        L.append('s_waitcnt lgkmcnt(0)')
        for qb in range(4):
            L += self.o_stores(qb)
        return L

    def slow_path(self):
        L = []
        e = L.append
        T = VT
        M = V_C
        SK = V_S + 32
        SV = SK + 1
        SVA = SK + 4
        e('L_slow:')
        e('s_waitcnt vmcnt(0) lgkmcnt(0)')
        e('s_nop 7')
        e('v_mbcnt_lo_u32_b32 v1, -1, 0')
        e('v_mbcnt_hi_u32_b32 v1, -1, v1')
        e('v_and_b32 v2, 15, v1')
        e('v_lshrrev_b32 v3, 4, v1')
        e('v_lshlrev_b32 v2, 8, v2')
        e('v_lshl_add_u32 %s, v3, 4, v2' % vr(SK))
        e('v_subrev_u32 %s, %s, %s' % (vr(SV), sr(S_M0K), vr(VDV)))
        e('v_subrev_u32 %s, %s, %s' % (vr(SV + 1), sr(S_M0K), vr(VDV + 1)))
        e('s_mov_b32 s34, %s' % sr(S_STG))
        e('s_sub_u32 s3, s34, %d' % V_BASE)
        for db in range(8):
            e('v_add_u32 %s, s3, %s' % (vr(SVA + db), vr(VVA + db)))
        for i in range(128):
            e('v_mov_b32 %s, 0' % vr(V_O + i))
        for qb in range(4):
            e('v_mov_b32 %s, 0xff7fffff' % vr(M + qb))
            e('v_mov_b32 %s, 0' % vr(M + 4 + qb))
        e('s_mov_b32 %s, 0' % sr(S_CNT))
        e('L_slow_loop:')
        e('s_mov_b32 m0, s34')
        e('s_add_u32 s31, %s, 4096' % sr(S_CNT))
        for i in range(4):
            e('buffer_load_dwordx4 %s, %s, %s offen offset:%d lds' % (vr(SV + (i & 1)), sr(S_V, 4), sr(S_CNT), 1024 * i))
        e('s_add_u32 m0, s34, 4096')
        e('s_nop 0')
        for i in range(4):
            e('buffer_load_dwordx4 %s, %s, s31 offen offset:%d lds' % (vr(SV + (i & 1)), sr(S_V, 4), 1024 * i))
        for kb in range(2):
            for st in range(4):
                e('buffer_load_dwordx4 %s, %s, %s, %s offen offset:%d' % (ar(A_K + 16 * kb + 4 * st, 4), vr(SK), sr(S_K, 4), 's31' if kb else sr(S_CNT), 64 * st))
        e('s_waitcnt vmcnt(0)')
        for kb in range(2):
            for st in range(4):
                for qb in range(4):
                    e(self.qk_mfma(0, kb, st, qb, czero=True))
        for db in range(8):
            for t in range(2):
                e(self.v_read(0, db, t, addr=SVA, base=0))
        for qb in range(4):
            s = S(0, qb, 0)
            e('v_max3_f32 %s, %s, %s, %s' % (vr(T + qb), vr(M + qb), vr(s), vr(s + 1)))
            for k in range(1, 4):
                e('v_max3_f32 %s, %s, %s, %s' % (vr(T + qb), vr(T + qb), vr(s + 2 * k), vr(s + 2 * k + 1)))
        L += self.xlane('v_max_f32', [T + q for q in range(4)], [T + 4 + q for q in range(4)])
        for qb in range(4):
            e('v_sub_f32 %s, %s, %s' % (vr(M + 8 + qb), vr(M + qb), vr(T + qb)))
        for qb in range(4):
            e('v_exp_f32 %s, %s' % (vr(M + 8 + qb), vr(M + 8 + qb)))
        for qb in range(4):
            e('v_mov_b32 %s, %s' % (vr(M + qb), vr(T + qb)))
        for qb in range(4):
            s = S(0, qb, 0)
            for r in range(8):
                e('v_sub_f32 %s, %s, %s' % (vr(s + r), vr(s + r), vr(T + qb)))
            for r in range(8):
                e('v_exp_f32 %s, %s' % (vr(s + r), vr(s + r)))
            e('v_mul_f32 %s, %s, %s' % (vr(M + 4 + qb), vr(M + 4 + qb), vr(M + 8 + qb)))
            for r in range(8):
                e('v_add_f32 %s, %s, %s' % (vr(M + 4 + qb), vr(M + 4 + qb), vr(s + r)))
            for j in range(4):
                e('v_cvt_pk_bf16_f32 %s, %s, %s' % (vr(s + j), vr(s + 2 * j), vr(s + 2 * j + 1)))
            for i in range(32):
                e('v_mul_f32 %s, %s, %s' % (vr(O(qb, 0) + i), vr(O(qb, 0) + i), vr(M + 8 + qb)))
        e('s_waitcnt lgkmcnt(0)')
        e('s_nop 1')
        for db in range(8):
            for qb in range(4):
                e(self.pv_mfma(0, db, qb))
        e('s_nop 7')
        e('s_add_u32 %s, %s, 8192' % (sr(S_CNT), sr(S_CNT)))
        e('s_cmp_lt_u32 %s, 0x40000' % sr(S_CNT))
        e('s_cbranch_scc1 L_slow_loop')
        for qb in range(4):
            e('v_mov_b32 %s, %s' % (vr(T + qb), vr(M + 4 + qb)))
        L += self.xlane('v_add_f32', [T + q for q in range(4)], [T + 4 + q for q in range(4)])
        for qb in range(4):
            e('v_rcp_f32 %s, %s' % (vr(T + 4 + 2 * qb), vr(T + qb)))
        e('s_nop 0')
        L += self.plain_store()
        e('s_branch L_end')
        return L

    def stamps_out(self):
        if not self.o.stamps:
            return []
        L = []
        e = L.append
        L += self.stamp('stored')
        e('s_waitcnt vmcnt(0) lgkmcnt(0)')
        e('s_memrealtime s[94:95]')
        L += self.stamp()
        e('s_waitcnt lgkmcnt(0)')
        e('s_mov_b32 s84, s90')
        e('s_mov_b32 s85, s91')
        e('s_mov_b32 s86, 0x100000')
        e('s_mov_b32 s87, 0x20000')
        e('s_getreg_b32 s88, hwreg(HW_REG_XCC_ID)')
        e('s_getreg_b32 s89, hwreg(HW_REG_HW_ID)')
        e('s_lshl_b32 s3, s2, 2')
        e('s_add_u32 s3, s3, %s' % sr(S_W))
        e('s_lshl_b32 s3, s3, 8')
        e('v_mov_b32 v1, s3')
        vals = [92, 93, 94, 95, 88, 89] + [S_TS + 4 * k for k in range(10)] + [S_TS + 4 * k + 2 for k in range(10)]
        e('s_mov_b64 exec, 1')
        for k, s in enumerate(vals):
            e('v_mov_b32 v2, s%d' % s)
            e('buffer_store_dword v2, v1, s[84:87], 0 offen offset:%d' % (4 * k))
        if self.o.probe:
            kind, a, b, wg = self.o.probe.split(',')
            a, b = int(a), int(b)
            e('s_cmp_eq_u32 s2, %s' % wg)
            e('s_cbranch_scc0 L_done')
            e('s_cmp_eq_u32 %s, 0' % sr(S_W))
            e('s_cbranch_scc0 L_done')
            if kind == 'rt':
                e('s_sub_u32 s30, s%d, s%d' % (S_TS + 4 * b + 2, S_TS + 4 * a + 2))
                e('s_mul_i32 s30, s30, 10')
            else:
                e('s_sub_u32 s30, s%d, s%d' % (S_TS + 4 * b, S_TS + 4 * a))
                e('s_lshr_b32 s30, s30, 2')
            e('s_add_u32 s30, s30, 10000')
            if self.o.pre:
                e('s_load_dword s92, s[90:91], 0x80000')
                e('s_waitcnt lgkmcnt(0)')
            e('L_spin:')
            e('s_sleep 1')
            e('s_memrealtime s[34:35]')
            e('s_waitcnt lgkmcnt(0)')
            e('s_sub_u32 s34, s34, s92')
            e('s_cmp_lt_u32 s34, s30')
            e('s_cbranch_scc1 L_spin')
        return L

    def build(self):
        o = self.o
        com = self.common()
        n0 = self.nts
        pro1 = []
        if o.roles:
            pro1 = ['L_role1:'] + self.prologue(1)
            pro1 += self.first_period(self.vmw0, o.mid1[6]) + self.stamp('first') + ['s_branch L_loop']
            self.nts = n0
        pro = com + self.prologue(0)
        first = self.first_period(self.vmw0, o.mid[6]) + self.stamp('first')
        body = [self.period(u) for u in range(1, 9)]
        st_body = self.stamp('body')
        last = [self.period(25), self.period(26, dma=False), self.period(27), self.period(28, dma=False, vmw=4),
                self.period(29, dma=False)]

        def put_shadow(p, slot, lines):
            n = -1
            for i, l in enumerate(p):
                if l.startswith(MF):
                    n += 1
                    if n == slot:
                        return p[:i + 1] + lines + p[i + 1:]
            raise ValueError
        nm = sum(l.startswith(MF) for l in body[0])
        inc, cmp_ = 's_add_u32 %s, %s, 1' % (sr(S_CNT), sr(S_CNT)), 's_cmp_lt_u32 %s, 3' % sr(S_CNT)
        if nm:
            body[7] = put_shadow(body[7], 2, [inc])
            body[7] = put_shadow(body[7], nm - 3, [cmp_])
            tl = body[7][body[7].index(cmp_) + 1:]
            assert not any(l.startswith('s_add') for l in tl)
            body[7] = put_shadow(body[7], nm - 1, ['s_cbranch_scc1 L_loop_x'])
            k = body[7].index('s_cbranch_scc1 L_loop_x')
            rest = body[7][k + 1:]
            body[7] = body[7][:k] + rest + ['s_cbranch_scc1 L_loop']
        else:
            body[7] += [inc, cmp_, 's_cbranch_scc1 L_loop']
        st_loop = self.stamp()
        trace = list(pro) + first
        for it in range(3):
            for b in body:
                trace += b
        for b in last:
            trace += b
        trace += st_loop
        fin = self.fix_hazards(last[-1], self.final_phase())
        for pat in o.drop:
            fin = [l for l in fin if not l.startswith(pat)]
        so = self.stamps_out()
        slow = self.slow_path()

        text = list(pro) + first
        if o.align:
            text.append('.p2align %d' % o.align)
        text.append('L_loop:')
        for b in body:
            text += b
        text += st_body
        for b in last:
            text += b
        text += st_loop + fin
        text.append('L_end:')
        text += so
        text.append('L_done:')
        text.append('s_endpgm')
        text += pro1
        text += slow

        probs = check_trace(trace + fin + so)
        if o.roles:
            probs += check_trace(com + pro1 + body[0] + body[1] + body[2])
        i0 = slow.index('L_slow_loop:')
        i1 = slow.index('s_cbranch_scc1 L_slow_loop')
        for kb in [i for i, l in enumerate(fin) if 'L_slow' in l]:
            probs += check_trace(last[-1] + fin[:kb + 1] + slow[:i1 + 1] + slow[i0:])
        return text, probs, [first, body[0], body[1], fin]

    def emit(self):
        text, probs, body = self.build()
        hdr = open(self.o.ref).read().split('\n')
        out = []
        for l in hdr:
            if l.startswith('; @launch'):
                if self.o.pre:
                    out.append('; @launch kernel=pre_kernel grid=(%d,1,1) block=(64,1,1) lds=0' % self.o.pre)
                    out.append('; @launch kernel=%s_kernel grid=(256,1,1) block=(256,1,1) lds=163840' % NAME)
                else:
                    out.append('; @launch grid=(256,1,1) block=(256,1,1) lds=163840')
            elif l.startswith(';'):
                out.append(l)
            else:
                break
        out += ['.amdgcn_target "amdgcn-amd-amdhsa--gfx950"', '.text', '.globl %s_kernel' % NAME, '.p2align 8',
                '.type %s_kernel,@function' % NAME, '%s_kernel:' % NAME]
        for l in text:
            out.append(l if (l.endswith(':') or l.startswith('.')) else '    ' + l)
        if self.o.pre:
            out += ['.globl pre_kernel', '.p2align 8', '.type pre_kernel,@function', 'pre_kernel:',
                    's_memrealtime s[4:5]', 's_load_dwordx2 s[8:9], s[0:1], 40', 's_cmp_eq_u32 s2, 0', 's_cbranch_scc0 L_pre_done', 's_waitcnt lgkmcnt(0)',
                    's_mov_b32 s10, 0x100000', 's_mov_b32 s11, 0x20000', 'v_mov_b32 v1, 0x80000', 'v_mov_b32 v2, s4', 's_mov_b64 exec, 1',
                    'buffer_store_dword v2, v1, s[8:11], 0 offen', 'L_pre_done:', 's_endpgm',
                    '.section .rodata,"a"', '.p2align 6', '.amdhsa_kernel pre_kernel', '  .amdhsa_next_free_vgpr 8', '  .amdhsa_next_free_sgpr 16', '  .amdhsa_accum_offset 8',
                    '  .amdhsa_group_segment_fixed_size 0', '  .amdhsa_kernarg_size 48', '  .amdhsa_user_sgpr_count 2', '  .amdhsa_user_sgpr_kernarg_segment_ptr 1',
                    '  .amdhsa_system_sgpr_workgroup_id_x 1', '.end_amdhsa_kernel']
        out += ['.section .rodata,"a"', '.p2align 6', '.amdhsa_kernel %s_kernel' % NAME,
                '  .amdhsa_next_free_vgpr 448', '  .amdhsa_next_free_sgpr 102', '  .amdhsa_accum_offset 256',
                '  .amdhsa_group_segment_fixed_size 0', '  .amdhsa_kernarg_size 48', '  .amdhsa_user_sgpr_count 2',
                '  .amdhsa_user_sgpr_kernarg_segment_ptr 1', '  .amdhsa_system_sgpr_workgroup_id_x 1',
                '  .amdhsa_float_denorm_mode_32 3', '  .amdhsa_float_denorm_mode_16_64 3',
                '.end_amdhsa_kernel', '']
        return '\n'.join(out), probs, body


def ilist(s):
    return [int(x) for x in s.split(',')]


def parse(argv):
    ap = argparse.ArgumentParser()
    ap.add_argument('-o', default='cdna_kernels/%s.s' % NAME)
    ap.add_argument('--ref', default='cdna_kernels/%s.s.ref' % NAME)
    ap.add_argument('--k0', type=int, default=8)
    ap.add_argument('--thr', type=float, default=40)
    ap.add_argument('--stamps', action='store_true')
    ap.add_argument('--st', type=lambda s: s.split(','), default=['q0', 'q3', 'first', 'body', 'tail', 'stored'])
    ap.add_argument('--probe', default='')
    ap.add_argument('--pre', type=int, default=0)
    ap.add_argument('--cpf', type=int, default=1)
    ap.add_argument('--dstep', type=int, default=3)
    ap.add_argument('--epi', type=ilist, default=[1, 1])
    ap.add_argument('--r0', type=int, default=1)
    ap.add_argument('--wplus', type=int, default=1)
    ap.add_argument('--drop', type=lambda s: s.split(','), default=[])
    ap.add_argument('--touch', default='')
    ap.add_argument('--qearly', type=int, default=3)
    ap.add_argument('--fake', type=int, default=0)
    ap.add_argument('--fmem', type=int, default=2)
    ap.add_argument('--fvr', type=int, default=6)
    ap.add_argument('--fpk', type=int, default=4)
    ap.add_argument('--fsd', type=int, default=1)
    ap.add_argument('--fcap', type=ilist, default=[2, 10, 4])
    ap.add_argument('--nodma', action='store_true')
    ap.add_argument('--nobar', action='store_true')
    ap.add_argument('--show', action='store_true')
    ap.add_argument('--exp', default='')
    ap.add_argument('--qkord', type=int, default=1)
    ap.add_argument('--pvord', type=int, default=2)
    ap.add_argument('--align', type=int, default=6)
    ap.add_argument('--maxds', type=int, default=2)
    ap.add_argument('--bargap', type=int, default=0)
    ap.add_argument('--vwait', type=int, default=2)
    ap.add_argument('--kwait', type=int, default=1)
    ap.add_argument('--sumadd', type=int, default=0)
    ap.add_argument('--kper', type=int, default=1)
    ap.add_argument('--dgap', type=int, default=19)
    ap.add_argument('--dstride', type=int, default=4)
    ap.add_argument('--egaps', type=ilist, default=list(range(7, 62, 2)) + [62, 63, 65, 66])
    ap.add_argument('--kgaps', type=ilist, default=[34, 36, 38, 40, 42, 46, 48, 50])
    ap.add_argument('--dgaps', type=ilist, default=[43, 44, 52, 56, 60, 61])
    ap.add_argument('--mid', type=lambda s: [x.split(',') if x else [] for x in s.split('/')], default=[[], ['Q3', 'C0'], ['V0'], ['K1'], [], [], ['V1', 'K2']])
    ap.add_argument('--dgaps0', type=ilist, default=[51, 52, 56, 60, 64, 65])
    ap.add_argument('--roles', type=int, default=1)
    ap.add_argument('--pre1', type=lambda s: s.split(',') if s else [], default=['V0'])
    ap.add_argument('--mid1', type=lambda s: [x.split(',') if x else [] for x in s.split('/')], default=[[], ['Q3', 'C0'], ['K1'], [], [], [], ['V1', 'K2']])
    ap.add_argument('--bargap0', type=int, default=32)
    ap.add_argument('--kstep0', type=int, default=2)
    ap.add_argument('--kvflag', type=lambda s: s.replace('+', ' ') + ' ' if s else '', default='')
    ap.add_argument('--qflag', type=lambda s: s.replace('+', ' ') + ' ' if s else '', default='')
    ap.add_argument('--oflag', type=lambda s: s.replace('+', ' '), default='nt')
    return ap.parse_args(argv)


if __name__ == '__main__':
    o = parse(sys.argv[1:])
    g = Gen(o)
    s, probs, body = g.emit()
    open(o.o, 'w').write(s)
    if o.show:
        for p in body:
            cur = []
            for l in p + [MF]:
                if l.startswith(MF):
                    print(' | '.join(cur))
                    cur = []
                cur.append(l.split()[0].replace('v_mfma_f32_16x16x32_bf16', 'M').replace('buffer_load_dwordx4', 'DMA'))
    for p in probs[:40]:
        print('HAZARD', p)
    print('%d hazard findings' % len(probs))
```

```python
import sys, math, struct, argparse, re
from asmlib import I, check_trace

NAME = 'standalone__gqa_softmax__near_ridge'

V_O = 8
V_S = 136
V_C = 200
VKA = 216
VVA = 220
VDK = 228
VDV = 232
VOW = 234
VOR = 238
VOG = 240
VT = 244
VLS = 0
A_Q = 0
A_K = 64
A_V = 96
A_L = 128
A_1 = 144
A_K0 = 160
A_K1 = 192

S_Q, S_K, S_V, S_OD = 4, 8, 12, 16
S_W, S_M0K, S_M0V, S_OFFK, S_OFFV, S_CNT = 20, 21, 22, 23, 24, 25
S_C = 26
S_QOFF = 28
S_THR = 29
S_TMP = 30
S_QLDS = 33
S_STG = 32
S_OQ = 80
OPITCH = 272
S_TS = 40

V_BASE = 98304
SPARE = 65536
MF = 'v_mfma_f32_16x16x32_bf16'


def f2u(x):
    return struct.unpack('<I', struct.pack('<f', x))[0]


def vr(b, n=1):
    return 'v%d' % b if n == 1 else 'v[%d:%d]' % (b, b + n - 1)


def ar(b, n=1):
    return 'a%d' % b if n == 1 else 'a[%d:%d]' % (b, b + n - 1)


def sr(b, n=1):
    return 's%d' % b if n == 1 else 's[%d:%d]' % (b, b + n - 1)


def S(x, qb, kb):
    return V_S + 32 * (x & 1) + 8 * qb + 4 * kb


def O(qb, db):
    return V_O + 32 * qb + 4 * db


class Gen:
    def __init__(self, opt):
        self.o = opt
        self.nts = 0

    def qk_order(self):
        if self.o.qkord == 0:
            return [(kb, st, qb) for kb in range(2) for st in range(4) for qb in range(4)]
        if self.o.qkord == 1:
            return [(kb, st, qb) for kb in range(2) for qb in range(4) for st in range(4)]
        if self.o.qkord == 3:
            return [(kb, st if qb % 2 == 0 else 3 - st, qb, st == 0) for kb in range(2) for qb in range(4) for st in range(4)]
        return [(kb, st, 2 * h + j) for kb in range(2) for h in range(2) for st in range(4) for j in range(2)]

    def pv_order(self):
        if self.o.pvord == 0:
            return [(db, qb) for db in range(8) for qb in range(4)]
        if self.o.pvord == 1:
            return [(db, qb) for qb in range(4) for db in range(8)]
        return [(db, 2 * h + j) for h in range(2) for db in range(8) for j in range(2)]

    def qk_mfma(self, x, kb, st, qb, first=None, czero=False, ksrc=A_K):
        d = vr(S(x, qb, kb), 4)
        if first is None:
            first = st == 0
        c = d if not first else ('0' if czero else vr(V_C + 4 * qb, 4))
        return '%s %s, %s, %s, %s' % (MF, d, ar(ksrc + 16 * kb + 4 * st, 4), ar(A_Q + 16 * qb + 4 * st, 4), c)

    def pv_mfma(self, x, db, qb, src=A_V, czero=False):
        o = vr(O(qb, db), 4)
        return '%s %s, %s, %s, %s' % (MF, o, ar(src + 4 * db, 4), vr(S(x, qb, 0), 4), '0' if czero else o)

    def sum_mfma(self, x, qb, czero=False):
        l = ar(A_L + 4 * qb, 4)
        return '%s %s, %s, %s, %s' % (MF, l, ar(A_1, 4), vr(S(x, qb, 0), 4), '0' if czero else l)

    def k_read(self, x, kb, st, dst=A_K):
        off = ((x >> 1) & 3) * 16384 + (x & 1) * 8192 + kb * 4096
        return 'ds_read_b128 %s, %s offset:%d' % (ar(dst + 16 * kb + 4 * st, 4), vr(VKA + st), off)

    def v_read(self, x, db, t, addr=VVA, base=None, dst=A_V):
        off = (((x >> 1) + 1) & 3) * 16384 + (x & 1) * 8192 if base is None else base
        off += t * 4096
        return 'ds_read_b64_tr_b16 %s, %s offset:%d' % (ar(dst + 4 * db + 2 * t, 2), vr(addr + db), off)

    def sm_seq(self, x):
        seq = []
        for kb in range(2):
            for qb in range(4):
                s = S(x, qb, kb)
                for r in range(4):
                    ex = 'v_exp_f32 %s, %s' % (vr(s + r), vr(s + r))
                    cv = None
                    if r & 1:
                        cv = 'v_cvt_pk_bf16_f32 %s, %s, %s' % (vr(S(x, qb, 0) + 2 * kb + (r >> 1)), vr(s + r - 1), vr(s + r))
                    seq.append((ex, cv))
        return seq

    def dma_k(self, i):
        return 'buffer_load_dwordx4 %s, %s, %s offen offset:%d %slds' % (vr(VDK + i), sr(S_K, 4), sr(S_OFFK), 1024 * i, self.o.kvflag)

    def dma_v(self, i):
        return 'buffer_load_dwordx4 %s, %s, %s offen offset:%d %slds' % (vr(VDV + (i & 1)), sr(S_V, 4), sr(S_OFFV), 1024 * i, self.o.kvflag)

    def dma_q(self, i):
        return 'buffer_load_dwordx4 %s, %s, %s offen offset:%d %slds' % (vr(VDK + i), sr(S_Q, 4), sr(S_QOFF), 1024 * i, self.o.qflag)

    def stamp(self, name=None):
        if not self.o.stamps:
            return []
        if name is not None and name not in self.o.st:
            return []
        k = self.nts
        self.nts += 1
        return ['s_memtime %s' % sr(S_TS + 4 * k, 2), 's_memrealtime %s' % sr(S_TS + 4 * k + 2, 2)]

    def place_waits(self, mf, shadow, valu, age):
        N = len(mf)
        pend = []
        for g in range(N):
            if g + 1 < N:
                need = set(I(mf[g + 1]).uses)
                idx = [i for i, (r, _) in enumerate(pend) if need & set(r)]
                if idx:
                    last = max(idx)
                    while last + 1 < len(pend) and pend[last + 1][1] <= g - age:
                        last += 1
                    shadow[g].insert(0, 's_waitcnt lgkmcnt(%d)' % (len(pend) - 1 - last))
                    pend = pend[last + 1:]
            for l in shadow[g]:
                x = I(l)
                if x.kind == 'dsr':
                    pend.append((x.defs, g))
                    if g + 1 < N:
                        assert not (set(x.defs) & set(I(mf[g + 1]).uses)), (g, l)
        return pend

    def add_of(self, ex, qb):
        r = ex.split()[1].rstrip(',')
        return 'v_add_f32 %s, %s, %s' % (vr(VLS + qb), vr(VLS + qb), r)

    def period(self, u, kind='mid', vmw=8, dma=True):
        o = self.o
        nsum = 4 - o.sumadd
        N = 64 + nsum
        PV0 = 32 + nsum
        mf = [self.qk_mfma(u + 1, *a) for a in self.qk_order()]
        mf += [self.sum_mfma(u, qb) for qb in range(nsum)]
        mf += [self.pv_mfma(u, *a) for a in self.pv_order()]
        egaps = o.egaps
        assert len(egaps) == 32 and max(egaps) < N - 1
        shadow = [[] for _ in range(N)]
        valu = [[] for _ in range(N)]
        for k, (g, (ex, cv)) in enumerate(zip(egaps, self.sm_seq(u + 1))):
            qb = (k >> 2) & 3
            valu[g].append(ex)
            g2 = g + 1
            while g2 in egaps:
                g2 += 1
            if qb >= nsum:
                valu[g2].append(self.add_of(ex, qb))
            if cv:
                valu[g2].append(cv)
        even = (u & 1) == 0
        free = lambda g: (0 if g in egaps else 2 - len(valu[g]) - len([x for x in shadow[g] if not x.startswith('s_add')]))
        bargap = o.bargap
        if even and not o.nobar:
            shadow[bargap] += ['s_waitcnt vmcnt(%d)' % vmw, 's_barrier']
        t = u >> 1
        vwait, kwait = PV0 - 1 - o.vwait, N - 1 - o.kwait
        vreads = [self.v_read(u, db, t_) for db in range(8) for t_ in range(2)]
        g = bargap + 1
        dbl = True
        while vreads:
            n = max(0, free(g))
            if n == 2:
                n = 2 if (dbl or g - 1 in egaps) else 1
                dbl = n != 2
            for _ in range(n):
                if vreads:
                    shadow[g].append(vreads.pop(0))
            g += 1
        lastv = g - 1
        if kind == 'last':
            nxt = [self.v_read(u + 1, db, t_, dst=A_K) for db in range(8) for t_ in range(2)]
        else:
            nxt = [self.k_read(u + 2, kb, st) for kb in range(2) for st in range(4)]
        g = max(lastv + 1, 32 if kind != 'mid' else vwait + 1)
        while nxt:
            n = max(0, min(free(g), 2 if kind == 'last' else o.kper))
            if kind != 'mid' and nsum < 4 and g in egaps:
                n = 1
            for _ in range(n):
                if nxt:
                    shadow[g].append(nxt.pop(0))
            g += 1
        lastk = g - 1
        assert lastk <= kwait - 3, (lastk, kwait)
        if kind == 'mid':
            assert lastv <= vwait - 3, lastv
            shadow[vwait].insert(0, 's_waitcnt lgkmcnt(0)')
        else:
            self.place_waits(mf, shadow, valu, 4)
        shadow[kwait].insert(0, 's_waitcnt lgkmcnt(0)')

        def put_dma(x, g, step):
            tt = int(x[1:])
            m0, off, fn = (S_M0V, S_OFFV, self.dma_v) if x[0] == 'V' else (S_M0K, S_OFFK, self.dma_k)
            shadow[g].append('s_add_u32 m0, %s, %d' % (sr(m0), ((tt + (x[0] == 'V')) & 3) * 16384))
            g += 1
            for i in range(4):
                while free(g) < 1:
                    g += 1
                shadow[g].append(fn(i))
                g += step
            g -= step - 1
            shadow[g].append('s_add_u32 %s, %s, 16384' % (sr(off), sr(off)))
            return g + 1
        g = o.dgap
        if dma and not o.nodma:
            g = put_dma('K%d' % (t + 3) if even else 'V%d' % (t + 2), g, o.dstride)
            assert g < N - 2, g
        out = []
        for g in range(N):
            out.append(mf[g])
            out += shadow[g] + valu[g]
        if o.exp:
            out = self.experiment(out)
        return out

    def experiment(self, lines):
        ex = self.o.exp.split(',')
        res = []
        for l in lines:
            if 'noexp' in ex and l.startswith('v_exp_f32'):
                continue
            if 'nocvt' in ex and l.startswith('v_cvt_pk'):
                continue
            if 'nolds' in ex and l.startswith('ds_read'):
                continue
            if 'nosum' in ex and l.startswith(MF + ' a['):
                continue
            if 'nomfma' in ex and l.startswith(MF):
                continue
            res.append(l)
        return res

    def xlane(self, op, regs, tmps):
        L = []
        for sw in ('v_permlane32_swap_b32', 'v_permlane16_swap_b32'):
            for r, t in zip(regs, tmps):
                L.append('v_mov_b32 %s, %s' % (vr(t), vr(r)))
            if len(regs) < 3:
                L.append('s_nop 1')
            for r, t in zip(regs, tmps):
                L.append('%s %s, %s' % (sw, vr(r), vr(t)))
            for r, t in zip(regs, tmps):
                L.append('%s %s, %s, %s' % (op, vr(r), vr(r), vr(t)))
        return L

    def common(self):
        o = self.o
        L = []
        e = L.append
        e('s_cmp_ge_u32 s2, 256')
        e('s_cbranch_scc1 L_done')
        e('s_load_dwordx4 s[36:39], s[0:1], 0')
        e('s_load_dwordx4 s[96:99], s[0:1], 16')
        if o.cpf:
            e('s_getpc_b64 s[34:35]')
            e('L_pc:')
            e('v_lshlrev_b32 v4, 4, v0')
            e('global_load_dwordx4 %s, v4, s[34:35]' % vr(V_C, 4))
        if o.stamps:
            e('s_load_dwordx2 s[90:91], s[0:1], 40')
            e('s_memrealtime s[92:93]')
        L += self.stamp()
        e('v_lshrrev_b32 v2, 6, v0')
        e('v_bfe_u32 v5, v0, 4, 2')
        e('v_readfirstlane_b32 %s, v2' % sr(S_W))
        e('v_and_b32 v6, 15, v0')
        e('v_lshlrev_b32 v7, 8, v5')
        e('v_lshl_add_u32 v7, v2, 12, v7')
        e('v_xor_b32 v3, v6, v5')
        e('v_lshl_add_u32 %s, v3, 4, v7' % vr(VDK))
        for i in range(1, 4):
            e('v_xor_b32 %s, %d, %s' % (vr(VDK + i), i << 6, vr(VDK)))
        e('s_and_b32 s30, s2, 7')
        e('s_lshr_b32 s3, s2, 4')
        e('s_lshl4_add_u32 s30, s30, s3')
        e('s_bfe_u32 s31, s2, 0x10003')
        e('s_lshl1_add_u32 s31, s30, s31')
        e('s_lshl_b32 s30, s30, 18')
        e('s_lshl_b32 s31, s31, 16')
        e('s_lshl_b32 %s, %s, 12' % (sr(S_M0K), sr(S_W)))
        e('s_mul_i32 %s, %s, 12288' % (sr(S_QOFF), sr(S_W)))
        e('s_lshl2_add_u32 %s, %s, 0xc000' % (sr(S_QLDS), sr(S_M0K)))
        e('s_mov_b32 %s, 0' % sr(S_OFFK))
        e('s_mov_b32 s10, 0x40000')
        e('s_mov_b32 s11, 0x20000')
        e('s_mov_b32 s6, 0x10000')
        e('s_mov_b32 s7, 0x20000')
        e('s_mov_b32 m0, %s' % sr(S_M0K))
        e('s_waitcnt lgkmcnt(0)')
        L += self.stamp('karg')
        e('s_add_u32 s8, s38, s30')
        e('s_addc_u32 s9, s39, 0')
        for i in range(4):
            e(self.dma_k(i))
        e('s_add_u32 s4, s36, s31')
        e('s_addc_u32 s5, s37, 0')
        if o.roles:
            e('s_bitcmp1_b32 s2, 3')
            e('s_cbranch_scc1 L_role1')
        return L

    def v_setup(self):
        L = []
        e = L.append
        e('s_add_u32 s12, s96, s30')
        e('s_addc_u32 s13, s97, 0')
        e('s_mov_b32 s14, 0x40000')
        e('s_mov_b32 s15, 0x20000')
        e('s_movk_i32 %s, 0x4000' % sr(S_OFFK))
        e('s_mov_b32 %s, 0' % sr(S_OFFV))
        e('s_add_u32 %s, %s, %d' % (sr(S_M0V), sr(S_M0K), V_BASE))
        e('v_lshlrev_b32 v3, 1, v5')
        e('v_xor_b32 v3, v6, v3')
        e('v_lshl_add_u32 %s, v3, 4, v7' % vr(VDV))
        e('v_xor_b32 %s, 0x80, %s' % (vr(VDV + 1), vr(VDV)))
        return L

    def prologue(self, role):
        o = self.o
        mid = o.mid if role == 0 else o.mid1
        L = []
        e = L.append
        vm = ['K0'] * 4

        def issue(tag, txt):
            vm.append(tag)
            e(txt)

        def wait(tag):
            last = max(i for i, t in enumerate(vm) if t == tag)
            e('s_waitcnt vmcnt(%d)' % (len(vm) - 1 - last))

        def dma_qblk(j):
            e('s_add_u32 m0, %s, %d' % (sr(S_QLDS), 4096 * j))
            if j:
                e('s_add_u32 %s, %s, 4096' % (sr(S_QOFF), sr(S_QOFF)))
            else:
                e('s_nop 0')
            for i in range(4):
                issue('Q%d' % j, self.dma_q(i))

        def dma_tile(x):
            kind, t = x[0], int(x[1])
            if kind == 'Q':
                dma_qblk(t)
            elif kind == 'C':
                if o.cpf:
                    issue('C', 'global_load_dwordx4 %s, %s, s[34:35]' % (vr(VT + 8, 4), vr(VT + 8)))
            elif kind == 'V':
                e('s_add_u32 m0, %s, %d' % (sr(S_M0V), ((t + 1) & 3) * 16384))
                e('s_nop 0')
                for i in range(4):
                    issue(x, self.dma_v(i))
                e('s_add_u32 %s, %s, 16384' % (sr(S_OFFV), sr(S_OFFV)))
            else:
                e('s_add_u32 m0, %s, %d' % (sr(S_M0K), t * 16384))
                e('s_nop 0')
                for i in range(4):
                    issue(x, self.dma_k(i))
                e('s_add_u32 %s, %s, 16384' % (sr(S_OFFK), sr(S_OFFK)))

        if role == 1:
            if o.cpf:
                e('s_getpc_b64 s[100:101]')
                issue('D', 'global_load_dwordx4 %s, v4, s[100:101]' % vr(V_C + 4, 4))
            L += self.v_setup()
            for x in o.pre1:
                if x[0] == 'w':
                    wait(x[1:])
                else:
                    dma_tile(x)
        L += self.stamp('ik')
        for j in range(4):
            if j < o.qearly:
                dma_qblk(j)
                L += self.stamp('i%d' % j)
        L += self.stamp('issued')
        e('v_and_b32 v1, 63, v0')
        if o.cpf:
            e('s_lshr_b32 s3, s2, 3')
            e('s_lshl2_add_u32 s3, s3, %s' % sr(S_W))
            e('s_and_b32 s3, s3, 31')
            e('s_min_u32 s3, s3, (L_slow - L_pc) / 1024 - 4')
            e('s_lshl_b32 s3, s3, 10')
            e('s_add_u32 s3, s3, 4096')
            e('s_add_u32 s34, s34, s3')
            e('s_addc_u32 s35, s35, 0')
            e('v_lshlrev_b32 %s, 4, v1' % vr(VT + 8))
        if role == 0:
            L += self.v_setup()
        for x in mid[0]:
            dma_tile(x)
        e('s_add_u32 s16, s98, s31')
        e('s_addc_u32 s17, s99, 0')
        e('s_mov_b32 s18, 0x10000')
        e('s_mov_b32 s19, 0x20000')
        e('v_xor_b32 v3, v5, v6')
        e('v_lshlrev_b32 v4, 8, v6')
        e('v_lshl_add_u32 %s, v3, 4, v4' % vr(VKA))
        for st in range(1, 4):
            e('v_xor_b32 %s, %d, %s' % (vr(VKA + st), st << 6, vr(VKA)))
        for st in range(4):
            e('v_add_u32 %s, %s, %s' % (vr(VT + st), sr(S_QLDS), vr(VKA + st)))
        c = math.log2(math.e) / math.sqrt(128.0)
        e('s_mov_b32 %s, 0x%08x' % (sr(S_C), f2u(c)))
        e('s_mov_b32 %s, 0x%08x' % (sr(S_C + 1), f2u(c)))
        e('s_mov_b32 %s, 0x%08x' % (sr(S_THR), f2u(2.0 ** o.thr)))
        e('s_mov_b32 %s, 0xffff0000' % sr(S_TMP))
        e('v_lshrrev_b32 v3, 2, v1')
        e('v_lshlrev_b32 v2, 8, v3')
        e('v_and_b32 v3, 7, v3')
        e('v_lshl_add_u32 v2, v3, 5, v2')
        e('v_and_b32 v3, 3, v1')
        e('v_lshl_add_u32 v2, v3, 3, v2')
        e('v_add_u32 %s, %d, v2' % (vr(VVA), V_BASE))
        for db in range(1, 8):
            e('v_xor_b32 %s, %d, %s' % (vr(VVA + db), db << 5, vr(VVA)))
        e('s_mul_i32 %s, %s, %d' % (sr(S_STG), sr(S_W), 4 * OPITCH * 16))
        e('v_mul_u32_u24 v3, %d, v6' % OPITCH)
        e('v_lshl_add_u32 v3, v5, 3, v3')
        e('v_add_u32 %s, %s, v3' % (vr(VOW), sr(S_STG)))
        for qb in range(1, 4):
            e('v_add_u32 %s, %d, %s' % (vr(VOW + qb), qb * OPITCH * 16, vr(VOW)))
        e('v_mul_u32_u24 v3, %d, v5' % OPITCH)
        e('v_lshl_add_u32 v3, v6, 4, v3')
        e('v_add_u32 %s, %s, v3' % (vr(VOR), sr(S_STG)))
        e('s_lshl_b32 s3, %s, 14' % sr(S_W))
        e('v_lshlrev_b32 v3, 4, v1')
        e('v_add_u32 %s, s3, v3' % vr(VOG))
        for qb in range(1, 4):
            e('s_movk_i32 %s, %d' % (sr(S_OQ + qb), 4096 * qb))
        e('v_and_b32 v3, 3, v1')
        e('v_cmp_eq_u32 vcc, 0, v3')
        e('v_mov_b32 v2, 0x3f803f80')
        e('s_mov_b32 %s, 0' % sr(S_CNT))
        e('v_cndmask_b32 v3, 0, v2, vcc')
        for j in range(4):
            e('v_accvgpr_write_b32 %s, v3' % ar(A_1 + j))
        for qb in range(4 - o.sumadd, 4):
            e('v_mov_b32 %s, 0' % vr(VLS + qb))
        RAW = O(3, 0)
        TM = O(3, 4)

        def prescale(qb, st):
            b = RAW + 4 * st
            t0 = TM + 8 * (st & 1)
            P = []
            for j in range(4):
                P.append('v_lshlrev_b32 %s, 16, %s' % (vr(t0 + 2 * j), vr(b + j)))
                P.append('v_and_b32 %s, %s, %s' % (vr(t0 + 2 * j + 1), sr(S_TMP), vr(b + j)))
            for j in range(4):
                P.append('v_pk_mul_f32 %s, %s, %s' % (vr(t0 + 2 * j, 2), vr(t0 + 2 * j, 2), sr(S_C, 2)))
            for j in range(4):
                P.append('v_cvt_pk_bf16_f32 %s, %s, %s' % (vr(t0 + 2 * j), vr(t0 + 2 * j), vr(t0 + 2 * j + 1)))
            for j in range(4):
                P.append('v_accvgpr_write_b32 %s, %s' % (ar(A_Q + 16 * qb + 4 * st + j), vr(t0 + 2 * j)))
            return P

        def spaced(D):
            out = []
            for l in D:
                if l.startswith('v_permlane'):
                    out.append('s_nop 1')
                out.append(l)
            return out

        def sm1(qb):
            out, pend = ['v_add_f32 %s, %s, %s' % (vr(S(1, qb, 0) + r), vr(S(1, qb, 0) + r), vr(V_C + 4 * qb)) for r in range(8)], []
            sm = self.sm_seq(1)
            for kb in range(2):
                for ex, cv in sm[16 * kb + 4 * qb:16 * kb + 4 * qb + 4]:
                    out.append(ex)
                    out += pend
                    pend = [cv] if cv else []
            return out + ['s_nop 0'] + pend

        def pv0(qb):
            return [self.sum_mfma(0, qb, czero=True)] + [self.pv_mfma(0, db, qb, czero=True) for db in range(8)]

        def weave(mf, streams, cap):
            out, rest = self.pack(mf, [[(g, l) for g, l in q] for q in streams], lambda g: cap)
            return out + rest

        def tile_items(xs, g0, step):
            items, g = [], g0
            for x in xs:
                tt = int(x[1:])
                m0, off, fn = (S_M0V, S_OFFV, self.dma_v) if x[0] == 'V' else (S_M0K, S_OFFK, self.dma_k)
                items.append((g, 's_add_u32 m0, %s, %d' % (sr(m0), ((tt + (x[0] == 'V')) & 3) * 16384)))
                g += 1
                for i in range(4):
                    items.append((g, fn(i)))
                    vm.append(x)
                    g += step
                items.append((g - step, 's_add_u32 %s, %s, 16384' % (sr(off), sr(off))))
            return items

        def dma_lines(x):
            kind, t = x[0], int(x[1:])
            if kind == 'C':
                if not o.cpf:
                    return []
                vm.append('C')
                return [([], 'global_load_dwordx4 %s, %s, s[34:35]' % (vr(VT + 8, 4), vr(VT + 8)))]
            vm.extend([x if kind != 'Q' else 'Q%d' % t] * 4)
            if kind == 'Q':
                pre = ['s_add_u32 m0, %s, %d' % (sr(S_QLDS), 4096 * t), 's_add_u32 %s, %s, 4096' % (sr(S_QOFF), sr(S_QOFF))]
                return [(pre if i == 0 else [], self.dma_q(i)) for i in range(4)]
            m0, off, fn = (S_M0V, S_OFFV, self.dma_v) if kind == 'V' else (S_M0K, S_OFFK, self.dma_k)
            pre = ['s_mov_b32 %s, %d' % (sr(off), 16384 * t), 's_add_u32 m0, %s, %d' % (sr(m0), ((t + (kind == 'V')) & 3) * 16384), 's_nop 0']
            return [(pre if i == 0 else [], fn(i)) for i in range(4)]

        def background(seg, xs, start, step):
            items = [z for x in xs for z in dma_lines(x)]
            out, nxt = [], start
            for i, l in enumerate(seg):
                out.append(l)
                if items and i >= nxt and (l.startswith(MF) or not (i + 1 < len(seg) and seg[i + 1].startswith(MF))):
                    pre, ld = items.pop(0)
                    out += pre + [ld]
                    nxt = i + step
            for pre, ld in items:
                out += pre + [ld]
            return out

        assert o.sumadd == 0
        for qb in range(4):
            wait('Q%d' % qb)
            L += self.stamp('q%d' % qb)
            G = ['ds_read_b128 %s, %s offset:%d' % (vr(RAW + 4 * st, 4), vr(VT + st), 4096 * qb) for st in range(4)]
            if qb in (1, 2):
                G += sm1(qb - 1)
            if qb == 3:
                G += pv0(2)[9 - o.cover:]
            c0 = self.c0_mfmas(qb)
            for st in range(4):
                P = prescale(qb, st)
                if st and qb:
                    P = P[:12] + c0[2 * st - 2:2 * st] + P[12:]
                G += P
            if qb == 0:
                G.append('s_barrier')
                G += [self.k_read(0, kb, st, dst=A_K0) for st in range(4) for kb in range(2)]
                G += [self.k_read(1, kb, st, dst=A_K1) for kb in range(2) for st in range(3)]
                G += c0[:2] + [self.k_read(1, kb, 3, dst=A_K1) for kb in range(2)] + c0[2:]
            else:
                G += c0[6:]
            qk1 = [self.qk_mfma(1, kb, st if kb == 0 else 3 - st, qb, st == 0, czero=True, ksrc=A_K1) for kb in range(2) for st in range(4)]
            G += weave(qk1, [[(1, 's_nop 2'), (2, 's_nop 2')] + [(2, l) for l in spaced(self.dmax(qb)) + self.deferred(qb)]], 3)
            L += background(G, mid[qb + 1], 3, o.bgstep)
            if qb == 2:
                wait('V0')
                L += self.stamp('v0')
                e('s_barrier')
                vr_ = [self.v_read(0, db, t_) for db in range(8) for t_ in range(2)]
                G = vr_[:8] + weave(pv0(0) + pv0(1) + pv0(2)[:9 - o.cover], [[(g // 2, l) for g, l in enumerate(vr_[8:])], [(4, l) for l in sm1(2)]], 2)
                L += background(G, mid[5], 12, 4)
        last = max(i for i, t in enumerate(vm) if t in ('K1', 'C', 'D'))
        e('s_waitcnt vmcnt(%d)' % (len(vm) - 1 - last))
        L += self.stamp('k1')
        e('s_barrier')
        kr = [(g // 2, self.k_read(2, kb, st)) for g, (kb, st) in enumerate([(kb, st) for kb in range(2) for st in range(4)])]
        G = weave(pv0(3), [kr, [(0, l) for l in sm1(3)]], 4)
        L += background(G, mid[6] + ['K3'], 8, 7)
        e('s_mov_b32 %s, %d' % (sr(S_OFFK), 16384 * 4))
        e('s_mov_b32 %s, %d' % (sr(S_OFFV), 16384 * 2))
        kv = [x for x in vm if x[0] in 'KV']
        assert [x for x in kv if x[0] == 'K'] == [x for x in ['K0', 'K1', 'K2', 'K3'] for _ in range(4)], vm
        assert [x for x in kv if x[0] == 'V'] == [x for x in ['V0', 'V1'] for _ in range(4)], vm
        assert vm[-4:] == ['K3'] * 4
        e('s_waitcnt lgkmcnt(0)')
        L += self.stamp()
        return L

    def c0_mfmas(self, qb):
        return [self.qk_mfma(0, kb, st, qb, czero=True, ksrc=A_K0) for st in range(4) for kb in range(2)]

    def dmax(self, qb):
        T = VT + 4 + 2 * (qb & 1)
        sq = S(0, qb, 0)
        D = ['v_max3_f32 %s, %s, %s, %s' % (vr(T), vr(sq), vr(sq + 1), vr(sq + 2)),
             'v_max3_f32 %s, %s, %s, %s' % (vr(T + 1), vr(sq + 4), vr(sq + 5), vr(sq + 6)),
             'v_max3_f32 %s, %s, %s, %s' % (vr(T), vr(T), vr(sq + 3), vr(sq + 7)),
             'v_max_f32 %s, %s, %s' % (vr(T), vr(T), vr(T + 1))]
        for sw in ('v_permlane32_swap_b32', 'v_permlane16_swap_b32'):
            D += ['v_mov_b32 %s, %s' % (vr(T + 1), vr(T)), '%s %s, %s' % (sw, vr(T), vr(T + 1)), 'v_max_f32 %s, %s, %s' % (vr(T), vr(T), vr(T + 1))]
        D += ['v_sub_f32 %s, 0, %s' % (vr(V_C + 4 * qb + r), vr(T)) for r in range(4)]
        return D

    def deferred(self, qb):
        sq = S(0, qb, 0)
        out = ['v_add_f32 %s, %s, %s' % (vr(sq + r), vr(sq + r), vr(V_C + 4 * qb)) for r in range(8)]
        seq = [z for kb in range(2) for z in self.sm_seq(0)[16 * kb + 4 * qb:16 * kb + 4 * qb + 4]]
        pend = []
        for ex, cv in seq:
            out.append(ex)
            out += pend
            pend = ([self.add_of(ex, qb)] if qb >= 4 - self.o.sumadd else []) + ([cv] if cv else [])
        return out + ['s_nop 0'] + pend

    def norm_group(self, qb, j, packed):
        rc = VT + 4 + 2 * qb
        a, b = O(qb, 2 * j), O(qb, 2 * j + 1)
        V = []
        if packed:
            for k in range(4):
                V.append('v_pk_mul_f32 %s, %s, %s op_sel_hi:[1,0]' % (vr(a + 2 * k, 2), vr(a + 2 * k, 2), vr(rc, 2)))
        else:
            for k in range(8):
                V.append('v_mul_f32 %s, %s, %s' % (vr(a + k), vr(a + k), vr(rc)))
        V.append('v_cvt_pk_bf16_f32 %s, %s, %s' % (vr(a), vr(a), vr(a + 1)))
        V.append('v_cvt_pk_bf16_f32 %s, %s, %s' % (vr(a + 1), vr(a + 2), vr(a + 3)))
        V.append('v_cvt_pk_bf16_f32 %s, %s, %s' % (vr(a + 2), vr(b), vr(b + 1)))
        V.append('v_cvt_pk_bf16_f32 %s, %s, %s' % (vr(a + 3), vr(b + 2), vr(b + 3)))
        W = 'ds_write2_b64 %s, %s, %s offset0:%d offset1:%d' % (vr(VOW + qb), vr(a, 2), vr(a + 2, 2), 8 * j, 8 * j + 4)
        return V, [], W

    def norm_stream(self, groups, packed):
        out, pend = [], []
        for qb, j in groups:
            V, X, W = self.norm_group(qb, j, packed)
            out.append(V + [W])
        return out, pend

    def o_reads(self, qb):
        return ['ds_read_b128 %s, %s offset:%d' % (vr(O(qb, 2 * i + 1), 4), vr(VOR), OPITCH * (16 * qb + 4 * i)) for i in range(4)]

    def o_stores(self, qb):
        return ['buffer_store_dwordx4 %s, %s, %s, %s offen offset:%d %s' % (vr(O(qb, 2 * i + 1), 4), vr(VOG), sr(S_OD, 4), sr(S_OQ + qb) if qb else '0', 1024 * i, self.o.oflag)
                for i in range(4)]

    @staticmethod
    def cost(l):
        x = I(l)
        if x.kind == 'valu' and (x.trans or x.op.startswith('v_permlane')):
            return 2
        if x.kind == 'nop':
            return x.n
        return 1

    def pack(self, mf, streams, cap):
        out = []
        N = len(mf)
        ismem = lambda l: I(l).kind in ('dsr', 'dsw', 'vst', 'dma', 'wait', 'barrier', 'sctl', 'salu')
        for g in range(N):
            mem, val = [], []
            c = 0
            for q in streams:
                while q and q[0][0] <= g and ismem(q[0][1]) and len(mem) < self.o.fmem:
                    mem.append(q.pop(0)[1])
                    c += 1
            for q in streams:
                while q and q[0][0] <= g and not ismem(q[0][1]) and c + self.cost(q[0][1]) <= cap(g):
                    c += self.cost(q[0][1])
                    val.append(q.pop(0)[1])
            out.append(mf[g])
            out += mem + val
        rest = [l for q in streams for _, l in q]
        return out, rest

    @staticmethod
    def auto_lgkm(lines, age=16):
        out, pend = [], []
        for k, l in enumerate(lines):
            x = I(l)
            if x.kind == 'wait' and x.lgkm is not None:
                pend = pend[len(pend) - x.lgkm:] if x.lgkm else []
            touched = set(x.uses) | set(x.defs)
            idx = [i for i, (r, _) in enumerate(pend) if touched & set(r)]
            if idx:
                last = max(idx)
                while last + 1 < len(pend) and pend[last + 1][1] <= k - age:
                    last += 1
                n = min(15, len(pend) - 1 - last)
                out.append('s_waitcnt lgkmcnt(%d)' % n)
                pend = pend[len(pend) - n:] if n else []
            out.append(l)
            if x.kind == 'dsr':
                pend.append((x.defs, k))
            if x.kind == 'dsw':
                pend.append(([], k))
        return out

    @staticmethod
    def fix_hazards(prefix, lines):
        lines = list(lines)
        for _ in range(200):
            pr = [p for p in check_trace(prefix + lines) if int(p.split(':')[0]) >= len(prefix)]
            if not pr:
                return lines
            p = pr[0]
            m = re.search(r'needs (\d+),? has (\d+)', p)
            n = int(m.group(1)) - int(m.group(2)) if m else 1
            assert m or 'needs' in p or 'WAR' in p, p
            lines.insert(int(p.split(':')[0]) - len(prefix), 's_nop %d' % (n - 1))
        raise RuntimeError('hazards keep coming')

    def final_phase(self):
        o = self.o
        T = VT
        assert o.sumadd == 0
        mf = [self.qk_mfma(31, kb, st if kb == 0 else 3 - st, qb, st == 0) for qb in range(4) for kb in range(2) for st in range(4)]
        B0 = [32 + 18 * qb for qb in range(4)]
        for qb in range(4):
            mf += [self.sum_mfma(30, qb), self.sum_mfma(31, qb)]
            for db in range(8):
                mf += [self.pv_mfma(30, db, qb), self.pv_mfma(31, db, qb, src=A_K0)]
        s1 = [(0, 's_waitcnt vmcnt(0)'), (0, 's_barrier')]
        k = 0
        for db in range(8):
            for x, dst in ((30, A_V), (31, A_K0)):
                for t_ in range(2):
                    s1.append((1 + (k * o.fvr) // 8, self.v_read(x, db, t_, dst=dst)))
                    k += 1
        s1.append((31, 's_waitcnt lgkmcnt(0)'))
        sm = self.sm_seq(31)
        s2, pend = [], []
        for qb in range(4):
            for kb in range(2):
                ready = 8 * qb + 4 * kb + 3 + 3
                for ex, cv in sm[16 * kb + 4 * qb:16 * kb + 4 * qb + 4]:
                    s2.append((ready, ex))
                    s2 += pend
                    pend = [(ready, cv)] if cv else []
        s2 += [(0, 's_nop 0')] + pend
        s3 = []
        for qb in range(4):
            r = B0[qb] + 1 + 3
            s3 += [(r, 'v_accvgpr_read_b32 %s, %s' % (vr(T + qb), ar(A_L + 4 * qb))),
                   (r, 'v_cmp_ngt_f32 vcc, %s, %s' % (sr(S_THR), vr(T + qb))),
                   (r, 'v_rcp_f32 %s, %s' % (vr(T + 4 + 2 * qb), vr(T + qb))),
                   (r + 1, 's_cbranch_vccnz L_slow' if not o.exp else 's_nop 0')]
        groups = [(qb, j) for qb in range(4) for j in range(4)]
        s4, pend = [], []
        assert o.fsd >= 1
        stores = []
        for n, (qb, j) in enumerate(groups):
            ready = max(B0[qb] + 2 + 4 * j + 3 + 3, B0[qb] + 7)
            late = ready >= len(mf) - o.fpk
            V, X, W = self.norm_group(qb, j, late)
            if late:
                ready = len(mf) + 1
            s4 += [(ready, l) for l in V + [W]]
            if j == 3:
                s4 += [(ready, l) for l in self.o_reads(qb)]
                st = self.o_stores(qb)
                for i in range(4):
                    stores.append((n + o.fsd + i, [st[i]]))
            for z in [z for z in stores if z[0] == n]:
                s4 += [(ready, l) for l in z[1]]
        s4 += [(len(mf) + 1, l) for l in pend]
        for z in stores:
            if z[0] >= len(groups):
                s4 += [(len(mf) + 1, l) for l in z[1]]
        cap = lambda g: o.fcap[0] if g < o.fcap[1] else o.fcap[2]
        out, rest = self.pack(mf, [s1, s3, s2, s4], cap)
        return self.auto_lgkm(out + rest)

    def plain_store(self):
        G, pend = self.norm_stream([(qb, j) for qb in range(4) for j in range(4)], True)
        L = [l for x in G for l in x] + pend
        for qb in range(4):
            L += self.o_reads(qb)
        L.append('s_waitcnt lgkmcnt(0)')
        for qb in range(4):
            L += self.o_stores(qb)
        return L

    def slow_path(self):
        L = []
        e = L.append
        T = VT
        M = V_C
        SK = V_S + 32
        SV = SK + 1
        SVA = SK + 4
        e('L_slow:')
        e('s_waitcnt vmcnt(0) lgkmcnt(0)')
        e('s_nop 7')
        e('v_mbcnt_lo_u32_b32 v1, -1, 0')
        e('v_mbcnt_hi_u32_b32 v1, -1, v1')
        e('v_and_b32 v2, 15, v1')
        e('v_lshrrev_b32 v3, 4, v1')
        e('v_lshlrev_b32 v2, 8, v2')
        e('v_lshl_add_u32 %s, v3, 4, v2' % vr(SK))
        e('v_subrev_u32 %s, %s, %s' % (vr(SV), sr(S_M0K), vr(VDV)))
        e('v_subrev_u32 %s, %s, %s' % (vr(SV + 1), sr(S_M0K), vr(VDV + 1)))
        e('s_mov_b32 s34, %s' % sr(S_STG))
        e('s_sub_u32 s3, s34, %d' % V_BASE)
        for db in range(8):
            e('v_add_u32 %s, s3, %s' % (vr(SVA + db), vr(VVA + db)))
        for i in range(128):
            e('v_mov_b32 %s, 0' % vr(V_O + i))
        for qb in range(4):
            e('v_mov_b32 %s, 0xff7fffff' % vr(M + qb))
            e('v_mov_b32 %s, 0' % vr(M + 4 + qb))
        e('s_mov_b32 %s, 0' % sr(S_CNT))
        e('L_slow_loop:')
        e('s_mov_b32 m0, s34')
        e('s_add_u32 s31, %s, 4096' % sr(S_CNT))
        for i in range(4):
            e('buffer_load_dwordx4 %s, %s, %s offen offset:%d lds' % (vr(SV + (i & 1)), sr(S_V, 4), sr(S_CNT), 1024 * i))
        e('s_add_u32 m0, s34, 4096')
        e('s_nop 0')
        for i in range(4):
            e('buffer_load_dwordx4 %s, %s, s31 offen offset:%d lds' % (vr(SV + (i & 1)), sr(S_V, 4), 1024 * i))
        for kb in range(2):
            for st in range(4):
                e('buffer_load_dwordx4 %s, %s, %s, %s offen offset:%d' % (ar(A_K + 16 * kb + 4 * st, 4), vr(SK), sr(S_K, 4), 's31' if kb else sr(S_CNT), 64 * st))
        e('s_waitcnt vmcnt(0)')
        for kb in range(2):
            for st in range(4):
                for qb in range(4):
                    e(self.qk_mfma(0, kb, st, qb, czero=True))
        for db in range(8):
            for t in range(2):
                e(self.v_read(0, db, t, addr=SVA, base=0))
        for qb in range(4):
            s = S(0, qb, 0)
            e('v_max3_f32 %s, %s, %s, %s' % (vr(T + qb), vr(M + qb), vr(s), vr(s + 1)))
            for k in range(1, 4):
                e('v_max3_f32 %s, %s, %s, %s' % (vr(T + qb), vr(T + qb), vr(s + 2 * k), vr(s + 2 * k + 1)))
        L += self.xlane('v_max_f32', [T + q for q in range(4)], [T + 4 + q for q in range(4)])
        for qb in range(4):
            e('v_sub_f32 %s, %s, %s' % (vr(M + 8 + qb), vr(M + qb), vr(T + qb)))
        for qb in range(4):
            e('v_exp_f32 %s, %s' % (vr(M + 8 + qb), vr(M + 8 + qb)))
        for qb in range(4):
            e('v_mov_b32 %s, %s' % (vr(M + qb), vr(T + qb)))
        for qb in range(4):
            s = S(0, qb, 0)
            for r in range(8):
                e('v_sub_f32 %s, %s, %s' % (vr(s + r), vr(s + r), vr(T + qb)))
            for r in range(8):
                e('v_exp_f32 %s, %s' % (vr(s + r), vr(s + r)))
            e('v_mul_f32 %s, %s, %s' % (vr(M + 4 + qb), vr(M + 4 + qb), vr(M + 8 + qb)))
            for r in range(8):
                e('v_add_f32 %s, %s, %s' % (vr(M + 4 + qb), vr(M + 4 + qb), vr(s + r)))
            for j in range(4):
                e('v_cvt_pk_bf16_f32 %s, %s, %s' % (vr(s + j), vr(s + 2 * j), vr(s + 2 * j + 1)))
            for i in range(32):
                e('v_mul_f32 %s, %s, %s' % (vr(O(qb, 0) + i), vr(O(qb, 0) + i), vr(M + 8 + qb)))
        e('s_waitcnt lgkmcnt(0)')
        e('s_nop 1')
        for db in range(8):
            for qb in range(4):
                e(self.pv_mfma(0, db, qb))
        e('s_nop 7')
        e('s_add_u32 %s, %s, 8192' % (sr(S_CNT), sr(S_CNT)))
        e('s_cmp_lt_u32 %s, 0x40000' % sr(S_CNT))
        e('s_cbranch_scc1 L_slow_loop')
        for qb in range(4):
            e('v_mov_b32 %s, %s' % (vr(T + qb), vr(M + 4 + qb)))
        L += self.xlane('v_add_f32', [T + q for q in range(4)], [T + 4 + q for q in range(4)])
        for qb in range(4):
            e('v_rcp_f32 %s, %s' % (vr(T + 4 + 2 * qb), vr(T + qb)))
        e('s_nop 0')
        L += self.plain_store()
        e('s_branch L_end')
        return L

    def stamps_out(self):
        if not self.o.stamps:
            return []
        L = []
        e = L.append
        L += self.stamp('stored')
        e('s_waitcnt vmcnt(0) lgkmcnt(0)')
        e('s_memrealtime s[94:95]')
        L += self.stamp()
        e('s_waitcnt lgkmcnt(0)')
        e('s_mov_b32 s84, s90')
        e('s_mov_b32 s85, s91')
        e('s_mov_b32 s86, 0x100000')
        e('s_mov_b32 s87, 0x20000')
        e('s_getreg_b32 s88, hwreg(HW_REG_XCC_ID)')
        e('s_getreg_b32 s89, hwreg(HW_REG_HW_ID)')
        e('s_lshl_b32 s3, s2, 2')
        e('s_add_u32 s3, s3, %s' % sr(S_W))
        e('s_lshl_b32 s3, s3, 8')
        e('v_mov_b32 v1, s3')
        vals = [92, 93, 94, 95, 88, 89] + [S_TS + 4 * k for k in range(10)] + [S_TS + 4 * k + 2 for k in range(10)]
        e('s_mov_b64 exec, 1')
        for k, s in enumerate(vals):
            e('v_mov_b32 v2, s%d' % s)
            e('buffer_store_dword v2, v1, s[84:87], 0 offen offset:%d' % (4 * k))
        if self.o.probe:
            kind, a, b, wg = self.o.probe.split(',')
            a, b = int(a), int(b)
            e('s_cmp_eq_u32 s2, %s' % wg)
            e('s_cbranch_scc0 L_done')
            e('s_cmp_eq_u32 %s, 0' % sr(S_W))
            e('s_cbranch_scc0 L_done')
            if kind == 'rt':
                e('s_sub_u32 s30, s%d, s%d' % (S_TS + 4 * b + 2, S_TS + 4 * a + 2))
                e('s_mul_i32 s30, s30, 10')
            else:
                e('s_sub_u32 s30, s%d, s%d' % (S_TS + 4 * b, S_TS + 4 * a))
                e('s_lshr_b32 s30, s30, 2')
            e('s_add_u32 s30, s30, 10000')
            if self.o.pre:
                e('s_load_dword s92, s[90:91], 0x80000')
                e('s_waitcnt lgkmcnt(0)')
            e('L_spin:')
            e('s_sleep 1')
            e('s_memrealtime s[34:35]')
            e('s_waitcnt lgkmcnt(0)')
            e('s_sub_u32 s34, s34, s92')
            e('s_cmp_lt_u32 s34, s30')
            e('s_cbranch_scc1 L_spin')
        return L

    def build(self):
        o = self.o
        com = self.common()
        n0 = self.nts
        pro1 = []
        if o.roles:
            pro1 = ['L_role1:'] + self.fix_hazards(com, self.auto_lgkm(self.prologue(1), 1000)) + ['s_branch L_loop']
            self.nts = n0
        pro = com + self.fix_hazards(com, self.auto_lgkm(self.prologue(0), 1000))
        first = []
        body = [self.period(u) for u in range(1, 9)]
        st_body = self.stamp('body')
        last = [self.period(25), self.period(26, dma=False), self.period(27), self.period(28, dma=False, vmw=4),
                self.period(29, dma=False)]

        def put_shadow(p, slot, lines):
            n = -1
            for i, l in enumerate(p):
                if l.startswith(MF):
                    n += 1
                    if n == slot:
                        return p[:i + 1] + lines + p[i + 1:]
            raise ValueError
        nm = sum(l.startswith(MF) for l in body[0])
        inc, cmp_ = 's_add_u32 %s, %s, 1' % (sr(S_CNT), sr(S_CNT)), 's_cmp_lt_u32 %s, 3' % sr(S_CNT)
        if nm:
            body[7] = put_shadow(body[7], 2, [inc])
            body[7] = put_shadow(body[7], nm - 3, [cmp_])
            tl = body[7][body[7].index(cmp_) + 1:]
            assert not any(l.startswith('s_add') for l in tl)
            body[7] = put_shadow(body[7], nm - 1, ['s_cbranch_scc1 L_loop_x'])
            k = body[7].index('s_cbranch_scc1 L_loop_x')
            rest = body[7][k + 1:]
            body[7] = body[7][:k] + rest + ['s_cbranch_scc1 L_loop']
        else:
            body[7] += [inc, cmp_, 's_cbranch_scc1 L_loop']
        st_loop = self.stamp()
        trace = list(pro) + first
        for it in range(3):
            for b in body:
                trace += b
        for b in last:
            trace += b
        trace += st_loop
        fin = self.fix_hazards(last[-1], self.final_phase())
        for pat in o.drop:
            fin = [l for l in fin if not l.startswith(pat)]
        so = self.stamps_out()
        slow = self.slow_path()

        text = list(pro) + first
        if o.align:
            text.append('.p2align %d' % o.align)
        text.append('L_loop:')
        for b in body:
            text += b
        text += st_body
        for b in last:
            text += b
        text += st_loop + fin
        text.append('L_end:')
        text += so
        text.append('L_done:')
        text.append('s_endpgm')
        text += pro1
        text += slow

        probs = check_trace(trace + fin + so)
        if o.roles:
            probs += check_trace(com + pro1 + body[0] + body[1] + body[2])
        i0 = slow.index('L_slow_loop:')
        i1 = slow.index('s_cbranch_scc1 L_slow_loop')
        for kb in [i for i, l in enumerate(fin) if 'L_slow' in l]:
            probs += check_trace(last[-1] + fin[:kb + 1] + slow[:i1 + 1] + slow[i0:])
        return text, probs, [pro, body[0], body[1], fin]

    def emit(self):
        text, probs, body = self.build()
        hdr = open(self.o.ref).read().split('\n')
        out = []
        for l in hdr:
            if l.startswith('; @launch'):
                if self.o.pre:
                    out.append('; @launch kernel=pre_kernel grid=(%d,1,1) block=(64,1,1) lds=0' % self.o.pre)
                    out.append('; @launch kernel=%s_kernel grid=(256,1,1) block=(256,1,1) lds=163840' % NAME)
                else:
                    out.append('; @launch grid=(256,1,1) block=(256,1,1) lds=163840')
            elif l.startswith(';'):
                out.append(l)
            else:
                break
        out += ['.amdgcn_target "amdgcn-amd-amdhsa--gfx950"', '.text', '.globl %s_kernel' % NAME, '.p2align 8',
                '.type %s_kernel,@function' % NAME, '%s_kernel:' % NAME]
        for l in text:
            out.append(l if (l.endswith(':') or l.startswith('.')) else '    ' + l)
        if self.o.pre:
            out += ['.globl pre_kernel', '.p2align 8', '.type pre_kernel,@function', 'pre_kernel:',
                    's_memrealtime s[4:5]', 's_load_dwordx2 s[8:9], s[0:1], 40', 's_cmp_eq_u32 s2, 0', 's_cbranch_scc0 L_pre_done', 's_waitcnt lgkmcnt(0)',
                    's_mov_b32 s10, 0x100000', 's_mov_b32 s11, 0x20000', 'v_mov_b32 v1, 0x80000', 'v_mov_b32 v2, s4', 's_mov_b64 exec, 1',
                    'buffer_store_dword v2, v1, s[8:11], 0 offen', 'L_pre_done:', 's_endpgm',
                    '.section .rodata,"a"', '.p2align 6', '.amdhsa_kernel pre_kernel', '  .amdhsa_next_free_vgpr 8', '  .amdhsa_next_free_sgpr 16', '  .amdhsa_accum_offset 8',
                    '  .amdhsa_group_segment_fixed_size 0', '  .amdhsa_kernarg_size 48', '  .amdhsa_user_sgpr_count 2', '  .amdhsa_user_sgpr_kernarg_segment_ptr 1',
                    '  .amdhsa_system_sgpr_workgroup_id_x 1', '.end_amdhsa_kernel']
        out += ['.section .rodata,"a"', '.p2align 6', '.amdhsa_kernel %s_kernel' % NAME,
                '  .amdhsa_next_free_vgpr 480', '  .amdhsa_next_free_sgpr 102', '  .amdhsa_accum_offset 256',
                '  .amdhsa_group_segment_fixed_size 0', '  .amdhsa_kernarg_size 48', '  .amdhsa_user_sgpr_count 2',
                '  .amdhsa_user_sgpr_kernarg_segment_ptr 1', '  .amdhsa_system_sgpr_workgroup_id_x 1',
                '  .amdhsa_float_denorm_mode_32 3', '  .amdhsa_float_denorm_mode_16_64 3',
                '.end_amdhsa_kernel', '']
        return '\n'.join(out), probs, body


def ilist(s):
    return [int(x) for x in s.split(',')]


def parse(argv):
    ap = argparse.ArgumentParser()
    ap.add_argument('-o', default='cdna_kernels/%s.s' % NAME)
    ap.add_argument('--ref', default='cdna_kernels/%s.s.ref' % NAME)
    ap.add_argument('--k0', type=int, default=8)
    ap.add_argument('--thr', type=float, default=40)
    ap.add_argument('--stamps', action='store_true')
    ap.add_argument('--st', type=lambda s: s.split(','), default=['q0', 'q3', 'first', 'body', 'tail', 'stored'])
    ap.add_argument('--probe', default='')
    ap.add_argument('--pre', type=int, default=0)
    ap.add_argument('--cpf', type=int, default=1)
    ap.add_argument('--dstep', type=int, default=3)
    ap.add_argument('--epi', type=ilist, default=[1, 1])
    ap.add_argument('--r0', type=int, default=1)
    ap.add_argument('--wplus', type=int, default=1)
    ap.add_argument('--drop', type=lambda s: s.split(','), default=[])
    ap.add_argument('--touch', default='')
    ap.add_argument('--qearly', type=int, default=3)
    ap.add_argument('--fake', type=int, default=0)
    ap.add_argument('--fmem', type=int, default=2)
    ap.add_argument('--fvr', type=int, default=6)
    ap.add_argument('--fpk', type=int, default=4)
    ap.add_argument('--fsd', type=int, default=1)
    ap.add_argument('--fcap', type=ilist, default=[2, 10, 4])
    ap.add_argument('--bgstep', type=int, default=14)
    ap.add_argument('--cover', type=int, default=5)
    ap.add_argument('--nodma', action='store_true')
    ap.add_argument('--nobar', action='store_true')
    ap.add_argument('--show', action='store_true')
    ap.add_argument('--exp', default='')
    ap.add_argument('--qkord', type=int, default=3)
    ap.add_argument('--pvord', type=int, default=2)
    ap.add_argument('--align', type=int, default=6)
    ap.add_argument('--maxds', type=int, default=2)
    ap.add_argument('--bargap', type=int, default=0)
    ap.add_argument('--vwait', type=int, default=2)
    ap.add_argument('--kwait', type=int, default=1)
    ap.add_argument('--sumadd', type=int, default=0)
    ap.add_argument('--kper', type=int, default=1)
    ap.add_argument('--dgap', type=int, default=19)
    ap.add_argument('--dstride', type=int, default=4)
    ap.add_argument('--egaps', type=ilist, default=list(range(7, 62, 2)) + [62, 63, 65, 66])
    ap.add_argument('--kgaps', type=ilist, default=[34, 36, 38, 40, 42, 46, 48, 50])
    ap.add_argument('--dgaps', type=ilist, default=[43, 44, 52, 56, 60, 61])
    ap.add_argument('--mid', type=lambda s: [x.split(',') if x else [] for x in s.split('/')], default=[[], ['Q3', 'C0'], ['V0'], ['K1'], ['V1', 'K2'], [], []])
    ap.add_argument('--dgaps0', type=ilist, default=[51, 52, 56, 60, 64, 65])
    ap.add_argument('--roles', type=int, default=1)
    ap.add_argument('--pre1', type=lambda s: s.split(',') if s else [], default=['V0'])
    ap.add_argument('--mid1', type=lambda s: [x.split(',') if x else [] for x in s.split('/')], default=[[], ['Q3', 'C0'], ['K1'], [], ['V1', 'K2'], [], []])
    ap.add_argument('--bargap0', type=int, default=32)
    ap.add_argument('--kstep0', type=int, default=2)
    ap.add_argument('--kvflag', type=lambda s: s.replace('+', ' ') + ' ' if s else '', default='')
    ap.add_argument('--qflag', type=lambda s: s.replace('+', ' ') + ' ' if s else '', default='')
    ap.add_argument('--oflag', type=lambda s: s.replace('+', ' '), default='nt')
    return ap.parse_args(argv)


if __name__ == '__main__':
    o = parse(sys.argv[1:])
    g = Gen(o)
    s, probs, body = g.emit()
    open(o.o, 'w').write(s)
    if o.show:
        for p in body:
            cur = []
            for l in p + [MF]:
                if l.startswith(MF):
                    print(' | '.join(cur))
                    cur = []
                cur.append(l.split()[0].replace('v_mfma_f32_16x16x32_bf16', 'M').replace('buffer_load_dwordx4', 'DMA'))
    for p in probs[:40]:
        print('HAZARD', p)
    print('%d hazard findings' % len(probs))
```

```python
import re

REG_RE = re.compile(r'\b([vas])(?:\[(\d+):(\d+)\]|(\d+))')

TRANS = ('v_exp_f32', 'v_log_f32', 'v_rcp_f32', 'v_rsq_f32', 'v_sqrt_f32')


def regs_of(tok):
    out = []
    for m in REG_RE.finditer(tok):
        k = m.group(1)
        if m.group(2) is not None:
            out += [(k, i) for i in range(int(m.group(2)), int(m.group(3)) + 1)]
        else:
            out.append((k, int(m.group(4))))
    if re.search(r'\bvcc\b', tok):
        out.append(('x', 'vcc'))
    if re.search(r'\bm0\b', tok):
        out.append(('x', 'm0'))
    if re.search(r'\bexec\b', tok):
        out.append(('x', 'exec'))
    return out


def split_ops(rest):
    ops, cur, depth = [], '', 0
    for ch in rest:
        if ch == '[':
            depth += 1
        if ch == ']':
            depth -= 1
        if ch == ',' and depth == 0:
            ops.append(cur.strip())
            cur = ''
        else:
            cur += ch
    if cur.strip():
        ops.append(cur.strip())
    return ops


class I:
    def __init__(self, text):
        self.text = text
        t = text.split(';')[0].strip()
        self.label = t.endswith(':')
        self.kind = 'other'
        self.defs, self.uses = [], []
        self.srcc = []
        self.srcab = []
        if self.label or not t or t.startswith('.'):
            self.kind = 'none'
            self.op = ''
            return
        parts = t.split(None, 1)
        op = parts[0]
        op = re.sub(r'_(e32|e64|sdwa|dpp)$', '', op)
        self.op = op
        ops = split_ops(parts[1]) if len(parts) > 1 else []
        self.ops = ops
        R = [regs_of(o) for o in ops]
        flat = lambda l: [x for y in l for x in y]
        if op.startswith('v_mfma'):
            self.kind = 'mfma'
            self.defs = R[0]
            self.srcab = R[1] + R[2]
            self.srcc = R[3]
            self.uses = self.srcab + self.srcc
            self.passes = 8 if '32x32x16' in op else 4
        elif op.startswith('v_smfmac'):
            self.kind = 'mfma'
            self.defs = R[0]
            self.srcab = R[1] + R[2] + R[3]
            self.srcc = R[0]
            self.uses = self.srcab + self.srcc
            self.passes = 8
        elif op.startswith('ds_read'):
            self.kind = 'dsr'
            self.defs = R[0]
            self.uses = flat(R[1:])
        elif op.startswith('ds_write'):
            self.kind = 'dsw'
            self.uses = flat(R)
        elif op.startswith('buffer_load') or op.startswith('global_load'):
            if re.search(r'\blds\b', t) or 'load_lds' in op:
                self.kind = 'dma'
                self.uses = flat(R) + [('x', 'm0')]
            else:
                self.kind = 'vld'
                self.defs = R[0]
                self.uses = flat(R[1:])
        elif op.startswith('buffer_store') or op.startswith('global_store'):
            self.kind = 'vst'
            self.uses = flat(R)
            self.data = R[0] if op.startswith('buffer') else R[1]
            self.wide = op.endswith('x4') or op.endswith('x3')
        elif op.startswith('v_'):
            self.kind = 'valu'
            if op.startswith('v_cmp'):
                self.defs = R[0]
                self.uses = flat(R[1:])
            elif op.startswith('v_permlane'):
                self.defs = R[0] + R[1]
                self.uses = R[0] + R[1]
            elif op in ('v_fmac_f32', 'v_dot2c_f32_bf16', 'v_pk_fmac_f16'):
                self.defs = R[0]
                self.uses = flat(R)
            elif op in ('v_add_co_u32', 'v_addc_co_u32'):
                self.defs = R[0] + R[1]
                self.uses = flat(R[2:])
            elif op == 'v_nop':
                pass
            else:
                self.defs = R[0]
                self.uses = flat(R[1:])
                if 'UNUSED_PRESERVE' in t:
                    self.uses += R[0]
            self.trans = op in TRANS
        elif op == 's_waitcnt':
            self.kind = 'wait'
            m = re.search(r'vmcnt\((\d+)\)', t)
            self.vm = int(m.group(1)) if m else None
            m = re.search(r'lgkmcnt\((\d+)\)', t)
            self.lgkm = int(m.group(1)) if m else None
        elif op == 's_nop':
            self.kind = 'nop'
            self.n = int(ops[0], 0) + 1
        elif op == 's_barrier':
            self.kind = 'barrier'
        elif op.startswith('s_load') or op in ('s_memtime', 's_memrealtime'):
            self.kind = 'smem'
            self.defs = R[0]
            self.uses = flat(R[1:])
        elif op.startswith('s_cbranch') or op in ('s_branch', 's_endpgm', 's_setprio', 's_sleep'):
            self.kind = 'sctl'
            if 'vcc' in op:
                self.uses = [('x', 'vcc')]
        elif op.startswith('s_cmp'):
            self.kind = 'salu'
            self.uses = flat(R)
        elif op.startswith('s_'):
            self.kind = 'salu'
            self.defs = R[0] if R else []
            self.uses = flat(R[1:])
        else:
            raise ValueError('unknown instruction: ' + text)

    def states(self):
        if self.kind == 'none':
            return 0
        if self.kind == 'nop':
            return self.n
        return 1

    def slots(self):
        if self.kind == 'none':
            return 0
        if self.kind == 'nop':
            return self.n
        if self.kind == 'mfma':
            return 2
        if self.kind == 'valu' and self.trans:
            return 2
        return 1


def check_trace(lines, verbose=True):
    ins = [I(l) for l in lines]
    probs = []
    pos = 0
    last_valu_w = {}
    last_trans_w = {}
    last_mfma_w = {}
    last_mfma_c = {}
    last_salu_m0 = None
    last_valu_sw = {}
    last_wide_st = {}
    lds_q = []
    smem_pending = []
    vm_q = []
    for idx, x in enumerate(ins):
        if x.kind == 'none':
            continue

        def bad(msg):
            probs.append('%5d: %s   <- %s' % (idx, x.text.strip(), msg))
        touched = set(x.uses) | set(x.defs)
        for q, name in ((lds_q, 'lds'), (vm_q, 'vmem'), (smem_pending, 'smem')):
            for d in q:
                hit = touched & set(d)
                if hit:
                    bad('touches %s with a pending %s load' % (sorted(hit)[0], name))
                    break
        d = lambda p: pos - p - 1
        if x.kind == 'mfma':
            for r in x.uses:
                if r in last_valu_w and d(last_valu_w[r]) < 2:
                    bad('VALU->MFMA read %s needs 2, has %d' % (r, d(last_valu_w[r])))
            for r in x.srcab:
                if r in last_mfma_w:
                    p, ps, _ = last_mfma_w[r]
                    if d(p) < ps + 4:
                        bad('MFMA D->A/B %s needs %d has %d' % (r, ps + 4, d(p)))
            if x.srcc:
                for r in x.srcc:
                    if r in last_mfma_w:
                        p, ps, dd = last_mfma_w[r]
                        if dd == tuple(x.srcc) and ps == x.passes:
                            continue
                        if d(p) < ps + 2:
                            bad('MFMA D->C overlap %s needs %d has %d' % (r, ps + 2, d(p)))
        if x.kind in ('valu', 'dsr', 'dsw', 'vld', 'vst', 'dma'):
            chk = list(x.uses) + list(x.defs)
            for r in chk:
                if r in last_mfma_w:
                    p, ps, _ = last_mfma_w[r]
                    if d(p) < ps + 4:
                        bad('MFMA D->VALU/mem %s needs %d has %d' % (r, ps + 4, d(p)))
        if x.kind == 'valu':
            for r in x.defs:
                if r in last_mfma_c:
                    p, ps = last_mfma_c[r]
                    if d(p) < ps - 1:
                        bad('MFMA C read -> VALU write %s needs %d has %d' % (r, ps - 1, d(p)))
                if r in last_wide_st and d(last_wide_st[r]) < 2:
                    bad('wide store data WAR %s' % (r,))
            if not x.trans:
                for r in x.uses:
                    if r in last_trans_w and d(last_trans_w[r]) < 1:
                        bad('trans->VALU %s needs 1' % (r,))
            if x.op.startswith('v_permlane'):
                for r in x.uses:
                    if r in last_valu_w and d(last_valu_w[r]) < 2:
                        bad('VALU->permlane %s needs 2' % (r,))
            if x.op in ('v_readfirstlane_b32', 'v_readlane_b32'):
                for r in x.uses:
                    if r in last_valu_w and d(last_valu_w[r]) < 1:
                        bad('VALU->readlane %s needs 1' % (r,))
            for r in x.uses:
                if r in last_valu_sw and d(last_valu_sw[r]) < 2:
                    bad('VALU sgpr write -> VALU read %s needs 2' % (r,))
        if x.kind in ('dsr', 'vld'):
            for r in x.defs:
                if r in last_wide_st and d(last_wide_st[r]) < 1:
                    bad('wide store data WAR (load) %s' % (r,))
        if x.kind in ('vld', 'vst', 'dma'):
            for r in x.uses:
                if r in last_valu_sw and d(last_valu_sw[r]) < 5:
                    bad('VALU sgpr write -> VMEM %s needs 5' % (r,))
        if x.kind == 'dma' and last_salu_m0 is not None and d(last_salu_m0) < 1:
            bad('m0 write -> lds dma needs 1')
        if x.kind in ('salu', 'sctl'):
            for r in x.uses:
                if r in last_valu_sw and d(last_valu_sw[r]) < 1:
                    bad('(soft) VALU sgpr write -> SALU read %s' % (r,))
        if x.kind == 'wait':
            if x.lgkm is not None:
                if smem_pending:
                    if x.lgkm == 0:
                        smem_pending.clear()
                        lds_q.clear()
                    else:
                        while len(lds_q) > x.lgkm:
                            lds_q.pop(0)
                else:
                    while len(lds_q) > x.lgkm:
                        lds_q.pop(0)
            if x.vm is not None:
                while len(vm_q) > x.vm:
                    vm_q.pop(0)
        if x.kind == 'dsr':
            lds_q.append(x.defs)
            if len(lds_q) > 15:
                pass
        if x.kind == 'dsw':
            lds_q.append([])
        if x.kind == 'smem':
            smem_pending.append(x.defs)
        if x.kind == 'vld':
            vm_q.append(x.defs)
        if x.kind in ('vst', 'dma'):
            vm_q.append([])
        if len(vm_q) > 63:
            bad('more than 63 vmem ops outstanding')
        if x.kind == 'vst' and x.wide:
            for r in x.data:
                last_wide_st[r] = pos
        if x.kind == 'valu':
            for r in x.defs:
                if r[0] in 'va':
                    last_valu_w[r] = pos
                    last_mfma_w.pop(r, None)
                    if x.trans:
                        last_trans_w[r] = pos
                    else:
                        last_trans_w.pop(r, None)
                else:
                    last_valu_sw[r] = pos
        if x.kind == 'mfma':
            for r in x.defs:
                last_mfma_w[r] = (pos, x.passes, tuple(x.defs))
                last_valu_w.pop(r, None)
            for r in x.srcc:
                last_mfma_c[r] = (pos, x.passes)
        if x.kind == 'salu' and ('x', 'm0') in x.defs:
            last_salu_m0 = pos
        if x.kind == 'salu':
            for r in x.defs:
                last_valu_sw.pop(r, None)
        pos += x.states()
    return probs
```

```python
import sys, math, struct, argparse, re
from asmlib import I, check_trace

NAME = 'standalone__gqa_softmax__near_ridge'

V_O = 8
V_S = 136
V_C = 200
VKA = 216
VVA = 220
VDK = 228
VDV = 232
VOW = 234
VOR = 238
VOG = 240
VT = 244
VIX = 168
NP = 33
A_Q = 0
A_K = 64
A_V = 128
A_L = 192
A_1 = 208

S_Q, S_K, S_V, S_OD = 4, 8, 12, 16
S_W, S_M0K, S_M0V, S_OFFK, S_OFFV, S_CNT = 20, 21, 22, 23, 24, 25
S_C = 26
S_QOFF = 28
S_THR = 29
S_TMP = 30
S_STG = 32
S_QLDS = 33
S_TS = 40
S_OQ = 80
S_QB = 84
OPITCH = 272
V_BASE = 98304
MF = 'v_mfma_f32_16x16x32_bf16'


def f2u(x):
    return struct.unpack('<I', struct.pack('<f', x))[0]


def vr(b, n=1):
    return 'v%d' % b if n == 1 else 'v[%d:%d]' % (b, b + n - 1)


def ar(b, n=1):
    return 'a%d' % b if n == 1 else 'a[%d:%d]' % (b, b + n - 1)


def sr(b, n=1):
    return 's%d' % b if n == 1 else 's[%d:%d]' % (b, b + n - 1)


def SB(n):
    return V_S + 16 * (n & 1)


def O(qb, db):
    return V_O + 32 * qb + 4 * db


def ismf(l):
    return l.startswith(MF) or l.startswith('v_smfmac')


def ismem(l):
    return I(l).kind in ('dsr', 'dsw', 'vst', 'dma', 'vld', 'wait', 'barrier', 'sctl', 'salu', 'smem')


def cost(l):
    x = I(l)
    if x.kind == 'valu' and (x.trans or x.op.startswith('v_permlane')):
        return 2
    if x.kind == 'nop':
        return x.n
    return 1


class Gen:
    def __init__(self, opt):
        self.o = opt
        self.nts = 0

    def qk_slots(self):
        return [(kb, st if kb % 2 == 0 else 3 - st, st == 0) for kb in range(4) for st in range(4)]

    def qk_mfma(self, n, kb, st, first, czero=False):
        qb = n & 3
        d = vr(SB(n) + 4 * kb, 4)
        c = d if not first else ('0' if czero else vr(V_C + 4 * qb, 4))
        return '%s %s, %s, %s, %s' % (MF, d, ar(A_K + 16 * kb + 4 * st, 4), ar(A_Q + 16 * qb + 4 * st, 4), c)

    def qk(self, n):
        return [self.qk_mfma(n, *a) for a in self.qk_slots()]

    def pv(self, n):
        qb = n & 3
        z = n < 4
        out = ['v_smfmac_f32_16x16x64_bf16 %s, %s, %s, %s' % (ar(A_L + 4 * qb, 4), ar(A_1, 4), vr(SB(n), 8), vr(VIX))]
        for db in range(8):
            o = vr(O(qb, db), 4)
            out += ['%s %s, %s, %s, %s' % (MF, o, ar(A_V + 32 * h + 4 * db, 4), vr(SB(n) + 4 * h, 4), '0' if (z and h == 0) else o) for h in range(2)]
        return out

    def k_read(self, t, kb, st):
        return 'ds_read_b128 %s, %s offset:%d' % (ar(A_K + 16 * kb + 4 * st, 4), vr(VKA + st), (t & 3) * 16384 + kb * 4096)

    def v_read(self, t, h, db, j, addr=VVA, base=None):
        off = ((t + 1) & 3) * 16384 + h * 8192 if base is None else base
        return 'ds_read_b64_tr_b16 %s, %s offset:%d' % (ar(A_V + 32 * h + 4 * db + 2 * j, 2), vr(addr + db), off + j * 4096)

    def v_list(self, t):
        return [self.v_read(t, h, db, j) for db in range(8) for h in range(2) for j in range(2)]

    def sm_seq(self, n):
        seq = []
        for kb in range(4):
            s = SB(n) + 4 * kb
            for r in range(4):
                cv = None
                if r & 1:
                    cv = 'v_cvt_pk_bf16_f32 %s, %s, %s' % (vr(SB(n) + 2 * kb + (r >> 1)), vr(s + r - 1), vr(s + r))
                seq.append(('v_exp_f32 %s, %s' % (vr(s + r), vr(s + r)), cv))
        return seq

    def sm_stream(self, n, ready=lambda k: 0, lo=0, hi=16):
        out, pend = [], []
        for k, (ex, cv) in list(enumerate(self.sm_seq(n)))[lo:hi]:
            out.append((ready(k), ex))
            out += pend
            pend = [(ready(k), cv)] if cv else []
        return out, pend

    def dma(self, kind, i):
        o = self.o
        if kind == 'K':
            return 'buffer_load_dwordx4 %s, %s, %s offen offset:%d %slds' % (vr(VDK + i), sr(S_K, 4), sr(S_OFFK), 1024 * i, o.kvflag)
        if kind == 'V':
            return 'buffer_load_dwordx4 %s, %s, %s offen offset:%d %slds' % (vr(VDV + (i & 1)), sr(S_V, 4), sr(S_OFFV), 1024 * i, o.kvflag)
        return 'buffer_load_dwordx4 %s, %s, %s offen offset:%d %slds' % (vr(VDK + i), sr(S_Q, 4), sr(S_QOFF), 1024 * i, o.qflag)

    def m0_for(self, kind, t):
        return 's_add_u32 m0, %s, %d' % (sr(S_M0V if kind == 'V' else S_M0K), ((t + (kind == 'V')) & 3) * 16384)

    def q_pre(self, j):
        return ['s_add_u32 m0, %s, %d' % (sr(S_QLDS), 4096 * j), 's_add_u32 %s, %s, %d' % (sr(S_QOFF), sr(S_QB), 4096 * j)]

    def stamp(self, name=None):
        if not self.o.stamps or (name is not None and name not in self.o.st):
            return []
        k = self.nts
        self.nts += 1
        return ['s_memtime %s' % sr(S_TS + 4 * k, 2), 's_memrealtime %s' % sr(S_TS + 4 * k + 2, 2)]

    def pack(self, mf, streams, cap, nmem=lambda g: 2):
        out = []
        for g in range(len(mf)):
            mem, val = [], []
            c = 0
            for q in streams:
                while q and q[0][0] <= g and ismem(q[0][1]) and len(mem) < nmem(g):
                    mem.append(q.pop(0)[1])
                    c += 1
            for q in streams:
                while q and q[0][0] <= g and not ismem(q[0][1]) and c + cost(q[0][1]) <= cap(g):
                    c += cost(q[0][1])
                    val.append(q.pop(0)[1])
            out.append(mf[g])
            out += mem + val
        return out + [l for q in streams for _, l in q]

    @staticmethod
    def before(lines, items, slot):
        ms = [i for i, l in enumerate(lines) if ismf(l)]
        head = lines[:ms[slot]]
        for l in items:
            assert l.startswith('s_nop') or l in head, (slot, l)

    @staticmethod
    def auto_lgkm(lines, age=16):
        out, pend = [], []
        for k, l in enumerate(lines):
            x = I(l)
            if x.kind == 'wait' and x.lgkm is not None:
                pend = pend[len(pend) - x.lgkm:] if x.lgkm else []
            touched = set(x.uses) | set(x.defs)
            idx = [i for i, (r, _, _) in enumerate(pend) if touched & set(r)]
            if idx:
                last = max(idx)
                pos = len(out)
                if x.kind == 'mfma':
                    j = len(out) - 1
                    while j >= 0 and not ismf(out[j]):
                        j -= 1
                    if j >= 0 and pend[last][2] <= j:
                        pos = j + 1
                early = [p for p in pend if p[2] < pos]
                while last + 1 < len(early) and early[last + 1][1] <= k - age:
                    last += 1
                n = min(15, len(early) - 1 - last)
                out.insert(pos, 's_waitcnt lgkmcnt(%d)' % n)
                keep = early[len(early) - n:] if n else []
                pend = keep + [(r, kk, p + 1) for r, kk, p in pend[len(early):]]
            out.append(l)
            if x.kind == 'dsr':
                pend.append((x.defs, k, len(out) - 1))
            if x.kind == 'dsw':
                pend.append(([], k, len(out) - 1))
        return out

    @staticmethod
    def fix_hazards(prefix, lines):
        lines = list(lines)
        for _ in range(300):
            pr = [p for p in check_trace(prefix + lines) if int(p.split(':')[0]) >= len(prefix)]
            if not pr:
                return lines
            p = pr[0]
            m = re.search(r'needs (\d+),? has (\d+)', p)
            assert 'pending' not in p, p
            n = int(m.group(1)) - int(m.group(2)) if m else 1
            lines.insert(int(p.split(':')[0]) - len(prefix), 's_nop %d' % (n - 1))
        raise RuntimeError('hazards keep coming')

    EG = list(range(1, 32, 2))

    def steady(self, n0, n1, vmw=8, kdma=True, vdma=True, bar=True):
        o = self.o
        mf, shadow, valu, isexp = [], [], [], []
        for n in range(n0, n1):
            mf += self.qk(n + 1) + self.pv(n)
            v = [[] for _ in range(NP)]
            seq = self.sm_seq(n)[13:] + self.sm_seq(n + 1)[:13]
            for g, (ex, cv) in zip(self.EG, seq):
                v[g].append(ex)
                if cv:
                    v[g + 1].append(cv)
            valu += v
            shadow += [[] for _ in range(NP)]
            isexp += [g in self.EG for g in range(NP)]
        N = len(mf)
        free = lambda g: 0 if isexp[g] else 2 - len(valu[g]) - len([x for x in shadow[g] if not x.startswith('s_add')])

        def put(items):
            g, dbl = 0, False
            for ready, l in items:
                g = max(g, ready)
                while free(g) < 1 or (shadow[g] and g > 0 and len(shadow[g - 1]) == 2):
                    g += 1
                shadow[g].append(l)
            return g

        def put_dma(kind, t, g, step):
            off = S_OFFV if kind == 'V' else S_OFFK
            shadow[g].append(self.m0_for(kind, t))
            g += 1
            for i in range(4):
                while free(g) < 1:
                    g += 1
                shadow[g].append(self.dma(kind, i))
                g += step
            shadow[g - step + 1].append('s_add_u32 %s, %s, 16384' % (sr(off), sr(off)))
        for n in range(n0, n1):
            b = NP * (n - n0)
            t = n >> 2
            if n & 3 == 2 and t < 15:
                if bar and not o.nobar:
                    shadow[b] += ['s_waitcnt vmcnt(%d)' % vmw, 's_barrier']
                put([(b + max(s, 1), self.k_read(t + 1, kb, st)) for s, (kb, st, _) in enumerate(self.qk_slots())])
            if n & 3 == 3 and t < 15:
                put([(b + 17 + k // 2, l) for k, l in enumerate(self.v_list(t + 1))])
                if kdma and not o.nodma:
                    put_dma('K', t + 3, b + o.kdg, o.dstride)
            if n & 3 == 1 and vdma and not o.nodma:
                put_dma('V', t + 2, b + o.vdg, o.dstride)
        out = []
        for g in range(N):
            if g % NP == 4 and not shadow[g]:
                shadow[g].append('s_nop 0')
            out.append(mf[g])
            out += shadow[g] + valu[g]
        return out

    def xlane(self, op, regs, tmps):
        L = []
        for sw in ('v_permlane32_swap_b32', 'v_permlane16_swap_b32'):
            L += ['v_mov_b32 %s, %s' % (vr(t), vr(r)) for r, t in zip(regs, tmps)]
            if len(regs) < 3:
                L.append('s_nop 1')
            L += ['%s %s, %s' % (sw, vr(r), vr(t)) for r, t in zip(regs, tmps)]
            L += ['%s %s, %s, %s' % (op, vr(r), vr(r), vr(t)) for r, t in zip(regs, tmps)]
        return L

    def common(self):
        o = self.o
        L = []
        e = L.append
        e('s_cmp_ge_u32 s2, 256')
        e('s_cbranch_scc1 L_done')
        e('s_load_dwordx4 s[36:39], s[0:1], 0')
        e('s_load_dwordx4 s[96:99], s[0:1], 16')
        e('s_getpc_b64 s[34:35]')
        e('L_pc:')
        e('v_lshlrev_b32 v4, 4, v0')
        if o.roles:
            e('s_bitcmp1_b32 s2, 3')
            e('s_cselect_b32 s3, L_role1 - L_pc, 0')
            e('v_add_u32 v4, s3, v4')
        e('global_load_dwordx4 %s, v4, s[34:35]' % vr(V_C, 4))
        if o.stamps:
            e('s_load_dwordx2 s[90:91], s[0:1], 40')
            e('s_memrealtime s[92:93]')
        L += self.stamp()
        e('v_lshrrev_b32 v2, 6, v0')
        e('v_bfe_u32 v5, v0, 4, 2')
        e('v_readfirstlane_b32 %s, v2' % sr(S_W))
        e('v_and_b32 v6, 15, v0')
        e('v_lshlrev_b32 v7, 8, v5')
        e('v_lshl_add_u32 v7, v2, 12, v7')
        e('v_xor_b32 v3, v6, v5')
        e('v_lshl_add_u32 %s, v3, 4, v7' % vr(VDK))
        for i in range(1, 4):
            e('v_xor_b32 %s, %d, %s' % (vr(VDK + i), i << 6, vr(VDK)))
        e('s_and_b32 s30, s2, 7')
        e('s_lshr_b32 s3, s2, 4')
        e('s_lshl4_add_u32 s30, s30, s3')
        e('s_bfe_u32 s31, s2, 0x10003')
        e('s_lshl1_add_u32 s31, s30, s31')
        e('s_lshl_b32 s30, s30, 18')
        e('s_lshl_b32 s31, s31, 16')
        e('s_lshl_b32 %s, %s, 12' % (sr(S_M0K), sr(S_W)))
        e('s_mul_i32 %s, %s, 12288' % (sr(S_QB), sr(S_W)))
        e('s_lshl2_add_u32 %s, %s, 0xc000' % (sr(S_QLDS), sr(S_M0K)))
        e('s_mov_b32 %s, 0' % sr(S_OFFK))
        e('s_mov_b32 s10, 0x40000')
        e('s_mov_b32 s11, 0x20000')
        e('s_mov_b32 s6, 0x10000')
        e('s_mov_b32 s7, 0x20000')
        e('s_mov_b32 m0, %s' % sr(S_M0K))
        e('s_waitcnt lgkmcnt(0)')
        e('s_add_u32 s8, s38, s30')
        e('s_addc_u32 s9, s39, 0')
        L += [self.dma('K', i) for i in range(4)]
        e('s_add_u32 s4, s36, s31')
        e('s_addc_u32 s5, s37, 0')
        for j in range(o.qe[0]):
            if o.roles and j == o.qe[1]:
                e('s_bitcmp1_b32 s2, 3')
                e('s_cbranch_scc1 L_qskip')
            L += self.q_pre(j) + [self.dma('Q', i) for i in range(4)]
        if o.roles and o.qe[1] < o.qe[0]:
            e('L_qskip:')
        e('v_and_b32 v1, 63, v0')
        e('s_lshr_b32 s3, s2, 3')
        e('s_lshl2_add_u32 s3, s3, %s' % sr(S_W))
        e('s_and_b32 s3, s3, 31')
        e('s_min_u32 s3, s3, (L_slow - L_pc) / 1024 - 4')
        e('s_lshl_b32 s3, s3, 10')
        e('s_add_u32 s3, s3, 4096')
        e('s_add_u32 s34, s34, s3')
        e('s_addc_u32 s35, s35, 0')
        e('v_lshlrev_b32 %s, 4, v1' % vr(VT + 8))
        e('s_add_u32 s12, s96, s30')
        e('s_addc_u32 s13, s97, 0')
        e('s_mov_b32 s14, 0x40000')
        e('s_mov_b32 s15, 0x20000')
        e('s_add_u32 %s, %s, %d' % (sr(S_M0V), sr(S_M0K), V_BASE))
        e('v_lshlrev_b32 v3, 1, v5')
        e('v_xor_b32 v3, v6, v3')
        e('v_lshl_add_u32 %s, v3, 4, v7' % vr(VDV))
        e('v_xor_b32 %s, 0x80, %s' % (vr(VDV + 1), vr(VDV)))
        e('s_add_u32 s16, s98, s31')
        e('s_addc_u32 s17, s99, 0')
        e('s_mov_b32 s18, 0x10000')
        e('s_mov_b32 s19, 0x20000')
        e('v_xor_b32 v3, v5, v6')
        e('v_lshlrev_b32 v4, 8, v6')
        e('v_lshl_add_u32 %s, v3, 4, v4' % vr(VKA))
        for st in range(1, 4):
            e('v_xor_b32 %s, %d, %s' % (vr(VKA + st), st << 6, vr(VKA)))
        for st in range(4):
            e('v_add_u32 %s, %s, %s' % (vr(VT + st), sr(S_QLDS), vr(VKA + st)))
        c = math.log2(math.e) / math.sqrt(128.0)
        e('s_mov_b32 %s, 0x%08x' % (sr(S_C), f2u(c)))
        e('s_mov_b32 %s, 0x%08x' % (sr(S_C + 1), f2u(c)))
        e('s_mov_b32 %s, 0x%08x' % (sr(S_THR), f2u(2.0 ** o.thr)))
        e('s_mov_b32 %s, 0xffff0000' % sr(S_TMP))
        e('v_lshrrev_b32 v3, 2, v1')
        e('v_lshlrev_b32 v2, 8, v3')
        e('v_and_b32 v3, 7, v3')
        e('v_lshl_add_u32 v2, v3, 5, v2')
        e('v_and_b32 v3, 3, v1')
        e('v_lshl_add_u32 v2, v3, 3, v2')
        e('v_add_u32 %s, %d, v2' % (vr(VVA), V_BASE))
        for db in range(1, 8):
            e('v_xor_b32 %s, %d, %s' % (vr(VVA + db), db << 5, vr(VVA)))
        e('s_mul_i32 %s, %s, %d' % (sr(S_STG), sr(S_W), 4 * OPITCH * 16))
        e('v_mul_u32_u24 v3, %d, v6' % OPITCH)
        e('v_lshl_add_u32 v3, v5, 3, v3')
        e('v_add_u32 %s, %s, v3' % (vr(VOW), sr(S_STG)))
        for qb in range(1, 4):
            e('v_add_u32 %s, %d, %s' % (vr(VOW + qb), qb * OPITCH * 16, vr(VOW)))
        e('v_mul_u32_u24 v3, %d, v5' % OPITCH)
        e('v_lshl_add_u32 v3, v6, 4, v3')
        e('v_add_u32 %s, %s, v3' % (vr(VOR), sr(S_STG)))
        e('s_lshl_b32 s3, %s, 14' % sr(S_W))
        e('v_lshlrev_b32 v3, 4, v1')
        e('v_add_u32 %s, s3, v3' % vr(VOG))
        for qb in range(1, 4):
            e('s_movk_i32 %s, %d' % (sr(S_OQ + qb), 4096 * qb))
        e('v_and_b32 v3, 2, v1')
        e('v_cmp_eq_u32 vcc, 0, v3')
        e('v_mov_b32 v2, 0x3f803f80')
        e('s_mov_b32 %s, 0' % sr(S_CNT))
        e('v_cndmask_b32 v3, 0, v2, vcc')
        for j in range(4):
            e('v_accvgpr_write_b32 %s, v3' % ar(A_1 + j))
        e('v_and_b32 v3, 1, v1')
        e('v_cmp_eq_u32 vcc, 0, v3')
        e('v_mov_b32 v2, 0x44444444')
        e('v_mov_b32 v3, 0xeeeeeeee')
        e('v_cndmask_b32 %s, v3, v2, vcc' % vr(VIX))
        for j in range(16):
            e('v_accvgpr_write_b32 %s, 0' % ar(A_L + j))
        if o.roles:
            e('s_bitcmp1_b32 s2, 3')
            e('s_cbranch_scc1 L_role1')
        return L

    def dmax(self, qb):
        T = VT + 4 + 2 * (qb & 1)
        sq = SB(qb)
        D = ['v_max3_f32 %s, %s, %s, %s' % (vr(T), vr(sq), vr(sq + 1), vr(sq + 2)),
             'v_max3_f32 %s, %s, %s, %s' % (vr(T + 1), vr(sq + 4), vr(sq + 5), vr(sq + 6)),
             'v_max3_f32 %s, %s, %s, %s' % (vr(T), vr(T), vr(sq + 3), vr(sq + 7)),
             'v_max_f32 %s, %s, %s' % (vr(T), vr(T), vr(T + 1))]
        for sw in ('v_permlane32_swap_b32', 'v_permlane16_swap_b32'):
            D += ['v_mov_b32 %s, %s' % (vr(T + 1), vr(T)), 's_nop 1', '%s %s, %s' % (sw, vr(T), vr(T + 1)), 'v_max_f32 %s, %s, %s' % (vr(T), vr(T), vr(T + 1))]
        D += ['v_sub_f32 %s, 0, %s' % (vr(V_C + 4 * qb + r), vr(T)) for r in range(4)]
        return D

    def sm0(self, qb):
        out = []
        st, pend = self.sm_stream(qb)
        sub = ['v_add_f32 %s, %s, %s' % (vr(SB(qb) + r), vr(SB(qb) + r), vr(V_C + 4 * qb)) for r in range(16)]
        return sub + [l for _, l in st] + ['s_nop 0'] + [l for _, l in pend]

    def head(self, role):
        o = self.o
        mid = o.mid if role == 0 else o.mid1
        L = []
        e = L.append
        vm = ['K0'] * 4 + ['Q%d' % j for j in range(o.qe[role]) for _ in range(4)]

        def wait(*tags):
            last = max(i for i, t in enumerate(vm) if t in tags)
            e('s_waitcnt vmcnt(%d)' % (len(vm) - 1 - last))

        RAW = O(3, 0)
        TM = O(3, 4)

        def prescale(qb, st):
            b = RAW + 4 * st
            t0 = TM + 8 * (st & 1)
            P = []
            for j in range(4):
                P.append('v_lshlrev_b32 %s, 16, %s' % (vr(t0 + 2 * j), vr(b + j)))
                P.append('v_and_b32 %s, %s, %s' % (vr(t0 + 2 * j + 1), sr(S_TMP), vr(b + j)))
            P += ['v_pk_mul_f32 %s, %s, %s' % (vr(t0 + 2 * j, 2), vr(t0 + 2 * j, 2), sr(S_C, 2)) for j in range(4)]
            P += ['v_cvt_pk_bf16_f32 %s, %s, %s' % (vr(t0 + 2 * j), vr(t0 + 2 * j), vr(t0 + 2 * j + 1)) for j in range(4)]
            P += ['v_accvgpr_write_b32 %s, %s' % (ar(A_Q + 16 * qb + 4 * st + j), vr(t0 + 2 * j)) for j in range(4)]
            return P

        def dma_lines(x):
            kind, t = x[0], int(x[1:])
            if kind == 'T':
                vm.append('C')
                return [([], 'buffer_load_dword %s, %s, %s, 0 offen' % (vr(VT + 7), vr(VOG), sr(S_OD, 4)))]
            if kind == 'C':
                vm.append('C')
                return [([], 'global_load_dwordx4 %s, %s, s[34:35]' % (vr(VT + 8, 4), vr(VT + 8)))]
            vm.extend([x] * 4)
            if kind == 'Q':
                pre = self.q_pre(t)
            else:
                pre = ['s_mov_b32 %s, %d' % (sr(S_OFFV if kind == 'V' else S_OFFK), 16384 * t), self.m0_for(kind, t), 's_nop 0']
            return [(pre if i == 0 else [], self.dma(kind, i)) for i in range(4)]

        def background(seg, xs, start, step):
            items = [z for x in xs for z in dma_lines(x)]
            out, nxt = [], start
            for i, l in enumerate(seg):
                out.append(l)
                if items and i >= nxt and (ismf(l) or not (i + 1 < len(seg) and ismf(seg[i + 1]))):
                    pre, ld = items.pop(0)
                    out += pre + [ld]
                    nxt = i + step
            for pre, ld in items:
                out += pre + [ld]
            return out

        for x in mid[0]:
            if x[0] == 'w':
                wait(x[1:])
            else:
                for pre, ld in dma_lines(x):
                    L += pre + [ld]
        F = []
        for qb in range(4):
            if qb == 1:
                wait('Q1', 'V0')
                L += self.stamp('q1')
                e('s_barrier')
            else:
                wait('Q%d' % qb)
                L += self.stamp('q%d' % qb)
            G = ['ds_read_b128 %s, %s offset:%d' % (vr(RAW + 4 * st, 4), vr(VT + st), 4096 * qb) for st in range(4)]
            G += F
            c0 = [[self.qk_mfma(qb, kb, st, st == 0, czero=True) for kb in range(4)] for st in range(4)]
            vl = self.v_list(0) if qb == 1 else []
            for st in range(4):
                P = prescale(qb, st)
                if st and qb:
                    m = c0[st - 1]
                    P = P[:12]
                    Q = prescale(qb, st)[12:]
                    for k in range(4):
                        P += [m[k]] + vl[:2] + Q[2 * k:2 * k + 2]
                        vl = vl[2:]
                G += P
            if qb == 0:
                G.append('s_barrier')
                kr = [self.k_read(0, kb, st) for st in range(4) for kb in range(4)]
                G += kr[:12] + c0[0][:1] + kr[12:] + c0[0][1:] + c0[1] + c0[2]
            for m in c0[3]:
                G += [m] + vl[:2]
                vl = vl[2:]
            assert not vl
            if qb < 3:
                S0 = self.dmax(qb) + self.sm0(qb)
                F = S0[len(S0) - o.carry:]
                S0 = S0[:len(S0) - o.carry]
                if qb:
                    G += self.pack(self.pv(qb - 1), [[(2, l) for l in S0]], lambda g: o.hcap[2])
                else:
                    G += S0
            L += background(G, mid[qb + 1], 3, o.bgstep)
        wait('K1', 'C')
        L += self.stamp('k1')
        e('s_barrier')
        mf = self.pv(2) + self.qk(4) + self.pv(3)
        s1 = [(k // 2, self.k_read(1, kb, st)) for k, (kb, st, _) in enumerate(self.qk_slots())]
        s2 = [(1, l) for l in self.dmax(3) + self.sm0(3)]
        st4, pend = self.sm_stream(4, lambda k: 17 + 4 * (k >> 2) + 3 + 3, 0, 13)
        G = self.pack(mf, [s1, s2, st4], lambda g: o.hcap[0] if g < NP else o.hcap[1])
        self.before(G, self.sm0(3), NP)
        assert not pend
        vl = self.v_list(1)
        out, k, nm = [], 0, 0
        for l in G:
            out.append(l)
            if ismf(l):
                nm += 1
                if nm == 34:
                    out.append('WAIT_V1')
                if nm > 34 + 1 and (nm & 1) == 0:
                    out += vl[k:k + 2]
                    k += 2
        j = out.index('WAIT_V1')
        L += background(out[:j], mid[5], 12, 13)
        wait('V1')
        e('s_barrier')
        L += background(out[j + 1:], mid[6], 2, 13)
        self.v_left = vl[k:]
        kv = [x for x in vm if x[0] in 'KV']
        assert [x for x in kv if x[0] == 'K'] == [x for x in ['K0', 'K1', 'K2', 'K3'] for _ in range(4)], vm
        assert [x for x in kv if x[0] == 'V'] == [x for x in ['V0', 'V1', 'V2'] for _ in range(4)], vm
        assert vm[-4:] == ['K3'] * 4, vm
        e('s_mov_b32 %s, %d' % (sr(S_OFFK), 16384 * 4))
        e('s_mov_b32 %s, %d' % (sr(S_OFFV), 16384 * 3))
        L += self.stamp('first')
        P = self.steady(4, 6)
        out, nm, left = [], -1, list(self.v_left)
        for i, l in enumerate(P):
            out.append(l)
            if ismf(l):
                nm += 1
                if left and nm not in self.EG:
                    nx = P[i + 1]
                    take = 1 if nx.startswith('v_cvt') else 2
                    out += left[:take]
                    left = left[take:]
        assert not left
        return L + out + self.stamp('loop')

    def norm_group(self, qb, j, packed):
        rc = VT + 4 + 2 * qb
        a, b = O(qb, 2 * j), O(qb, 2 * j + 1)
        if packed:
            V = ['v_pk_mul_f32 %s, %s, %s op_sel_hi:[1,0]' % (vr(a + 2 * k, 2), vr(a + 2 * k, 2), vr(rc, 2)) for k in range(4)]
        else:
            V = ['v_mul_f32 %s, %s, %s' % (vr(a + k), vr(a + k), vr(rc)) for k in range(8)]
        V += ['v_cvt_pk_bf16_f32 %s, %s, %s' % (vr(a), vr(a), vr(a + 1)), 'v_cvt_pk_bf16_f32 %s, %s, %s' % (vr(a + 1), vr(a + 2), vr(a + 3)),
              'v_cvt_pk_bf16_f32 %s, %s, %s' % (vr(a + 2), vr(b), vr(b + 1)), 'v_cvt_pk_bf16_f32 %s, %s, %s' % (vr(a + 3), vr(b + 2), vr(b + 3))]
        return V + ['ds_write2_b64 %s, %s, %s offset0:%d offset1:%d' % (vr(VOW + qb), vr(a, 2), vr(a + 2, 2), 8 * j, 8 * j + 4)]

    def o_reads(self, qb):
        return ['ds_read_b128 %s, %s offset:%d' % (vr(O(qb, 2 * i + 1), 4), vr(VOR), OPITCH * (16 * qb + 4 * i)) for i in range(4)]

    def o_stores(self, qb):
        return ['buffer_store_dwordx4 %s, %s, %s, %s offen offset:%d %s' % (vr(O(qb, 2 * i + 1), 4), vr(VOG), sr(S_OD, 4), sr(S_OQ + qb) if qb else '0', 1024 * i, self.o.oflag)
                for i in range(4)]

    def final(self):
        o = self.o
        T = VT
        mf = self.qk(62) + self.pv(61) + self.qk(63) + self.pv(62) + self.pv(63)
        N = len(mf)
        PVS = {0: -100, 1: 16, 2: 49, 3: 66}
        c61, pc = self.sm_stream(61, lambda k: 0, 13, 16)
        c61 += [(0, 's_nop 0')] + pc
        a, pa = self.sm_stream(62, lambda k: 4 * (k >> 2) + 6)
        b, pb = self.sm_stream(63, lambda k: NP + 4 * (k >> 2) + 6)
        pace = lambda st, g0: [(max(r, g0 + (o.fpace * i) // 8), l) for i, (r, l) in enumerate(st)]
        s2 = c61 + pace(a + [(0, 's_nop 0')] + pa, 6) + pace(b + [(0, 's_nop 0')] + pb, NP + 6)
        s3 = []
        for qb in range(4):
            r = max(0, PVS[qb] + 3)
            s3 += [(r, 'v_accvgpr_read_b32 %s, %s' % (vr(T + qb), ar(A_L + 4 * qb))),
                   (r, 'v_accvgpr_read_b32 %s, %s' % (vr(T + 5 + 2 * qb), ar(A_L + 4 * qb + 1))),
                   (r, 'v_add_f32 %s, %s, %s' % (vr(T + qb), vr(T + qb), vr(T + 5 + 2 * qb))),
                   (r, 'v_cmp_ngt_f32 vcc, %s, %s' % (sr(S_THR), vr(T + qb))),
                   (r, 'v_rcp_f32 %s, %s' % (vr(T + 4 + 2 * qb), vr(T + qb))),
                   (r + 1, 's_cbranch_vccnz L_slow' if not o.exp else 's_nop 0')]
        s4, stores = [], []
        groups = [(qb, j) for qb in range(4) for j in range(4)]
        for n, (qb, j) in enumerate(groups):
            ready = max(PVS[qb] + 1 + 4 * j + 3 + 3, PVS[qb] + 7, 3)
            late = ready >= N - o.fpk
            if late:
                ready = N + 1
            s4 += [(ready, l) for l in self.norm_group(qb, j, late)]
            if j == 3:
                s4 += [(ready, l) for l in self.o_reads(qb)]
                stores += [(n + o.fsd + i, st) for i, st in enumerate(self.o_stores(qb))]
            s4 += [(ready, z[1]) for z in stores if z[0] == n]
        s4 += [(N + 1, z[1]) for z in stores if z[0] >= len(groups)]
        G = self.pack(mf, [[(0, 's_barrier')], s3, s2, s4], lambda g: o.fcap)
        for n, slot in ((61, 16), (62, 49), (63, 66)):
            self.before(G, [cv for _, cv in self.sm_seq(n)[13:] if cv], slot)
        return G

    def plain_store(self):
        L = [l for qb in range(4) for j in range(4) for l in self.norm_group(qb, j, True)]
        for qb in range(4):
            L += self.o_reads(qb)
        L.append('s_waitcnt lgkmcnt(0)')
        for qb in range(4):
            L += self.o_stores(qb)
        return L

    def slow_path(self):
        L = []
        e = L.append
        T = VT
        M = V_C
        SK = V_S + 36
        SV = SK + 1
        SVA = SK + 4
        S = lambda qb: V_S + 8 * qb
        e('L_slow:')
        e('s_waitcnt vmcnt(0) lgkmcnt(0)')
        e('s_nop 7')
        e('v_mbcnt_lo_u32_b32 v1, -1, 0')
        e('v_mbcnt_hi_u32_b32 v1, -1, v1')
        e('v_and_b32 v2, 15, v1')
        e('v_lshrrev_b32 v3, 4, v1')
        e('v_lshlrev_b32 v2, 8, v2')
        e('v_lshl_add_u32 %s, v3, 4, v2' % vr(SK))
        e('v_subrev_u32 %s, %s, %s' % (vr(SV), sr(S_M0K), vr(VDV)))
        e('v_subrev_u32 %s, %s, %s' % (vr(SV + 1), sr(S_M0K), vr(VDV + 1)))
        e('s_sub_u32 s3, %s, %d' % (sr(S_STG), V_BASE))
        for db in range(8):
            e('v_add_u32 %s, s3, %s' % (vr(SVA + db), vr(VVA + db)))
        for i in range(128):
            e('v_mov_b32 %s, 0' % vr(V_O + i))
        for qb in range(4):
            e('v_mov_b32 %s, 0xff7fffff' % vr(M + qb))
            e('v_mov_b32 %s, 0' % vr(M + 4 + qb))
        e('s_mov_b32 %s, 0' % sr(S_CNT))
        e('L_slow_loop:')
        e('s_mov_b32 m0, %s' % sr(S_STG))
        e('s_add_u32 s31, %s, 4096' % sr(S_CNT))
        for i in range(4):
            e('buffer_load_dwordx4 %s, %s, %s offen offset:%d lds' % (vr(SV + (i & 1)), sr(S_V, 4), sr(S_CNT), 1024 * i))
        e('s_add_u32 m0, %s, 4096' % sr(S_STG))
        e('s_nop 0')
        for i in range(4):
            e('buffer_load_dwordx4 %s, %s, s31 offen offset:%d lds' % (vr(SV + (i & 1)), sr(S_V, 4), 1024 * i))
        for kb in range(2):
            for st in range(4):
                e('buffer_load_dwordx4 %s, %s, %s, %s offen offset:%d' % (ar(A_K + 16 * kb + 4 * st, 4), vr(SK), sr(S_K, 4), 's31' if kb else sr(S_CNT), 64 * st))
        e('s_waitcnt vmcnt(0)')
        for kb in range(2):
            for st in range(4):
                for qb in range(4):
                    d = vr(S(qb) + 4 * kb, 4)
                    e('%s %s, %s, %s, %s' % (MF, d, ar(A_K + 16 * kb + 4 * st, 4), ar(A_Q + 16 * qb + 4 * st, 4), d if st else '0'))
        for db in range(8):
            for j in range(2):
                e(self.v_read(0, 0, db, j, addr=SVA, base=0))
        for qb in range(4):
            s = S(qb)
            e('v_max3_f32 %s, %s, %s, %s' % (vr(T + qb), vr(M + qb), vr(s), vr(s + 1)))
            for k in range(1, 4):
                e('v_max3_f32 %s, %s, %s, %s' % (vr(T + qb), vr(T + qb), vr(s + 2 * k), vr(s + 2 * k + 1)))
        L += self.xlane('v_max_f32', [T + q for q in range(4)], [T + 4 + q for q in range(4)])
        for qb in range(4):
            e('v_sub_f32 %s, %s, %s' % (vr(M + 8 + qb), vr(M + qb), vr(T + qb)))
        for qb in range(4):
            e('v_exp_f32 %s, %s' % (vr(M + 8 + qb), vr(M + 8 + qb)))
        for qb in range(4):
            e('v_mov_b32 %s, %s' % (vr(M + qb), vr(T + qb)))
        for qb in range(4):
            s = S(qb)
            for r in range(8):
                e('v_sub_f32 %s, %s, %s' % (vr(s + r), vr(s + r), vr(T + qb)))
            for r in range(8):
                e('v_exp_f32 %s, %s' % (vr(s + r), vr(s + r)))
            e('v_mul_f32 %s, %s, %s' % (vr(M + 4 + qb), vr(M + 4 + qb), vr(M + 8 + qb)))
            for r in range(8):
                e('v_add_f32 %s, %s, %s' % (vr(M + 4 + qb), vr(M + 4 + qb), vr(s + r)))
            for j in range(4):
                e('v_cvt_pk_bf16_f32 %s, %s, %s' % (vr(s + j), vr(s + 2 * j), vr(s + 2 * j + 1)))
            for i in range(32):
                e('v_mul_f32 %s, %s, %s' % (vr(O(qb, 0) + i), vr(O(qb, 0) + i), vr(M + 8 + qb)))
        e('s_waitcnt lgkmcnt(0)')
        e('s_nop 1')
        for db in range(8):
            for qb in range(4):
                o = vr(O(qb, db), 4)
                e('%s %s, %s, %s, %s' % (MF, o, ar(A_V + 4 * db, 4), vr(S(qb), 4), o))
        e('s_nop 7')
        e('s_add_u32 %s, %s, 8192' % (sr(S_CNT), sr(S_CNT)))
        e('s_cmp_lt_u32 %s, 0x40000' % sr(S_CNT))
        e('s_cbranch_scc1 L_slow_loop')
        for qb in range(4):
            e('v_mov_b32 %s, %s' % (vr(T + qb), vr(M + 4 + qb)))
        L += self.xlane('v_add_f32', [T + q for q in range(4)], [T + 4 + q for q in range(4)])
        for qb in range(4):
            e('v_rcp_f32 %s, %s' % (vr(T + 4 + 2 * qb), vr(T + qb)))
        e('s_nop 0')
        L += self.plain_store()
        e('s_branch L_end')
        return L

    def stamps_out(self):
        if not self.o.stamps:
            return []
        L = []
        e = L.append
        L += self.stamp('stored')
        e('s_waitcnt vmcnt(0) lgkmcnt(0)')
        e('s_memrealtime s[94:95]')
        L += self.stamp()
        e('s_waitcnt lgkmcnt(0)')
        e('s_mov_b32 s84, s90')
        e('s_mov_b32 s85, s91')
        e('s_mov_b32 s86, 0x100000')
        e('s_mov_b32 s87, 0x20000')
        e('s_getreg_b32 s88, hwreg(HW_REG_XCC_ID)')
        e('s_getreg_b32 s89, hwreg(HW_REG_HW_ID)')
        e('s_lshl_b32 s3, s2, 2')
        e('s_add_u32 s3, s3, %s' % sr(S_W))
        e('s_lshl_b32 s3, s3, 8')
        e('v_mov_b32 v1, s3')
        vals = [92, 93, 94, 95, 88, 89] + [S_TS + 4 * k for k in range(10)] + [S_TS + 4 * k + 2 for k in range(10)]
        e('s_mov_b64 exec, 1')
        for k, s in enumerate(vals):
            e('v_mov_b32 v2, s%d' % s)
            e('buffer_store_dword v2, v1, s[84:87], 0 offen offset:%d' % (4 * k))
        return L

    def build(self):
        o = self.o
        com = self.common()
        n0 = self.nts
        com1 = com
        if 'L_qskip:' in com:
            com1 = com[:com.index('s_cbranch_scc1 L_qskip') + 1] + com[com.index('L_qskip:'):]
        pro1 = []
        if o.roles:
            pro1 = ['L_role1:'] + self.fix_hazards(com1, self.auto_lgkm(self.head(1), o.hage)) + ['s_branch L_loop']
            self.nts = n0
        pro = com + self.fix_hazards(com, self.auto_lgkm(self.head(0), o.hage))
        st_a = []
        body = [self.auto_lgkm(self.steady(4 * t + 2, 4 * t + 6), o.age) for t in range(1, 5)]
        inc, cmp_ = 's_add_u32 %s, %s, 1' % (sr(S_CNT), sr(S_CNT)), 's_cmp_lt_u32 %s, 3' % sr(S_CNT)
        b = body[3]
        ms = [i for i, l in enumerate(b) if ismf(l)]
        b.insert(ms[-2] + 1, cmp_)
        assert not any(l.startswith('s_add') for l in b[ms[-2]:])
        b.insert(ms[-4] + 1, inc)
        b.append('s_cbranch_scc1 L_loop')
        st_b = self.stamp('body')
        g13 = self.auto_lgkm(self.steady(54, 58, vmw=8, kdma=False, vdma=False), o.age)
        g14 = self.steady(58, 61, vmw=0, kdma=False, vdma=False)
        st_c = self.stamp('fin')
        fin = self.fix_hazards(g13, self.auto_lgkm(g14 + st_c + self.final(), o.age))
        for pat in o.drop:
            fin = [l for l in fin if not l.startswith(pat)]
        so = self.stamps_out()
        slow = self.slow_path()

        text = pro + st_a
        if o.align:
            text.append('.p2align %d' % o.align)
        text.append('L_loop:')
        for x in body:
            text += x
        text += st_b + g13 + fin + ['L_end:'] + so + ['L_done:', 's_endpgm'] + pro1 + slow

        loop = [l for x in body for l in x]
        probs = check_trace(pro + st_a + loop * 3 + st_b + g13 + fin + so)
        if o.roles:
            probs += check_trace(com1 + pro1 + loop)
        i0 = slow.index('L_slow_loop:')
        i1 = slow.index('s_cbranch_scc1 L_slow_loop')
        for kb in [i for i, l in enumerate(fin) if 'L_slow' in l]:
            probs += check_trace(g13 + fin[:kb + 1] + slow[:i1 + 1] + slow[i0:])
        return text, probs, [pro, body[0], fin]

    def emit(self):
        text, probs, parts = self.build()
        out = []
        for l in open(self.o.ref).read().split('\n'):
            if l.startswith('; @launch'):
                out.append('; @launch grid=(256,1,1) block=(256,1,1) lds=163840')
            elif l.startswith(';'):
                out.append(l)
            else:
                break
        out += ['.amdgcn_target "amdgcn-amd-amdhsa--gfx950"', '.text', '.globl %s_kernel' % NAME, '.p2align 8',
                '.type %s_kernel,@function' % NAME, '%s_kernel:' % NAME]
        for l in text:
            out.append(l if (l.endswith(':') or l.startswith('.')) else '    ' + l)
        out += ['.section .rodata,"a"', '.p2align 6', '.amdhsa_kernel %s_kernel' % NAME,
                '  .amdhsa_next_free_vgpr 472', '  .amdhsa_next_free_sgpr 102', '  .amdhsa_accum_offset 256',
                '  .amdhsa_group_segment_fixed_size 0', '  .amdhsa_kernarg_size 48', '  .amdhsa_user_sgpr_count 2',
                '  .amdhsa_user_sgpr_kernarg_segment_ptr 1', '  .amdhsa_system_sgpr_workgroup_id_x 1',
                '  .amdhsa_float_denorm_mode_32 3', '  .amdhsa_float_denorm_mode_16_64 3',
                '.end_amdhsa_kernel', '']
        return '\n'.join(out), probs, parts


def ilist(s):
    return [int(x) for x in s.split(',')]


def mlist(s):
    return [x.split(',') if x else [] for x in s.split('/')]


def parse(argv):
    ap = argparse.ArgumentParser()
    ap.add_argument('-o', default='cdna_kernels/%s.s' % NAME)
    ap.add_argument('--ref', default='cdna_kernels/%s.s.ref' % NAME)
    ap.add_argument('--thr', type=float, default=40)
    ap.add_argument('--stamps', action='store_true')
    ap.add_argument('--st', type=lambda s: s.split(','), default=['q0', 'q3', 'k1', 'first', 'loop', 'body', 'fin', 'stored'])
    ap.add_argument('--nodma', action='store_true')
    ap.add_argument('--nobar', action='store_true')
    ap.add_argument('--show', type=int, default=-1)
    ap.add_argument('--exp', default='')
    ap.add_argument('--drop', type=lambda s: s.split(','), default=[])
    ap.add_argument('--align', type=int, default=6)
    ap.add_argument('--age', type=int, default=12)
    ap.add_argument('--hage', type=int, default=24)
    ap.add_argument('--kdg', type=int, default=3)
    ap.add_argument('--vdg', type=int, default=7)
    ap.add_argument('--dstride', type=int, default=4)
    ap.add_argument('--roles', type=int, default=1)
    ap.add_argument('--qe', type=ilist, default=[1, 1])
    ap.add_argument('--mid', type=mlist, default=mlist('V0,Q1/Q2,C0/Q3/K1/V1/K2,V2/K3'))
    ap.add_argument('--mid1', type=mlist, default=mlist('V0/Q1,C0/Q2/Q3,K1/V1/K2,V2/K3'))
    ap.add_argument('--bgstep', type=int, default=14)
    ap.add_argument('--carry', type=int, default=16)
    ap.add_argument('--cover', type=int, default=5)
    ap.add_argument('--hcap', type=ilist, default=[4, 3, 4])
    ap.add_argument('--fcap', type=int, default=6)
    ap.add_argument('--fpace', type=int, default=8)
    ap.add_argument('--fpk', type=int, default=4)
    ap.add_argument('--fsd', type=int, default=1)
    ap.add_argument('--kvflag', type=lambda s: s.replace('+', ' ') + ' ' if s else '', default='')
    ap.add_argument('--qflag', type=lambda s: s.replace('+', ' ') + ' ' if s else '', default='')
    ap.add_argument('--oflag', type=lambda s: s.replace('+', ' '), default='nt')
    return ap.parse_args(argv)


SHORT = [('v_smfmac_f32_16x16x64_bf16', 'S'), ('v_mfma_f32_16x16x32_bf16', 'M'), ('v_exp_f32', 'e'), ('ds_read_b64_tr_b16', 't'), ('v_cvt_pk_bf16_f32', 'c'), ('ds_read_b128', 'R'), ('s_waitcnt', 'w'),
         ('v_add_f32', 'a'), ('s_add_u32', 's'), ('s_mov_b32', 's'), ('s_barrier', 'BAR'), ('v_permlane32_swap_b32', 'x'), ('v_permlane16_swap_b32', 'x'),
         ('buffer_load_dwordx4', 'D'), ('v_pk_mul_f32', 'P'), ('s_nop', 'n'), ('v_accvgpr_write_b32', 'A'), ('v_lshlrev_b32', 'l'), ('v_and_b32', '&'),
         ('v_max3_f32', 'mx'), ('v_max_f32', 'mx'), ('v_mov_b32', 'mv'), ('v_sub_f32', 'sb'), ('global_load_dwordx4', 'G'), ('v_mul_f32', 'm'),
         ('ds_write2_b64', 'W'), ('buffer_store_dwordx4', 'ST'), ('v_accvgpr_read_b32', 'acc'), ('v_cmp_ngt_f32', 'cmp'), ('v_rcp_f32', 'rcp'), ('s_cbranch_vccnz', 'br')]

if __name__ == '__main__':
    o = parse(sys.argv[1:])
    g = Gen(o)
    s, probs, parts = g.emit()
    open(o.o, 'w').write(s)
    if o.show >= 0:
        d = dict(SHORT)
        cur, k = [], -1
        for l in parts[o.show] + [MF]:
            if ismf(l):
                print('%d: %s' % (k, ' '.join(cur)))
                cur = []
                k += 1
            cur.append(d.get(l.split()[0], l.split()[0]))
    for p in probs[:40]:
        print('HAZARD', p)
    print('%d hazard findings' % len(probs))
```

```python
import sys, math, struct, argparse, re
from asmlib import I, check_trace

NAME = 'standalone__gqa_softmax__near_ridge'

V_O = 8
V_S = 136
V_C = 200
VKA = 216
VVA = 220
VDK = 228
VDV = 232
VOW = 234
VOR = 238
VOG = 240
VT = 244
VIX = 168
NP = 33
A_Q = 0
A_K = 64
A_V = 128
A_L = 192
A_1 = 208

S_Q, S_K, S_V, S_OD = 4, 8, 12, 16
S_W, S_M0K, S_M0V, S_OFFK, S_OFFV, S_CNT = 20, 21, 22, 23, 24, 25
S_C = 26
S_QOFF = 28
S_THR = 29
S_TMP = 30
S_STG = 32
S_QLDS = 33
S_TS = 40
S_OQ = 80
S_QB = 84
OPITCH = 272
V_BASE = 98304
MF = 'v_mfma_f32_16x16x32_bf16'


def f2u(x):
    return struct.unpack('<I', struct.pack('<f', x))[0]


def vr(b, n=1):
    return 'v%d' % b if n == 1 else 'v[%d:%d]' % (b, b + n - 1)


def ar(b, n=1):
    return 'a%d' % b if n == 1 else 'a[%d:%d]' % (b, b + n - 1)


def sr(b, n=1):
    return 's%d' % b if n == 1 else 's[%d:%d]' % (b, b + n - 1)


def SB(n):
    return V_S + 16 * (n & 1)


def O(qb, db):
    return V_O + 32 * qb + 4 * db


def ismf(l):
    return l.startswith(MF) or l.startswith('v_smfmac')


def ismem(l):
    return I(l).kind in ('dsr', 'dsw', 'vst', 'dma', 'vld', 'wait', 'barrier', 'sctl', 'salu', 'smem')


def cost(l):
    x = I(l)
    if x.kind == 'valu' and (x.trans or x.op.startswith('v_permlane')):
        return 2
    if x.kind == 'nop':
        return x.n
    return 1


class Gen:
    def __init__(self, opt):
        self.o = opt
        self.nts = 0

    def qk_slots(self):
        return [(kb, st if kb % 2 == 0 else 3 - st, st == 0) for kb in range(4) for st in range(4)]

    def qk_mfma(self, n, kb, st, first, czero=False):
        qb = n & 3
        d = vr(SB(n) + 4 * kb, 4)
        c = d if not first else ('0' if czero else vr(V_C + 4 * qb, 4))
        return '%s %s, %s, %s, %s' % (MF, d, ar(A_K + 16 * kb + 4 * st, 4), ar(A_Q + 16 * qb + 4 * st, 4), c)

    def qk(self, n):
        return [self.qk_mfma(n, *a) for a in self.qk_slots()]

    def pv(self, n):
        qb = n & 3
        z = n < 4
        out = ['v_smfmac_f32_16x16x64_bf16 %s, %s, %s, %s' % (ar(A_L + 4 * qb, 4), ar(A_1, 4), vr(SB(n), 8), vr(VIX))]
        for db in range(8):
            o = vr(O(qb, db), 4)
            out += ['%s %s, %s, %s, %s' % (MF, o, ar(A_V + 32 * h + 4 * db, 4), vr(SB(n) + 4 * h, 4), '0' if (z and h == 0) else o) for h in range(2)]
        return out

    def k_read(self, t, kb, st):
        return 'ds_read_b128 %s, %s offset:%d' % (ar(A_K + 16 * kb + 4 * st, 4), vr(VKA + st), (t & 3) * 16384 + kb * 4096)

    def v_read(self, t, h, db, j, addr=VVA, base=None):
        off = ((t + 1) & 3) * 16384 + h * 8192 if base is None else base
        return 'ds_read_b64_tr_b16 %s, %s offset:%d' % (ar(A_V + 32 * h + 4 * db + 2 * j, 2), vr(addr + db), off + j * 4096)

    def v_list(self, t):
        return [self.v_read(t, h, db, j) for db in range(8) for h in range(2) for j in range(2)]

    def sm_seq(self, n):
        seq = []
        for kb in range(4):
            s = SB(n) + 4 * kb
            for r in range(4):
                cv = None
                if r & 1:
                    cv = 'v_cvt_pk_bf16_f32 %s, %s, %s' % (vr(SB(n) + 2 * kb + (r >> 1)), vr(s + r - 1), vr(s + r))
                seq.append(('v_exp_f32 %s, %s' % (vr(s + r), vr(s + r)), cv))
        return seq

    def sm_stream(self, n, ready=lambda k: 0, lo=0, hi=16):
        out, pend = [], []
        for k, (ex, cv) in list(enumerate(self.sm_seq(n)))[lo:hi]:
            out.append((ready(k), ex))
            out += pend
            pend = [(ready(k), cv)] if cv else []
        return out, pend

    def dma(self, kind, i):
        o = self.o
        if kind == 'K':
            return 'buffer_load_dwordx4 %s, %s, %s offen offset:%d %slds' % (vr(VDK + i), sr(S_K, 4), sr(S_OFFK), 1024 * i, o.kvflag)
        if kind == 'V':
            return 'buffer_load_dwordx4 %s, %s, %s offen offset:%d %slds' % (vr(VDV + (i & 1)), sr(S_V, 4), sr(S_OFFV), 1024 * i, o.kvflag)
        return 'buffer_load_dwordx4 %s, %s, %s offen offset:%d %slds' % (vr(VDK + i), sr(S_Q, 4), sr(S_QOFF), 1024 * i, o.qflag)

    def m0_for(self, kind, t):
        return 's_add_u32 m0, %s, %d' % (sr(S_M0V if kind == 'V' else S_M0K), ((t + (kind == 'V')) & 3) * 16384)

    def q_pre(self, j):
        return ['s_add_u32 m0, %s, %d' % (sr(S_QLDS), 4096 * j), 's_add_u32 %s, %s, %d' % (sr(S_QOFF), sr(S_QB), 4096 * j)]

    def stamp(self, name=None):
        if not self.o.stamps or (name is not None and name not in self.o.st):
            return []
        k = self.nts
        self.nts += 1
        return ['s_memtime %s' % sr(S_TS + 4 * k, 2), 's_memrealtime %s' % sr(S_TS + 4 * k + 2, 2)]

    def pack(self, mf, streams, cap, nmem=lambda g: 2):
        out = []
        for g in range(len(mf)):
            mem, val = [], []
            c = 0
            for q in streams:
                while q and q[0][0] <= g and ismem(q[0][1]) and len(mem) < nmem(g):
                    mem.append(q.pop(0)[1])
                    c += 1
            for q in streams:
                while q and q[0][0] <= g and not ismem(q[0][1]) and c + cost(q[0][1]) <= cap(g):
                    c += cost(q[0][1])
                    val.append(q.pop(0)[1])
            out.append(mf[g])
            out += mem + val
        return out + [l for q in streams for _, l in q]

    @staticmethod
    def before(lines, items, slot, lo=0):
        ms = [i for i, l in enumerate(lines) if ismf(l)]
        head = lines[ms[lo]:ms[slot]]
        for l in items:
            assert l.startswith('s_nop') or l in head, (slot, l)

    @staticmethod
    def auto_lgkm(lines, age=16):
        out, pend = [], []
        for k, l in enumerate(lines):
            x = I(l)
            if x.kind == 'wait' and x.lgkm is not None:
                pend = pend[len(pend) - x.lgkm:] if x.lgkm else []
            touched = set(x.uses) | set(x.defs)
            idx = [i for i, (r, _, _) in enumerate(pend) if touched & set(r)]
            if idx:
                last = max(idx)
                pos = len(out)
                if x.kind == 'mfma':
                    j = len(out) - 1
                    while j >= 0 and not ismf(out[j]):
                        j -= 1
                    if j >= 0 and pend[last][2] <= j:
                        pos = j + 1
                early = [p for p in pend if p[2] < pos]
                while last + 1 < len(early) and early[last + 1][1] <= k - age:
                    last += 1
                n = min(15, len(early) - 1 - last)
                out.insert(pos, 's_waitcnt lgkmcnt(%d)' % n)
                keep = early[len(early) - n:] if n else []
                pend = keep + [(r, kk, p + 1) for r, kk, p in pend[len(early):]]
            out.append(l)
            if x.kind == 'dsr':
                pend.append((x.defs, k, len(out) - 1))
            if x.kind == 'dsw':
                pend.append(([], k, len(out) - 1))
        return out

    @staticmethod
    def fix_hazards(prefix, lines):
        lines = list(lines)
        for _ in range(300):
            pr = [p for p in check_trace(prefix + lines) if int(p.split(':')[0]) >= len(prefix)]
            if not pr:
                return lines
            p = pr[0]
            m = re.search(r'needs (\d+),? has (\d+)', p)
            assert 'pending' not in p, p
            n = int(m.group(1)) - int(m.group(2)) if m else 1
            lines.insert(int(p.split(':')[0]) - len(prefix), 's_nop %d' % (n - 1))
        raise RuntimeError('hazards keep coming')

    EG = list(range(1, 32, 2))

    def steady(self, n0, n1, vmw=8, kdma=True, vdma=True, bar=True):
        o = self.o
        mf, shadow, valu, isexp = [], [], [], []
        for n in range(n0, n1):
            mf += self.qk(n + 1) + self.pv(n)
            v = [[] for _ in range(NP)]
            seq = self.sm_seq(n)[13:] + self.sm_seq(n + 1)[:13]
            for g, (ex, cv) in zip(self.EG, seq):
                v[g].append(ex)
                if cv:
                    v[g + 1].append(cv)
            valu += v
            shadow += [[] for _ in range(NP)]
            isexp += [g in self.EG for g in range(NP)]
        N = len(mf)
        free = lambda g: 0 if isexp[g] else 2 - len(valu[g]) - len([x for x in shadow[g] if not x.startswith('s_add')])

        def put(items):
            g, dbl = 0, False
            for ready, l in items:
                g = max(g, ready)
                while free(g) < 1 or (shadow[g] and g > 0 and len(shadow[g - 1]) == 2):
                    g += 1
                shadow[g].append(l)
            return g

        def put_dma(kind, t, g, step):
            off = S_OFFV if kind == 'V' else S_OFFK
            shadow[g].append(self.m0_for(kind, t))
            g += 1
            for i in range(4):
                while free(g) < 1:
                    g += 1
                shadow[g].append(self.dma(kind, i))
                g += step
            shadow[g - step + 1].append('s_add_u32 %s, %s, 16384' % (sr(off), sr(off)))
        for n in range(n0, n1):
            b = NP * (n - n0)
            t = n >> 2
            if n & 3 == 2 and t < 15:
                if bar and not o.nobar:
                    shadow[b] += ['s_waitcnt vmcnt(%d)' % vmw, 's_barrier']
                put([(b + max(s, 1), self.k_read(t + 1, kb, st)) for s, (kb, st, _) in enumerate(self.qk_slots())])
            if n & 3 == 3 and t < 15:
                put([(b + 17 + k // 2, l) for k, l in enumerate(self.v_list(t + 1))])
                if kdma and not o.nodma:
                    put_dma('K', t + 3, b + o.kdg, o.dstride)
            if n & 3 == 1 and vdma and not o.nodma:
                put_dma('V', t + 2, b + o.vdg, o.dstride)
        out = []
        for g in range(N):
            if g % NP == 4 and not shadow[g]:
                shadow[g].append('s_nop 0')
            out.append(mf[g])
            out += shadow[g] + valu[g]
        return out

    def xlane(self, op, regs, tmps):
        L = []
        for sw in ('v_permlane32_swap_b32', 'v_permlane16_swap_b32'):
            L += ['v_mov_b32 %s, %s' % (vr(t), vr(r)) for r, t in zip(regs, tmps)]
            if len(regs) < 3:
                L.append('s_nop 1')
            L += ['%s %s, %s' % (sw, vr(r), vr(t)) for r, t in zip(regs, tmps)]
            L += ['%s %s, %s, %s' % (op, vr(r), vr(r), vr(t)) for r, t in zip(regs, tmps)]
        return L

    def common(self):
        o = self.o
        L = []
        e = L.append
        e('s_cmp_ge_u32 s2, 256')
        e('s_cbranch_scc1 L_done')
        e('s_load_dwordx4 s[36:39], s[0:1], 0')
        e('s_load_dwordx4 s[96:99], s[0:1], 16')
        e('s_getpc_b64 s[34:35]')
        e('L_pc:')
        e('v_lshlrev_b32 v4, 4, v0')
        if o.roles:
            e('s_bitcmp1_b32 s2, 3')
            e('s_cselect_b32 s3, L_role1 - L_pc, 0')
            e('v_add_u32 v4, s3, v4')
        e('global_load_dwordx4 %s, v4, s[34:35]' % vr(V_C, 4))
        if o.stamps:
            e('s_load_dwordx2 s[90:91], s[0:1], 40')
            e('s_memrealtime s[92:93]')
        L += self.stamp()
        e('v_lshrrev_b32 v2, 6, v0')
        e('v_bfe_u32 v5, v0, 4, 2')
        e('v_readfirstlane_b32 %s, v2' % sr(S_W))
        e('v_and_b32 v6, 15, v0')
        e('v_lshlrev_b32 v7, 8, v5')
        e('v_lshl_add_u32 v7, v2, 12, v7')
        e('v_xor_b32 v3, v6, v5')
        e('v_lshl_add_u32 %s, v3, 4, v7' % vr(VDK))
        for i in range(1, 4):
            e('v_xor_b32 %s, %d, %s' % (vr(VDK + i), i << 6, vr(VDK)))
        e('s_and_b32 s30, s2, 7')
        e('s_lshr_b32 s3, s2, 4')
        e('s_lshl4_add_u32 s30, s30, s3')
        e('s_bfe_u32 s31, s2, 0x10003')
        e('s_lshl1_add_u32 s31, s30, s31')
        e('s_lshl_b32 s30, s30, 18')
        e('s_lshl_b32 s31, s31, 16')
        e('s_lshl_b32 %s, %s, 12' % (sr(S_M0K), sr(S_W)))
        e('s_mul_i32 %s, %s, 12288' % (sr(S_QB), sr(S_W)))
        e('s_lshl2_add_u32 %s, %s, 0xc000' % (sr(S_QLDS), sr(S_M0K)))
        e('s_mov_b32 %s, 0' % sr(S_OFFK))
        e('s_mov_b32 s10, 0x40000')
        e('s_mov_b32 s11, 0x20000')
        e('s_mov_b32 s6, 0x10000')
        e('s_mov_b32 s7, 0x20000')
        e('s_mov_b32 m0, %s' % sr(S_M0K))
        e('s_waitcnt lgkmcnt(0)')
        e('s_add_u32 s8, s38, s30')
        e('s_addc_u32 s9, s39, 0')
        L += [self.dma('K', i) for i in range(4)]
        e('s_add_u32 s4, s36, s31')
        e('s_addc_u32 s5, s37, 0')
        for j in range(o.qe[0]):
            if o.roles and j == o.qe[1]:
                e('s_bitcmp1_b32 s2, 3')
                e('s_cbranch_scc1 L_qskip')
            L += self.q_pre(j) + [self.dma('Q', i) for i in range(4)]
        if o.roles and o.qe[1] < o.qe[0]:
            e('L_qskip:')
        e('v_and_b32 v1, 63, v0')
        e('s_lshr_b32 s3, s2, 3')
        e('s_lshl2_add_u32 s3, s3, %s' % sr(S_W))
        e('s_and_b32 s3, s3, 31')
        e('s_min_u32 s3, s3, (L_slow - L_pc) / 1024 - 4')
        e('s_lshl_b32 s3, s3, 10')
        e('s_add_u32 s3, s3, 4096')
        e('s_add_u32 s34, s34, s3')
        e('s_addc_u32 s35, s35, 0')
        e('v_lshlrev_b32 %s, 4, v1' % vr(VT + 8))
        e('s_add_u32 s12, s96, s30')
        e('s_addc_u32 s13, s97, 0')
        e('s_mov_b32 s14, 0x40000')
        e('s_mov_b32 s15, 0x20000')
        e('s_add_u32 %s, %s, %d' % (sr(S_M0V), sr(S_M0K), V_BASE))
        e('v_lshlrev_b32 v3, 1, v5')
        e('v_xor_b32 v3, v6, v3')
        e('v_lshl_add_u32 %s, v3, 4, v7' % vr(VDV))
        e('v_xor_b32 %s, 0x80, %s' % (vr(VDV + 1), vr(VDV)))
        e('s_add_u32 s16, s98, s31')
        e('s_addc_u32 s17, s99, 0')
        e('s_mov_b32 s18, 0x10000')
        e('s_mov_b32 s19, 0x20000')
        e('v_xor_b32 v3, v5, v6')
        e('v_lshlrev_b32 v4, 8, v6')
        e('v_lshl_add_u32 %s, v3, 4, v4' % vr(VKA))
        for st in range(1, 4):
            e('v_xor_b32 %s, %d, %s' % (vr(VKA + st), st << 6, vr(VKA)))
        for st in range(4):
            e('v_add_u32 %s, %s, %s' % (vr(VT + st), sr(S_QLDS), vr(VKA + st)))
        c = math.log2(math.e) / math.sqrt(128.0)
        e('s_mov_b32 %s, 0x%08x' % (sr(S_C), f2u(c)))
        e('s_mov_b32 %s, 0x%08x' % (sr(S_C + 1), f2u(c)))
        e('s_mov_b32 %s, 0x%08x' % (sr(S_THR), f2u(2.0 ** o.thr)))
        e('s_mov_b32 %s, 0xffff0000' % sr(S_TMP))
        e('v_lshrrev_b32 v3, 2, v1')
        e('v_lshlrev_b32 v2, 8, v3')
        e('v_and_b32 v3, 7, v3')
        e('v_lshl_add_u32 v2, v3, 5, v2')
        e('v_and_b32 v3, 3, v1')
        e('v_lshl_add_u32 v2, v3, 3, v2')
        e('v_add_u32 %s, %d, v2' % (vr(VVA), V_BASE))
        for db in range(1, 8):
            e('v_xor_b32 %s, %d, %s' % (vr(VVA + db), db << 5, vr(VVA)))
        e('s_mul_i32 %s, %s, %d' % (sr(S_STG), sr(S_W), 4 * OPITCH * 16))
        e('v_mul_u32_u24 v3, %d, v6' % OPITCH)
        e('v_lshl_add_u32 v3, v5, 3, v3')
        e('v_add_u32 %s, %s, v3' % (vr(VOW), sr(S_STG)))
        for qb in range(1, 4):
            e('v_add_u32 %s, %d, %s' % (vr(VOW + qb), qb * OPITCH * 16, vr(VOW)))
        e('v_mul_u32_u24 v3, %d, v5' % OPITCH)
        e('v_lshl_add_u32 v3, v6, 4, v3')
        e('v_add_u32 %s, %s, v3' % (vr(VOR), sr(S_STG)))
        e('s_lshl_b32 s3, %s, 14' % sr(S_W))
        e('v_lshlrev_b32 v3, 4, v1')
        e('v_add_u32 %s, s3, v3' % vr(VOG))
        for qb in range(1, 4):
            e('s_movk_i32 %s, %d' % (sr(S_OQ + qb), 4096 * qb))
        e('v_and_b32 v3, 2, v1')
        e('v_cmp_eq_u32 vcc, 0, v3')
        e('v_mov_b32 v2, 0x3f803f80')
        e('s_mov_b32 %s, 0' % sr(S_CNT))
        e('v_cndmask_b32 v3, 0, v2, vcc')
        for j in range(4):
            e('v_accvgpr_write_b32 %s, v3' % ar(A_1 + j))
        e('v_and_b32 v3, 1, v1')
        e('v_cmp_eq_u32 vcc, 0, v3')
        e('v_mov_b32 v2, 0x44444444')
        e('v_mov_b32 v3, 0xeeeeeeee')
        e('v_cndmask_b32 %s, v3, v2, vcc' % vr(VIX))
        for j in range(16):
            e('v_accvgpr_write_b32 %s, 0' % ar(A_L + j))
        if o.roles:
            e('s_bitcmp1_b32 s2, 3')
            e('s_cbranch_scc1 L_role1')
        return L

    def dmax(self, qb):
        T = VT + 4 + 2 * (qb & 1)
        sq = SB(qb)
        D = ['v_max3_f32 %s, %s, %s, %s' % (vr(T), vr(sq), vr(sq + 1), vr(sq + 2)),
             'v_max3_f32 %s, %s, %s, %s' % (vr(T + 1), vr(sq + 4), vr(sq + 5), vr(sq + 6)),
             'v_max3_f32 %s, %s, %s, %s' % (vr(T), vr(T), vr(sq + 3), vr(sq + 7)),
             'v_max_f32 %s, %s, %s' % (vr(T), vr(T), vr(T + 1))]
        for sw in ('v_permlane32_swap_b32', 'v_permlane16_swap_b32'):
            D += ['v_mov_b32 %s, %s' % (vr(T + 1), vr(T)), 's_nop 1', '%s %s, %s' % (sw, vr(T), vr(T + 1)), 'v_max_f32 %s, %s, %s' % (vr(T), vr(T), vr(T + 1))]
        D += ['v_sub_f32 %s, 0, %s' % (vr(V_C + 4 * qb + r), vr(T)) for r in range(4)]
        return D

    def sm0(self, qb):
        out = []
        st, pend = self.sm_stream(qb)
        sub = ['v_add_f32 %s, %s, %s' % (vr(SB(qb) + r), vr(SB(qb) + r), vr(V_C + 4 * qb)) for r in range(16)]
        return sub + [l for _, l in st] + ['s_nop 0'] + [l for _, l in pend]

    def head(self, role):
        o = self.o
        mid = o.mid if role == 0 else o.mid1
        L = []
        e = L.append
        vm = ['K0'] * 4 + ['Q%d' % j for j in range(o.qe[role]) for _ in range(4)]

        def wait(*tags):
            last = max(i for i, t in enumerate(vm) if t in tags)
            e('s_waitcnt vmcnt(%d)' % (len(vm) - 1 - last))

        RAW = O(3, 0)
        TM = O(3, 4)

        def prescale(qb, st):
            b = RAW + 4 * st
            t0 = TM + 8 * (st & 1)
            P = []
            for j in range(4):
                P.append('v_lshlrev_b32 %s, 16, %s' % (vr(t0 + 2 * j), vr(b + j)))
                P.append('v_and_b32 %s, %s, %s' % (vr(t0 + 2 * j + 1), sr(S_TMP), vr(b + j)))
            P += ['v_pk_mul_f32 %s, %s, %s' % (vr(t0 + 2 * j, 2), vr(t0 + 2 * j, 2), sr(S_C, 2)) for j in range(4)]
            P += ['v_cvt_pk_bf16_f32 %s, %s, %s' % (vr(t0 + 2 * j), vr(t0 + 2 * j), vr(t0 + 2 * j + 1)) for j in range(4)]
            P += ['v_accvgpr_write_b32 %s, %s' % (ar(A_Q + 16 * qb + 4 * st + j), vr(t0 + 2 * j)) for j in range(4)]
            return P

        def dma_lines(x):
            kind, t = x[0], int(x[1:])
            if kind == 'T':
                vm.append('C')
                return [([], 'buffer_load_dword %s, %s, %s, 0 offen' % (vr(VT + 7), vr(VOG), sr(S_OD, 4)))]
            if kind == 'C':
                vm.append('C')
                return [([], 'global_load_dwordx4 %s, %s, s[34:35]' % (vr(VT + 8, 4), vr(VT + 8)))]
            vm.extend([x] * 4)
            if kind == 'Q':
                pre = self.q_pre(t)
            else:
                pre = ['s_mov_b32 %s, %d' % (sr(S_OFFV if kind == 'V' else S_OFFK), 16384 * t), self.m0_for(kind, t), 's_nop 0']
            return [(pre if i == 0 else [], self.dma(kind, i)) for i in range(4)]

        def background(seg, xs, start, step):
            items = [z for x in xs for z in dma_lines(x)]
            out, nxt = [], start
            for i, l in enumerate(seg):
                out.append(l)
                if items and i >= nxt and (ismf(l) or not (i + 1 < len(seg) and ismf(seg[i + 1]))):
                    pre, ld = items.pop(0)
                    out += pre + [ld]
                    nxt = i + step
            for pre, ld in items:
                out += pre + [ld]
            return out

        for x in mid[0]:
            if x[0] == 'w':
                wait(x[1:])
            else:
                for pre, ld in dma_lines(x):
                    L += pre + [ld]
        F = []
        for qb in range(4):
            if qb == 1:
                wait('Q1', 'V0')
                L += self.stamp('q1')
                e('s_barrier')
            else:
                wait('Q%d' % qb)
                L += self.stamp('q%d' % qb)
            G = ['ds_read_b128 %s, %s offset:%d' % (vr(RAW + 4 * st, 4), vr(VT + st), 4096 * qb) for st in range(4)]
            G += F
            c0 = [[self.qk_mfma(qb, kb, st, st == 0, czero=True) for kb in range(4)] for st in range(4)]
            vl = self.v_list(0) if qb == 1 else []
            for st in range(4):
                P = prescale(qb, st)
                if st and qb:
                    m = c0[st - 1]
                    P = P[:12]
                    Q = prescale(qb, st)[12:]
                    for k in range(4):
                        P += [m[k]] + vl[:2] + Q[2 * k:2 * k + 2]
                        vl = vl[2:]
                G += P
            if qb == 0:
                G.append('s_barrier')
                kr = [self.k_read(0, kb, st) for st in range(4) for kb in range(4)]
                G += kr[:12] + c0[0][:1] + kr[12:] + c0[0][1:] + c0[1] + c0[2]
            for m in c0[3]:
                G += [m] + vl[:2]
                vl = vl[2:]
            assert not vl
            if qb < 3:
                S0 = self.dmax(qb) + self.sm0(qb)
                F = S0[len(S0) - o.carry:]
                S0 = S0[:len(S0) - o.carry]
                if qb:
                    G += self.pack(self.pv(qb - 1), [[(2, l) for l in S0]], lambda g: o.hcap[2])
                else:
                    G += S0
            L += background(G, mid[qb + 1], 3, o.bgstep)
        wait('K1', 'C')
        L += self.stamp('k1')
        e('s_barrier')
        mf = self.pv(2) + self.qk(4) + self.pv(3)
        s1 = [(k // 2, self.k_read(1, kb, st)) for k, (kb, st, _) in enumerate(self.qk_slots())]
        s2 = [(1, l) for l in self.dmax(3) + self.sm0(3)]
        st4, pend = self.sm_stream(4, lambda k: 17 + 4 * (k >> 2) + 3 + 3, 0, 13)
        G = self.pack(mf, [s1, s2, st4], lambda g: o.hcap[0] if g < NP else o.hcap[1])
        self.before(G, self.sm0(3), NP)
        assert not pend
        vl = self.v_list(1)
        out, k, nm = [], 0, 0
        for l in G:
            out.append(l)
            if ismf(l):
                nm += 1
                if nm == 34:
                    out.append('WAIT_V1')
                if nm > 34 + 1 and (nm & 1) == 0:
                    out += vl[k:k + 2]
                    k += 2
        j = out.index('WAIT_V1')
        L += background(out[:j], mid[5], 12, 13)
        wait('V1')
        e('s_barrier')
        L += background(out[j + 1:], mid[6], 2, 13)
        self.v_left = vl[k:]
        kv = [x for x in vm if x[0] in 'KV']
        assert [x for x in kv if x[0] == 'K'] == [x for x in ['K0', 'K1', 'K2', 'K3'] for _ in range(4)], vm
        assert [x for x in kv if x[0] == 'V'] == [x for x in ['V0', 'V1', 'V2'] for _ in range(4)], vm
        assert vm[-4:] == ['K3'] * 4, vm
        e('s_mov_b32 %s, %d' % (sr(S_OFFK), 16384 * 4))
        e('s_mov_b32 %s, %d' % (sr(S_OFFV), 16384 * 3))
        L += self.stamp('first')
        P = self.steady(4, 6)
        out, nm, left = [], -1, list(self.v_left)
        for i, l in enumerate(P):
            out.append(l)
            if ismf(l):
                nm += 1
                if left and nm not in self.EG:
                    nx = P[i + 1]
                    take = 1 if nx.startswith('v_cvt') else 2
                    out += left[:take]
                    left = left[take:]
        assert not left
        return L + out + self.stamp('loop')

    def norm_group(self, qb, j, packed):
        rc = VT + 4 + 2 * qb
        a, b = O(qb, 2 * j), O(qb, 2 * j + 1)
        if packed:
            V = ['v_pk_mul_f32 %s, %s, %s op_sel_hi:[1,0]' % (vr(a + 2 * k, 2), vr(a + 2 * k, 2), vr(rc, 2)) for k in range(4)]
        else:
            V = ['v_mul_f32 %s, %s, %s' % (vr(a + k), vr(a + k), vr(rc)) for k in range(8)]
        V += ['v_cvt_pk_bf16_f32 %s, %s, %s' % (vr(a), vr(a), vr(a + 1)), 'v_cvt_pk_bf16_f32 %s, %s, %s' % (vr(a + 1), vr(a + 2), vr(a + 3)),
              'v_cvt_pk_bf16_f32 %s, %s, %s' % (vr(a + 2), vr(b), vr(b + 1)), 'v_cvt_pk_bf16_f32 %s, %s, %s' % (vr(a + 3), vr(b + 2), vr(b + 3))]
        return V + ['ds_write2_b64 %s, %s, %s offset0:%d offset1:%d' % (vr(VOW + qb), vr(a, 2), vr(a + 2, 2), 8 * j, 8 * j + 4)]

    def o_reads(self, qb):
        return ['ds_read_b128 %s, %s offset:%d' % (vr(O(qb, 2 * i + 1), 4), vr(VOR), OPITCH * (16 * qb + 4 * i)) for i in range(4)]

    def o_stores(self, qb):
        return ['buffer_store_dwordx4 %s, %s, %s, %s offen offset:%d %s' % (vr(O(qb, 2 * i + 1), 4), vr(VOG), sr(S_OD, 4), sr(S_OQ + qb) if qb else '0', 1024 * i, self.o.oflag)
                for i in range(4)]

    def final(self):
        o = self.o
        T = VT
        mf = self.qk(62) + self.pv(61) + self.qk(63) + self.pv(62) + self.pv(63)
        N = len(mf)
        PVS = {0: -100, 1: 16, 2: 49, 3: 66}
        c61, pc = self.sm_stream(61, lambda k: 0, 13, 16)
        c61 += [(0, 's_nop 0')] + pc
        a, pa = self.sm_stream(62, lambda k: 4 * (k >> 2) + 6)
        b, pb = self.sm_stream(63, lambda k: NP + 4 * (k >> 2) + 6)
        pace = lambda st, g0: [(max(r, g0 + (o.fpace * i) // 8), l) for i, (r, l) in enumerate(st)]
        s2 = c61 + pace(a + [(0, 's_nop 0')] + pa, 6) + pace(b + [(0, 's_nop 0')] + pb, NP + 6)
        s3 = []
        for qb in range(4):
            r = max(0, PVS[qb] + o.fchk)
            s3 += [(r, 'v_accvgpr_read_b32 %s, %s' % (vr(T + qb), ar(A_L + 4 * qb))),
                   (r, 'v_accvgpr_read_b32 %s, %s' % (vr(T + 5 + 2 * qb), ar(A_L + 4 * qb + 1))),
                   (r, 'v_add_f32 %s, %s, %s' % (vr(T + qb), vr(T + qb), vr(T + 5 + 2 * qb))),
                   (r, 'v_cmp_ngt_f32 vcc, %s, %s' % (sr(S_THR), vr(T + qb))),
                   (r, 'v_rcp_f32 %s, %s' % (vr(T + 4 + 2 * qb), vr(T + qb))),
                   (r + 1, 's_cbranch_vccnz L_slow' if not o.exp else 's_nop 0')]
        s4 = []
        groups = [(qb, j) for qb in range(4) for j in range(4)]
        for n, (qb, j) in enumerate(groups):
            ready = max(PVS[qb] + 1 + 4 * j + 3 + 3, PVS[qb] + o.fchk + 3, 3)
            late = ready >= N - o.fpk
            if late:
                ready = N + 1
            s4 += [(ready, l) for l in self.norm_group(qb, j, late)]
        fc = lambda g: o.fcap[min(g // NP, 2)]
        G = self.pack(mf, [[(0, 's_barrier')], s3, s2, s4], lambda g: int(fc(g) * (g + 1)) - int(fc(g) * g), lambda g: 1)
        todo = []
        out, nw = [], 0
        since = 99
        for i, l in enumerate(G):
            out.append(l)
            if l.startswith('ds_write2'):
                nw += 1
                if nw % 4 == 0:
                    qb = nw // 4 - 1
                    todo += [(i, r) for r in self.o_reads(qb)] + [(i + o.fsd, st) for st in self.o_stores(qb)]
            since += 1
            left = any(ismf(x) for x in G[i + 1:])
            slot = (ismf(l) and not ismem(G[i + 1])) if left else not (i + 1 < len(G) and ismem(G[i + 1]))
            if slot and todo and todo[0][0] <= i:
                if todo[0][1].startswith('ds_read'):
                    out += [todo.pop(0)[1], todo.pop(0)[1]]
                elif since >= o.fstep:
                    out.append(todo.pop(0)[1])
                    since = 0
        G = out + [l for _, l in todo]
        for n, lo, slot in ((61, 0, 16), (62, 0, 49), (63, NP, 66)):
            self.before(G, [cv for _, cv in self.sm_seq(n)[13:] if cv], slot, lo)
        return G

    def plain_store(self):
        L = [l for qb in range(4) for j in range(4) for l in self.norm_group(qb, j, True)]
        for qb in range(4):
            L += self.o_reads(qb)
        L.append('s_waitcnt lgkmcnt(0)')
        for qb in range(4):
            L += self.o_stores(qb)
        return L

    def slow_path(self):
        L = []
        e = L.append
        T = VT
        M = V_C
        SK = V_S + 36
        SV = SK + 1
        SVA = SK + 4
        S = lambda qb: V_S + 8 * qb
        e('L_slow:')
        e('s_waitcnt vmcnt(0) lgkmcnt(0)')
        e('s_nop 7')
        e('v_mbcnt_lo_u32_b32 v1, -1, 0')
        e('v_mbcnt_hi_u32_b32 v1, -1, v1')
        e('v_and_b32 v2, 15, v1')
        e('v_lshrrev_b32 v3, 4, v1')
        e('v_lshlrev_b32 v2, 8, v2')
        e('v_lshl_add_u32 %s, v3, 4, v2' % vr(SK))
        e('v_subrev_u32 %s, %s, %s' % (vr(SV), sr(S_M0K), vr(VDV)))
        e('v_subrev_u32 %s, %s, %s' % (vr(SV + 1), sr(S_M0K), vr(VDV + 1)))
        e('s_sub_u32 s3, %s, %d' % (sr(S_STG), V_BASE))
        for db in range(8):
            e('v_add_u32 %s, s3, %s' % (vr(SVA + db), vr(VVA + db)))
        for i in range(128):
            e('v_mov_b32 %s, 0' % vr(V_O + i))
        for qb in range(4):
            e('v_mov_b32 %s, 0xff7fffff' % vr(M + qb))
            e('v_mov_b32 %s, 0' % vr(M + 4 + qb))
        e('s_mov_b32 %s, 0' % sr(S_CNT))
        e('L_slow_loop:')
        e('s_mov_b32 m0, %s' % sr(S_STG))
        e('s_add_u32 s31, %s, 4096' % sr(S_CNT))
        for i in range(4):
            e('buffer_load_dwordx4 %s, %s, %s offen offset:%d lds' % (vr(SV + (i & 1)), sr(S_V, 4), sr(S_CNT), 1024 * i))
        e('s_add_u32 m0, %s, 4096' % sr(S_STG))
        e('s_nop 0')
        for i in range(4):
            e('buffer_load_dwordx4 %s, %s, s31 offen offset:%d lds' % (vr(SV + (i & 1)), sr(S_V, 4), 1024 * i))
        for kb in range(2):
            for st in range(4):
                e('buffer_load_dwordx4 %s, %s, %s, %s offen offset:%d' % (ar(A_K + 16 * kb + 4 * st, 4), vr(SK), sr(S_K, 4), 's31' if kb else sr(S_CNT), 64 * st))
        e('s_waitcnt vmcnt(0)')
        for kb in range(2):
            for st in range(4):
                for qb in range(4):
                    d = vr(S(qb) + 4 * kb, 4)
                    e('%s %s, %s, %s, %s' % (MF, d, ar(A_K + 16 * kb + 4 * st, 4), ar(A_Q + 16 * qb + 4 * st, 4), d if st else '0'))
        for db in range(8):
            for j in range(2):
                e(self.v_read(0, 0, db, j, addr=SVA, base=0))
        for qb in range(4):
            s = S(qb)
            e('v_max3_f32 %s, %s, %s, %s' % (vr(T + qb), vr(M + qb), vr(s), vr(s + 1)))
            for k in range(1, 4):
                e('v_max3_f32 %s, %s, %s, %s' % (vr(T + qb), vr(T + qb), vr(s + 2 * k), vr(s + 2 * k + 1)))
        L += self.xlane('v_max_f32', [T + q for q in range(4)], [T + 4 + q for q in range(4)])
        for qb in range(4):
            e('v_sub_f32 %s, %s, %s' % (vr(M + 8 + qb), vr(M + qb), vr(T + qb)))
        for qb in range(4):
            e('v_exp_f32 %s, %s' % (vr(M + 8 + qb), vr(M + 8 + qb)))
        for qb in range(4):
            e('v_mov_b32 %s, %s' % (vr(M + qb), vr(T + qb)))
        for qb in range(4):
            s = S(qb)
            for r in range(8):
                e('v_sub_f32 %s, %s, %s' % (vr(s + r), vr(s + r), vr(T + qb)))
            for r in range(8):
                e('v_exp_f32 %s, %s' % (vr(s + r), vr(s + r)))
            e('v_mul_f32 %s, %s, %s' % (vr(M + 4 + qb), vr(M + 4 + qb), vr(M + 8 + qb)))
            for r in range(8):
                e('v_add_f32 %s, %s, %s' % (vr(M + 4 + qb), vr(M + 4 + qb), vr(s + r)))
            for j in range(4):
                e('v_cvt_pk_bf16_f32 %s, %s, %s' % (vr(s + j), vr(s + 2 * j), vr(s + 2 * j + 1)))
            for i in range(32):
                e('v_mul_f32 %s, %s, %s' % (vr(O(qb, 0) + i), vr(O(qb, 0) + i), vr(M + 8 + qb)))
        e('s_waitcnt lgkmcnt(0)')
        e('s_nop 1')
        for db in range(8):
            for qb in range(4):
                o = vr(O(qb, db), 4)
                e('%s %s, %s, %s, %s' % (MF, o, ar(A_V + 4 * db, 4), vr(S(qb), 4), o))
        e('s_nop 7')
        e('s_add_u32 %s, %s, 8192' % (sr(S_CNT), sr(S_CNT)))
        e('s_cmp_lt_u32 %s, 0x40000' % sr(S_CNT))
        e('s_cbranch_scc1 L_slow_loop')
        for qb in range(4):
            e('v_mov_b32 %s, %s' % (vr(T + qb), vr(M + 4 + qb)))
        L += self.xlane('v_add_f32', [T + q for q in range(4)], [T + 4 + q for q in range(4)])
        for qb in range(4):
            e('v_rcp_f32 %s, %s' % (vr(T + 4 + 2 * qb), vr(T + qb)))
        e('s_nop 0')
        L += self.plain_store()
        e('s_branch L_end')
        return L

    def stamps_out(self):
        if not self.o.stamps:
            return []
        L = []
        e = L.append
        L += self.stamp('stored')
        e('s_waitcnt vmcnt(0) lgkmcnt(0)')
        e('s_memrealtime s[94:95]')
        L += self.stamp()
        e('s_waitcnt lgkmcnt(0)')
        e('s_mov_b32 s84, s90')
        e('s_mov_b32 s85, s91')
        e('s_mov_b32 s86, 0x100000')
        e('s_mov_b32 s87, 0x20000')
        e('s_getreg_b32 s88, hwreg(HW_REG_XCC_ID)')
        e('s_getreg_b32 s89, hwreg(HW_REG_HW_ID)')
        e('s_lshl_b32 s3, s2, 2')
        e('s_add_u32 s3, s3, %s' % sr(S_W))
        e('s_lshl_b32 s3, s3, 8')
        e('v_mov_b32 v1, s3')
        vals = [92, 93, 94, 95, 88, 89] + [S_TS + 4 * k for k in range(10)] + [S_TS + 4 * k + 2 for k in range(10)]
        e('s_mov_b64 exec, 1')
        for k, s in enumerate(vals):
            e('v_mov_b32 v2, s%d' % s)
            e('buffer_store_dword v2, v1, s[84:87], 0 offen offset:%d' % (4 * k))
        return L

    def build(self):
        o = self.o
        com = self.common()
        n0 = self.nts
        com1 = com
        if 'L_qskip:' in com:
            com1 = com[:com.index('s_cbranch_scc1 L_qskip') + 1] + com[com.index('L_qskip:'):]
        pro1 = []
        if o.roles:
            pro1 = ['L_role1:'] + self.fix_hazards(com1, self.auto_lgkm(self.head(1), o.hage)) + ['s_branch L_loop']
            self.nts = n0
        pro = com + self.fix_hazards(com, self.auto_lgkm(self.head(0), o.hage))
        st_a = []
        body = [self.auto_lgkm(self.steady(4 * t + 2, 4 * t + 6), o.age) for t in range(1, 5)]
        inc, cmp_ = 's_add_u32 %s, %s, 1' % (sr(S_CNT), sr(S_CNT)), 's_cmp_lt_u32 %s, 3' % sr(S_CNT)
        b = body[3]
        ms = [i for i, l in enumerate(b) if ismf(l)]
        b.insert(ms[-2] + 1, cmp_)
        assert not any(l.startswith('s_add') for l in b[ms[-2]:])
        b.insert(ms[-4] + 1, inc)
        b.append('s_cbranch_scc1 L_loop')
        st_b = self.stamp('body')
        g13 = self.auto_lgkm(self.steady(54, 58, vmw=8, kdma=False, vdma=False), o.age)
        g14 = self.steady(58, 61, vmw=0, kdma=False, vdma=False)
        st_c = self.stamp('fin')
        fin = self.fix_hazards(g13, self.auto_lgkm(g14 + st_c + self.final(), o.age))
        for pat in o.drop:
            fin = [l for l in fin if not l.startswith(pat)]
        so = self.stamps_out()
        slow = self.slow_path()

        text = pro + st_a
        if o.align:
            text.append('.p2align %d' % o.align)
        text.append('L_loop:')
        for x in body:
            text += x
        text += st_b + g13 + fin + ['L_end:'] + so + ['L_done:', 's_endpgm'] + pro1 + slow

        loop = [l for x in body for l in x]
        probs = check_trace(pro + st_a + loop * 3 + st_b + g13 + fin + so)
        if o.roles:
            probs += check_trace(com1 + pro1 + loop)
        i0 = slow.index('L_slow_loop:')
        i1 = slow.index('s_cbranch_scc1 L_slow_loop')
        for kb in [i for i, l in enumerate(fin) if 'L_slow' in l]:
            probs += check_trace(g13 + fin[:kb + 1] + slow[:i1 + 1] + slow[i0:])
        return text, probs, [pro, body[0], fin]

    def emit(self):
        text, probs, parts = self.build()
        out = []
        for l in open(self.o.ref).read().split('\n'):
            if l.startswith('; @launch'):
                out.append('; @launch grid=(256,1,1) block=(256,1,1) lds=163840')
            elif l.startswith(';'):
                out.append(l)
            else:
                break
        out += ['.amdgcn_target "amdgcn-amd-amdhsa--gfx950"', '.text', '.globl %s_kernel' % NAME, '.p2align 8',
                '.type %s_kernel,@function' % NAME, '%s_kernel:' % NAME]
        for l in text:
            out.append(l if (l.endswith(':') or l.startswith('.')) else '    ' + l)
        out += ['.section .rodata,"a"', '.p2align 6', '.amdhsa_kernel %s_kernel' % NAME,
                '  .amdhsa_next_free_vgpr 472', '  .amdhsa_next_free_sgpr 102', '  .amdhsa_accum_offset 256',
                '  .amdhsa_group_segment_fixed_size 0', '  .amdhsa_kernarg_size 48', '  .amdhsa_user_sgpr_count 2',
                '  .amdhsa_user_sgpr_kernarg_segment_ptr 1', '  .amdhsa_system_sgpr_workgroup_id_x 1',
                '  .amdhsa_float_denorm_mode_32 3', '  .amdhsa_float_denorm_mode_16_64 3',
                '.end_amdhsa_kernel', '']
        return '\n'.join(out), probs, parts


def ilist(s):
    return [int(x) for x in s.split(',')]


def mlist(s):
    return [x.split(',') if x else [] for x in s.split('/')]


def parse(argv):
    ap = argparse.ArgumentParser()
    ap.add_argument('-o', default='cdna_kernels/%s.s' % NAME)
    ap.add_argument('--ref', default='cdna_kernels/%s.s.ref' % NAME)
    ap.add_argument('--thr', type=float, default=40)
    ap.add_argument('--stamps', action='store_true')
    ap.add_argument('--st', type=lambda s: s.split(','), default=['q0', 'q3', 'k1', 'first', 'loop', 'body', 'fin', 'stored'])
    ap.add_argument('--nodma', action='store_true')
    ap.add_argument('--nobar', action='store_true')
    ap.add_argument('--show', type=int, default=-1)
    ap.add_argument('--exp', default='')
    ap.add_argument('--drop', type=lambda s: s.split(','), default=[])
    ap.add_argument('--align', type=int, default=6)
    ap.add_argument('--age', type=int, default=12)
    ap.add_argument('--hage', type=int, default=24)
    ap.add_argument('--kdg', type=int, default=3)
    ap.add_argument('--vdg', type=int, default=7)
    ap.add_argument('--dstride', type=int, default=4)
    ap.add_argument('--roles', type=int, default=1)
    ap.add_argument('--qe', type=ilist, default=[1, 1])
    ap.add_argument('--mid', type=mlist, default=mlist('V0,Q1/Q2,C0/Q3/K1/V1/K2,V2/K3'))
    ap.add_argument('--mid1', type=mlist, default=mlist('V0/Q1,C0/Q2/Q3,K1/V1/K2,V2/K3'))
    ap.add_argument('--bgstep', type=int, default=14)
    ap.add_argument('--carry', type=int, default=16)
    ap.add_argument('--cover', type=int, default=5)
    ap.add_argument('--hcap', type=ilist, default=[4, 3, 4])
    ap.add_argument('--fcap', type=lambda s: [float(x) for x in s.split(',')], default=[6, 6, 6])
    ap.add_argument('--fpace', type=int, default=8)
    ap.add_argument('--fpk', type=int, default=4)
    ap.add_argument('--fsd', type=int, default=24)
    ap.add_argument('--fstep', type=int, default=12)
    ap.add_argument('--fchk', type=int, default=4)
    ap.add_argument('--kvflag', type=lambda s: s.replace('+', ' ') + ' ' if s else '', default='')
    ap.add_argument('--qflag', type=lambda s: s.replace('+', ' ') + ' ' if s else '', default='')
    ap.add_argument('--oflag', type=lambda s: s.replace('+', ' '), default='nt')
    return ap.parse_args(argv)


SHORT = [('v_smfmac_f32_16x16x64_bf16', 'S'), ('v_mfma_f32_16x16x32_bf16', 'M'), ('v_exp_f32', 'e'), ('ds_read_b64_tr_b16', 't'), ('v_cvt_pk_bf16_f32', 'c'), ('ds_read_b128', 'R'), ('s_waitcnt', 'w'),
         ('v_add_f32', 'a'), ('s_add_u32', 's'), ('s_mov_b32', 's'), ('s_barrier', 'BAR'), ('v_permlane32_swap_b32', 'x'), ('v_permlane16_swap_b32', 'x'),
         ('buffer_load_dwordx4', 'D'), ('v_pk_mul_f32', 'P'), ('s_nop', 'n'), ('v_accvgpr_write_b32', 'A'), ('v_lshlrev_b32', 'l'), ('v_and_b32', '&'),
         ('v_max3_f32', 'mx'), ('v_max_f32', 'mx'), ('v_mov_b32', 'mv'), ('v_sub_f32', 'sb'), ('global_load_dwordx4', 'G'), ('v_mul_f32', 'm'),
         ('ds_write2_b64', 'W'), ('buffer_store_dwordx4', 'ST'), ('v_accvgpr_read_b32', 'acc'), ('v_cmp_ngt_f32', 'cmp'), ('v_rcp_f32', 'rcp'), ('s_cbranch_vccnz', 'br')]

if __name__ == '__main__':
    o = parse(sys.argv[1:])
    g = Gen(o)
    s, probs, parts = g.emit()
    open(o.o, 'w').write(s)
    if o.show >= 0:
        d = dict(SHORT)
        cur, k = [], -1
        for l in parts[o.show] + [MF]:
            if ismf(l):
                print('%d: %s' % (k, ' '.join(cur)))
                cur = []
                k += 1
            cur.append(d.get(l.split()[0], l.split()[0]))
    for p in probs[:40]:
        print('HAZARD', p)
    print('%d hazard findings' % len(probs))
```

```python
import sys, math, struct, argparse, re
from asmlib import I, check_trace

NAME = 'standalone__gqa_softmax__near_ridge'

V_O = 8
V_S = 136
V_C = 200
VKA = 216
VVA = 220
VDK = 228
VDV = 232
VOW = 234
VOR = 238
VOG = 240
VT = 244
VIX = 168
NP = 33
A_Q = 0
A_K = 64
A_V = 128
A_L = 192
A_1 = 208

S_Q, S_K, S_V, S_OD = 4, 8, 12, 16
S_W, S_M0K, S_M0V, S_OFFK, S_OFFV, S_CNT = 20, 21, 22, 23, 24, 25
S_C = 26
S_QOFF = 28
S_THR = 29
S_TMP = 30
S_STG = 32
S_QLDS = 33
S_TS = 40
S_OQ = 80
S_QB = 84
OPITCH = 272
V_BASE = 98304
MF = 'v_mfma_f32_16x16x32_bf16'


def f2u(x):
    return struct.unpack('<I', struct.pack('<f', x))[0]


def vr(b, n=1):
    return 'v%d' % b if n == 1 else 'v[%d:%d]' % (b, b + n - 1)


def ar(b, n=1):
    return 'a%d' % b if n == 1 else 'a[%d:%d]' % (b, b + n - 1)


def sr(b, n=1):
    return 's%d' % b if n == 1 else 's[%d:%d]' % (b, b + n - 1)


def SB(n):
    return V_S + 16 * (n & 1)


def O(qb, db):
    return V_O + 32 * qb + 4 * db


def ismf(l):
    return l.startswith(MF) or l.startswith('v_smfmac')


def ismem(l):
    return I(l).kind in ('dsr', 'dsw', 'vst', 'dma', 'vld', 'wait', 'barrier', 'sctl', 'salu', 'smem')


def cost(l):
    x = I(l)
    if x.kind == 'valu' and (x.trans or x.op.startswith('v_permlane')):
        return 2
    if x.kind == 'nop':
        return x.n
    return 1


class Gen:
    def __init__(self, opt):
        self.o = opt
        self.nts = 0

    def qk_slots(self):
        return [(kb, st if kb % 2 == 0 else 3 - st, st == 0) for kb in range(4) for st in range(4)]

    def qk_mfma(self, n, kb, st, first, czero=False):
        qb = n & 3
        d = vr(SB(n) + 4 * kb, 4)
        c = d if not first else ('0' if czero else vr(V_C + 4 * qb, 4))
        return '%s %s, %s, %s, %s' % (MF, d, ar(A_K + 16 * kb + 4 * st, 4), ar(A_Q + 16 * qb + 4 * st, 4), c)

    def qk(self, n):
        return [self.qk_mfma(n, *a) for a in self.qk_slots()]

    def pv(self, n):
        qb = n & 3
        z = n < 4
        out = ['v_smfmac_f32_16x16x64_bf16 %s, %s, %s, %s' % (ar(A_L + 4 * qb, 4), ar(A_1, 4), vr(SB(n), 8), vr(VIX))]
        for db in range(8):
            o = vr(O(qb, db), 4)
            out += ['%s %s, %s, %s, %s' % (MF, o, ar(A_V + 32 * h + 4 * db, 4), vr(SB(n) + 4 * h, 4), '0' if (z and h == 0) else o) for h in range(2)]
        return out

    def k_read(self, t, kb, st):
        return 'ds_read_b128 %s, %s offset:%d' % (ar(A_K + 16 * kb + 4 * st, 4), vr(VKA + st), (t & 3) * 16384 + kb * 4096)

    def v_read(self, t, h, db, j, addr=VVA, base=None):
        off = ((t + 1) & 3) * 16384 + h * 8192 if base is None else base
        return 'ds_read_b64_tr_b16 %s, %s offset:%d' % (ar(A_V + 32 * h + 4 * db + 2 * j, 2), vr(addr + db), off + j * 4096)

    def v_list(self, t):
        return [self.v_read(t, h, db, j) for db in range(8) for h in range(2) for j in range(2)]

    def sm_seq(self, n):
        seq = []
        for kb in range(4):
            s = SB(n) + 4 * kb
            for r in range(4):
                cv = None
                if r & 1:
                    cv = 'v_cvt_pk_bf16_f32 %s, %s, %s' % (vr(SB(n) + 2 * kb + (r >> 1)), vr(s + r - 1), vr(s + r))
                seq.append(('v_exp_f32 %s, %s' % (vr(s + r), vr(s + r)), cv))
        return seq

    def sm_stream(self, n, ready=lambda k: 0, lo=0, hi=16):
        out, pend = [], []
        for k, (ex, cv) in list(enumerate(self.sm_seq(n)))[lo:hi]:
            out.append((ready(k), ex))
            out += pend
            pend = [(ready(k), cv)] if cv else []
        return out, pend

    def dma(self, kind, i):
        o = self.o
        if kind == 'K':
            return 'buffer_load_dwordx4 %s, %s, %s offen offset:%d %slds' % (vr(VDK + i), sr(S_K, 4), sr(S_OFFK), 1024 * i, o.kvflag)
        if kind == 'V':
            return 'buffer_load_dwordx4 %s, %s, %s offen offset:%d %slds' % (vr(VDV + (i & 1)), sr(S_V, 4), sr(S_OFFV), 1024 * i, o.kvflag)
        return 'buffer_load_dwordx4 %s, %s, %s offen offset:%d %slds' % (vr(VDK + i), sr(S_Q, 4), sr(S_QOFF), 1024 * i, o.qflag)

    def m0_for(self, kind, t):
        return 's_add_u32 m0, %s, %d' % (sr(S_M0V if kind == 'V' else S_M0K), ((t + (kind == 'V')) & 3) * 16384)

    def q_pre(self, j):
        return ['s_add_u32 m0, %s, %d' % (sr(S_QLDS), 4096 * j), 's_add_u32 %s, %s, %d' % (sr(S_QOFF), sr(S_QB), 4096 * j)]

    def stamp(self, name=None):
        if not self.o.stamps or (name is not None and name not in self.o.st):
            return []
        k = self.nts
        self.nts += 1
        return ['s_memtime %s' % sr(S_TS + 4 * k, 2), 's_memrealtime %s' % sr(S_TS + 4 * k + 2, 2)]

    def pack(self, mf, streams, cap, nmem=lambda g: 2):
        out = []
        for g in range(len(mf)):
            mem, val = [], []
            c = 0
            for q in streams:
                while q and q[0][0] <= g and ismem(q[0][1]) and len(mem) < nmem(g):
                    mem.append(q.pop(0)[1])
                    c += 1
            for q in streams:
                while q and q[0][0] <= g and not ismem(q[0][1]) and c + cost(q[0][1]) <= cap(g):
                    c += cost(q[0][1])
                    val.append(q.pop(0)[1])
            out.append(mf[g])
            out += mem + val
        return out + [l for q in streams for _, l in q]

    @staticmethod
    def before(lines, items, slot, lo=0):
        ms = [i for i, l in enumerate(lines) if ismf(l)]
        head = lines[ms[lo]:ms[slot]]
        for l in items:
            assert l.startswith('s_nop') or l in head, (slot, l)

    @staticmethod
    def auto_lgkm(lines, age=16):
        out, pend = [], []
        for k, l in enumerate(lines):
            x = I(l)
            if x.kind == 'wait' and x.lgkm is not None:
                pend = pend[len(pend) - x.lgkm:] if x.lgkm else []
            touched = set(x.uses) | set(x.defs)
            idx = [i for i, (r, _, _) in enumerate(pend) if touched & set(r)]
            if idx:
                last = max(idx)
                pos = len(out)
                if x.kind == 'mfma':
                    j = len(out) - 1
                    while j >= 0 and not ismf(out[j]):
                        j -= 1
                    if j >= 0 and pend[last][2] <= j:
                        pos = j + 1
                early = [p for p in pend if p[2] < pos]
                while last + 1 < len(early) and early[last + 1][1] <= k - age:
                    last += 1
                n = min(15, len(early) - 1 - last)
                out.insert(pos, 's_waitcnt lgkmcnt(%d)' % n)
                keep = early[len(early) - n:] if n else []
                pend = keep + [(r, kk, p + 1) for r, kk, p in pend[len(early):]]
            out.append(l)
            if x.kind == 'dsr':
                pend.append((x.defs, k, len(out) - 1))
            if x.kind == 'dsw':
                pend.append(([], k, len(out) - 1))
        return out

    @staticmethod
    def fix_hazards(prefix, lines):
        lines = list(lines)
        for _ in range(300):
            pr = [p for p in check_trace(prefix + lines) if int(p.split(':')[0]) >= len(prefix)]
            if not pr:
                return lines
            p = pr[0]
            m = re.search(r'needs (\d+),? has (\d+)', p)
            assert 'pending' not in p, p
            n = int(m.group(1)) - int(m.group(2)) if m else 1
            lines.insert(int(p.split(':')[0]) - len(prefix), 's_nop %d' % (n - 1))
        raise RuntimeError('hazards keep coming')

    EG = list(range(1, 32, 2))

    def steady(self, n0, n1, vmw=8, kdma=True, vdma=True, bar=True):
        o = self.o
        mf, shadow, valu, isexp = [], [], [], []
        for n in range(n0, n1):
            mf += self.qk(n + 1) + self.pv(n)
            v = [[] for _ in range(NP)]
            seq = self.sm_seq(n)[13:] + self.sm_seq(n + 1)[:13]
            for g, (ex, cv) in zip(self.EG, seq):
                v[g].append(ex)
                if cv:
                    v[g + 1].append(cv)
            valu += v
            shadow += [[] for _ in range(NP)]
            isexp += [g in self.EG for g in range(NP)]
        N = len(mf)
        free = lambda g: 0 if isexp[g] else 2 - len(valu[g]) - len([x for x in shadow[g] if not x.startswith('s_add')])

        def put(items):
            g, dbl = 0, False
            for ready, l in items:
                g = max(g, ready)
                while free(g) < 1 or (shadow[g] and g > 0 and len(shadow[g - 1]) == 2):
                    g += 1
                shadow[g].append(l)
            return g

        def put_dma(kind, t, g, step):
            off = S_OFFV if kind == 'V' else S_OFFK
            shadow[g].append(self.m0_for(kind, t))
            g += 1
            for i in range(4):
                while free(g) < 1:
                    g += 1
                shadow[g].append(self.dma(kind, i))
                g += step
            shadow[g - step + 1].append('s_add_u32 %s, %s, 16384' % (sr(off), sr(off)))
        for n in range(n0, n1):
            b = NP * (n - n0)
            t = n >> 2
            if n & 3 == 2 and t < 15:
                if bar and not o.nobar:
                    shadow[b] += ['s_waitcnt vmcnt(%d)' % vmw, 's_barrier']
                put([(b + max(s, 1), self.k_read(t + 1, kb, st)) for s, (kb, st, _) in enumerate(self.qk_slots())])
            if n & 3 == 3 and t < 15:
                put([(b + 17 + k // 2, l) for k, l in enumerate(self.v_list(t + 1))])
                if kdma and not o.nodma:
                    put_dma('K', t + 3, b + o.kdg, o.dstride)
            if n & 3 == 1 and vdma and not o.nodma:
                put_dma('V', t + 2, b + o.vdg, o.dstride)
        out = []
        for g in range(N):
            if g % NP == 4 and not shadow[g]:
                shadow[g].append('s_nop 0')
            out.append(mf[g])
            out += shadow[g] + valu[g]
        return out

    def xlane(self, op, regs, tmps):
        L = []
        for sw in ('v_permlane32_swap_b32', 'v_permlane16_swap_b32'):
            L += ['v_mov_b32 %s, %s' % (vr(t), vr(r)) for r, t in zip(regs, tmps)]
            if len(regs) < 3:
                L.append('s_nop 1')
            L += ['%s %s, %s' % (sw, vr(r), vr(t)) for r, t in zip(regs, tmps)]
            L += ['%s %s, %s, %s' % (op, vr(r), vr(r), vr(t)) for r, t in zip(regs, tmps)]
        return L

    def common(self):
        o = self.o
        L = []
        e = L.append
        e('s_cmp_ge_u32 s2, 256')
        e('s_cbranch_scc1 L_done')
        e('s_load_dwordx8 s[88:95], s[0:1], 0')
        e('s_getpc_b64 s[34:35]')
        e('L_pc:')
        e('v_lshlrev_b32 v4, 4, v0')
        if o.roles:
            e('s_bitcmp1_b32 s2, 3')
            e('s_cselect_b32 s3, L_role1 - L_pc, 0')
            e('v_add_u32 v4, s3, v4')
        e('v_add_co_u32 v8, vcc, s34, v4')
        e('v_mov_b32 v9, s35')
        e('v_lshrrev_b32 v2, 6, v0')
        e('v_addc_co_u32 v9, vcc, 0, v9, vcc')
        e('global_load_dwordx4 %s, v[8:9], off' % vr(V_C, 4))
        if o.stamps:
            e('s_load_dwordx2 s[96:97], s[0:1], 40')
            e('s_memrealtime s[98:99]')
        L += self.stamp()
        e('v_bfe_u32 v5, v0, 4, 2')
        e('v_readfirstlane_b32 %s, v2' % sr(S_W))
        e('v_and_b32 v6, 15, v0')
        e('v_lshlrev_b32 v7, 8, v5')
        e('v_lshl_add_u32 v7, v2, 12, v7')
        e('v_xor_b32 v3, v6, v5')
        e('v_lshl_add_u32 %s, v3, 4, v7' % vr(VDK))
        for i in range(1, 4):
            e('v_xor_b32 %s, %d, %s' % (vr(VDK + i), i << 6, vr(VDK)))
        e('s_and_b32 s30, s2, 7')
        e('s_lshr_b32 s3, s2, 4')
        e('s_lshl4_add_u32 s30, s30, s3')
        e('s_bfe_u32 s31, s2, 0x10003')
        e('s_lshl1_add_u32 s31, s30, s31')
        e('s_lshl_b32 s30, s30, 18')
        e('s_lshl_b32 s31, s31, 16')
        e('s_lshl_b32 %s, %s, 12' % (sr(S_M0K), sr(S_W)))
        e('s_mul_i32 %s, %s, 12288' % (sr(S_QB), sr(S_W)))
        e('s_lshl2_add_u32 %s, %s, 0xc000' % (sr(S_QLDS), sr(S_M0K)))
        e('s_mov_b32 %s, 0' % sr(S_OFFK))
        e('s_mov_b32 s10, 0x40000')
        e('s_mov_b32 s11, 0x20000')
        e('s_mov_b32 s6, 0x10000')
        e('s_mov_b32 s7, 0x20000')
        e('s_mov_b32 m0, %s' % sr(S_M0K))
        e('s_waitcnt lgkmcnt(0)')
        e('s_add_u32 s8, s90, s30')
        e('s_addc_u32 s9, s91, 0')
        L += [self.dma('K', i) for i in range(4)]
        e('s_add_u32 s4, s88, s31')
        e('s_addc_u32 s5, s89, 0')
        for j in range(o.qe[0]):
            if o.roles and j == o.qe[1]:
                e('s_bitcmp1_b32 s2, 3')
                e('s_cbranch_scc1 L_qskip')
            L += self.q_pre(j) + [self.dma('Q', i) for i in range(4)]
        if o.roles and o.qe[1] < o.qe[0]:
            e('L_qskip:')
        e('v_and_b32 v1, 63, v0')
        e('s_lshr_b32 s3, s2, 3')
        e('s_lshl2_add_u32 s3, s3, %s' % sr(S_W))
        e('s_and_b32 s3, s3, 31')
        e('s_min_u32 s3, s3, (L_slow - L_pc) / 1024 - 4')
        e('s_lshl_b32 s3, s3, 10')
        e('s_add_u32 s3, s3, 4096')
        e('s_add_u32 s34, s34, s3')
        e('s_addc_u32 s35, s35, 0')
        e('v_lshlrev_b32 v3, 4, v1')
        e('v_add_co_u32 %s, vcc, s34, v3' % vr(VT + 8))
        e('v_mov_b32 %s, s35' % vr(VT + 9))
        e('s_nop 0')
        e('v_addc_co_u32 %s, vcc, 0, %s, vcc' % (vr(VT + 9), vr(VT + 9)))
        e('s_add_u32 s12, s92, s30')
        e('s_addc_u32 s13, s93, 0')
        e('s_mov_b32 s14, 0x40000')
        e('s_mov_b32 s15, 0x20000')
        e('s_add_u32 %s, %s, %d' % (sr(S_M0V), sr(S_M0K), V_BASE))
        e('v_lshlrev_b32 v3, 1, v5')
        e('v_xor_b32 v3, v6, v3')
        e('v_lshl_add_u32 %s, v3, 4, v7' % vr(VDV))
        e('v_xor_b32 %s, 0x80, %s' % (vr(VDV + 1), vr(VDV)))
        e('s_add_u32 s16, s94, s31')
        e('s_addc_u32 s17, s95, 0')
        e('s_mov_b32 s18, 0x10000')
        e('s_mov_b32 s19, 0x20000')
        e('v_xor_b32 v3, v5, v6')
        e('v_lshlrev_b32 v4, 8, v6')
        e('v_lshl_add_u32 %s, v3, 4, v4' % vr(VKA))
        for st in range(1, 4):
            e('v_xor_b32 %s, %d, %s' % (vr(VKA + st), st << 6, vr(VKA)))
        for st in range(4):
            e('v_add_u32 %s, %s, %s' % (vr(VT + st), sr(S_QLDS), vr(VKA + st)))
        c = math.log2(math.e) / math.sqrt(128.0)
        e('s_mov_b32 %s, 0x%08x' % (sr(S_C), f2u(c)))
        e('s_mov_b32 %s, 0x%08x' % (sr(S_C + 1), f2u(c)))
        e('s_mov_b32 %s, 0x%08x' % (sr(S_THR), f2u(2.0 ** o.thr)))
        e('s_mov_b32 %s, 0xffff0000' % sr(S_TMP))
        e('v_lshrrev_b32 v3, 2, v1')
        e('v_lshlrev_b32 v2, 8, v3')
        e('v_and_b32 v3, 7, v3')
        e('v_lshl_add_u32 v2, v3, 5, v2')
        e('v_and_b32 v3, 3, v1')
        e('v_lshl_add_u32 v2, v3, 3, v2')
        e('v_add_u32 %s, %d, v2' % (vr(VVA), V_BASE))
        for db in range(1, 8):
            e('v_xor_b32 %s, %d, %s' % (vr(VVA + db), db << 5, vr(VVA)))
        e('s_mul_i32 %s, %s, %d' % (sr(S_STG), sr(S_W), 4 * OPITCH * 16))
        e('v_mul_u32_u24 v3, %d, v6' % OPITCH)
        e('v_lshl_add_u32 v3, v5, 3, v3')
        e('v_add_u32 %s, %s, v3' % (vr(VOW), sr(S_STG)))
        for qb in range(1, 4):
            e('v_add_u32 %s, %d, %s' % (vr(VOW + qb), qb * OPITCH * 16, vr(VOW)))
        e('v_mul_u32_u24 v3, %d, v5' % OPITCH)
        e('v_lshl_add_u32 v3, v6, 4, v3')
        e('v_add_u32 %s, %s, v3' % (vr(VOR), sr(S_STG)))
        e('s_lshl_b32 s3, %s, 14' % sr(S_W))
        e('v_lshlrev_b32 v3, 4, v1')
        e('v_add_u32 %s, s3, v3' % vr(VOG))
        for qb in range(1, 4):
            e('s_movk_i32 %s, %d' % (sr(S_OQ + qb), 4096 * qb))
        e('v_and_b32 v3, 2, v1')
        e('v_cmp_eq_u32 vcc, 0, v3')
        e('v_mov_b32 v2, 0x3f803f80')
        e('s_mov_b32 %s, 0' % sr(S_CNT))
        e('v_cndmask_b32 v3, 0, v2, vcc')
        for j in range(4):
            e('v_accvgpr_write_b32 %s, v3' % ar(A_1 + j))
        e('v_and_b32 v3, 1, v1')
        e('v_cmp_eq_u32 vcc, 0, v3')
        e('v_mov_b32 v2, 0x44444444')
        e('v_mov_b32 v3, 0xeeeeeeee')
        e('v_cndmask_b32 %s, v3, v2, vcc' % vr(VIX))
        for j in range(16):
            e('v_accvgpr_write_b32 %s, 0' % ar(A_L + j))
        if o.roles:
            e('s_bitcmp1_b32 s2, 3')
            e('s_cbranch_scc1 L_role1')
        return L

    def dmax(self, qb):
        T = VT + 4 + 2 * (qb & 1)
        sq = SB(qb)
        D = ['v_max3_f32 %s, %s, %s, %s' % (vr(T), vr(sq), vr(sq + 1), vr(sq + 2)),
             'v_max3_f32 %s, %s, %s, %s' % (vr(T + 1), vr(sq + 4), vr(sq + 5), vr(sq + 6)),
             'v_max3_f32 %s, %s, %s, %s' % (vr(T), vr(T), vr(sq + 3), vr(sq + 7)),
             'v_max_f32 %s, %s, %s' % (vr(T), vr(T), vr(T + 1))]
        for sw in ('v_permlane32_swap_b32', 'v_permlane16_swap_b32'):
            D += ['v_mov_b32 %s, %s' % (vr(T + 1), vr(T)), 's_nop 1', '%s %s, %s' % (sw, vr(T), vr(T + 1)), 'v_max_f32 %s, %s, %s' % (vr(T), vr(T), vr(T + 1))]
        D += ['v_sub_f32 %s, 0, %s' % (vr(V_C + 4 * qb + r), vr(T)) for r in range(4)]
        return D

    def sm0(self, qb):
        out = []
        st, pend = self.sm_stream(qb)
        sub = ['v_add_f32 %s, %s, %s' % (vr(SB(qb) + r), vr(SB(qb) + r), vr(V_C + 4 * qb)) for r in range(16)]
        return sub + [l for _, l in st] + ['s_nop 0'] + [l for _, l in pend]

    def head(self, role):
        o = self.o
        mid = o.mid if role == 0 else o.mid1
        L = []
        e = L.append
        vm = ['K0'] * 4 + ['Q%d' % j for j in range(o.qe[role]) for _ in range(4)]

        def wait(*tags):
            last = max(i for i, t in enumerate(vm) if t in tags)
            e('s_waitcnt vmcnt(%d)' % (len(vm) - 1 - last))

        RAW = O(3, 0)
        TM = O(3, 4)

        def prescale(qb, st):
            b = RAW + 4 * st
            t0 = TM + 8 * (st & 1)
            P = []
            for j in range(4):
                P.append('v_lshlrev_b32 %s, 16, %s' % (vr(t0 + 2 * j), vr(b + j)))
                P.append('v_and_b32 %s, %s, %s' % (vr(t0 + 2 * j + 1), sr(S_TMP), vr(b + j)))
            P += ['v_pk_mul_f32 %s, %s, %s' % (vr(t0 + 2 * j, 2), vr(t0 + 2 * j, 2), sr(S_C, 2)) for j in range(4)]
            P += ['v_cvt_pk_bf16_f32 %s, %s, %s' % (vr(t0 + 2 * j), vr(t0 + 2 * j), vr(t0 + 2 * j + 1)) for j in range(4)]
            P += ['v_accvgpr_write_b32 %s, %s' % (ar(A_Q + 16 * qb + 4 * st + j), vr(t0 + 2 * j)) for j in range(4)]
            return P

        def dma_lines(x):
            kind, t = x[0], int(x[1:])
            if kind == 'T':
                vm.append('C')
                return [([], 'buffer_load_dword %s, %s, %s, 0 offen' % (vr(VT + 7), vr(VOG), sr(S_OD, 4)))]
            if kind == 'C':
                vm.append('C')
                return [([], 'global_load_dwordx4 %s, %s, off' % (vr(VT + 8, 4), vr(VT + 8, 2)))]
            vm.extend([x] * 4)
            if kind == 'Q':
                pre = self.q_pre(t)
            else:
                pre = ['s_mov_b32 %s, %d' % (sr(S_OFFV if kind == 'V' else S_OFFK), 16384 * t), self.m0_for(kind, t), 's_nop 0']
            return [(pre if i == 0 else [], self.dma(kind, i)) for i in range(4)]

        def background(seg, xs, start, step):
            items = [z for x in xs for z in dma_lines(x)]
            out, nxt = [], start
            for i, l in enumerate(seg):
                out.append(l)
                if items and i >= nxt and (ismf(l) or not (i + 1 < len(seg) and ismf(seg[i + 1]))):
                    pre, ld = items.pop(0)
                    out += pre + [ld]
                    nxt = i + step
            for pre, ld in items:
                out += pre + [ld]
            return out

        for x in mid[0]:
            if x[0] == 'w':
                wait(x[1:])
            else:
                for pre, ld in dma_lines(x):
                    L += pre + [ld]
        F = []
        for qb in range(4):
            if qb == 1:
                wait('Q1', 'V0')
                L += self.stamp('q1')
                e('s_barrier')
            else:
                wait('Q%d' % qb)
                L += self.stamp('q%d' % qb)
            G = ['ds_read_b128 %s, %s offset:%d' % (vr(RAW + 4 * st, 4), vr(VT + st), 4096 * qb) for st in range(4)]
            G += F
            c0 = [[self.qk_mfma(qb, kb, st, st == 0, czero=True) for kb in range(4)] for st in range(4)]
            vl = self.v_list(0) if qb == 1 else []
            for st in range(4):
                P = prescale(qb, st)
                if st and qb:
                    m = c0[st - 1]
                    P = P[:12]
                    Q = prescale(qb, st)[12:]
                    for k in range(4):
                        P += [m[k]] + vl[:2] + Q[2 * k:2 * k + 2]
                        vl = vl[2:]
                G += P
            if qb == 0:
                G.append('s_barrier')
                kr = [self.k_read(0, kb, st) for st in range(4) for kb in range(4)]
                G += kr[:12] + c0[0][:1] + kr[12:] + c0[0][1:] + c0[1] + c0[2]
            for m in c0[3]:
                G += [m] + vl[:2]
                vl = vl[2:]
            assert not vl
            if qb < 3:
                S0 = self.dmax(qb) + self.sm0(qb)
                F = S0[len(S0) - o.carry:]
                S0 = S0[:len(S0) - o.carry]
                if qb:
                    G += self.pack(self.pv(qb - 1), [[(2, l) for l in S0]], lambda g: o.hcap[2])
                else:
                    G += S0
            L += background(G, mid[qb + 1], 3, o.bgstep)
        wait('K1', 'C')
        L += self.stamp('k1')
        e('s_barrier')
        mf = self.pv(2) + self.qk(4) + self.pv(3)
        s1 = [(k // 2, self.k_read(1, kb, st)) for k, (kb, st, _) in enumerate(self.qk_slots())]
        s2 = [(1, l) for l in self.dmax(3) + self.sm0(3)]
        st4, pend = self.sm_stream(4, lambda k: 17 + 4 * (k >> 2) + 3 + 3, 0, 13)
        G = self.pack(mf, [s1, s2, st4], lambda g: o.hcap[0] if g < NP else o.hcap[1])
        self.before(G, self.sm0(3), NP)
        assert not pend
        vl = self.v_list(1)
        out, k, nm = [], 0, 0
        for l in G:
            out.append(l)
            if ismf(l):
                nm += 1
                if nm == 34:
                    out.append('WAIT_V1')
                if nm > 34 + 1 and (nm & 1) == 0:
                    out += vl[k:k + 2]
                    k += 2
        j = out.index('WAIT_V1')
        L += background(out[:j], mid[5], 12, 13)
        wait('V1')
        e('s_barrier')
        L += background(out[j + 1:], mid[6], 2, 13)
        self.v_left = vl[k:]
        kv = [x for x in vm if x[0] in 'KV']
        assert [x for x in kv if x[0] == 'K'] == [x for x in ['K0', 'K1', 'K2', 'K3'] for _ in range(4)], vm
        assert [x for x in kv if x[0] == 'V'] == [x for x in ['V0', 'V1', 'V2'] for _ in range(4)], vm
        assert vm[-4:] == ['K3'] * 4, vm
        e('s_mov_b32 %s, %d' % (sr(S_OFFK), 16384 * 4))
        e('s_mov_b32 %s, %d' % (sr(S_OFFV), 16384 * 3))
        L += self.stamp('first')
        P = self.steady(4, 6)
        out, nm, left = [], -1, list(self.v_left)
        for i, l in enumerate(P):
            out.append(l)
            if ismf(l):
                nm += 1
                if left and nm not in self.EG:
                    nx = P[i + 1]
                    take = 1 if nx.startswith('v_cvt') else 2
                    out += left[:take]
                    left = left[take:]
        assert not left
        return L + out + self.stamp('loop')

    def norm_group(self, qb, j, packed):
        rc = VT + 4 + 2 * qb
        a, b = O(qb, 2 * j), O(qb, 2 * j + 1)
        if packed:
            V = ['v_pk_mul_f32 %s, %s, %s op_sel_hi:[1,0]' % (vr(a + 2 * k, 2), vr(a + 2 * k, 2), vr(rc, 2)) for k in range(4)]
        else:
            V = ['v_mul_f32 %s, %s, %s' % (vr(a + k), vr(a + k), vr(rc)) for k in range(8)]
        V += ['v_cvt_pk_bf16_f32 %s, %s, %s' % (vr(a), vr(a), vr(a + 1)), 'v_cvt_pk_bf16_f32 %s, %s, %s' % (vr(a + 1), vr(a + 2), vr(a + 3)),
              'v_cvt_pk_bf16_f32 %s, %s, %s' % (vr(a + 2), vr(b), vr(b + 1)), 'v_cvt_pk_bf16_f32 %s, %s, %s' % (vr(a + 3), vr(b + 2), vr(b + 3))]
        return V + ['ds_write2_b64 %s, %s, %s offset0:%d offset1:%d' % (vr(VOW + qb), vr(a, 2), vr(a + 2, 2), 8 * j, 8 * j + 4)]

    def o_reads(self, qb):
        return ['ds_read_b128 %s, %s offset:%d' % (vr(O(qb, 2 * i + 1), 4), vr(VOR), OPITCH * (16 * qb + 4 * i)) for i in range(4)]

    def o_stores(self, qb):
        return ['buffer_store_dwordx4 %s, %s, %s, %s offen offset:%d %s' % (vr(O(qb, 2 * i + 1), 4), vr(VOG), sr(S_OD, 4), sr(S_OQ + qb) if qb else '0', 1024 * i, self.o.oflag)
                for i in range(4)]

    def final(self):
        o = self.o
        T = VT
        mf = self.qk(62) + self.pv(61) + self.qk(63) + self.pv(62) + self.pv(63)
        N = len(mf)
        PVS = {0: -100, 1: 16, 2: 49, 3: 66}
        c61, pc = self.sm_stream(61, lambda k: 0, 13, 16)
        c61 += [(0, 's_nop 0')] + pc
        a, pa = self.sm_stream(62, lambda k: 4 * (k >> 2) + 6)
        b, pb = self.sm_stream(63, lambda k: NP + 4 * (k >> 2) + 6)
        pace = lambda st, g0: [(max(r, g0 + (o.fpace * i) // 8), l) for i, (r, l) in enumerate(st)]
        s2 = c61 + pace(a + [(0, 's_nop 0')] + pa, 6) + pace(b + [(0, 's_nop 0')] + pb, NP + 6)
        s3 = []
        for qb in range(4):
            r = max(0, PVS[qb] + o.fchk)
            s3 += [(r, 'v_accvgpr_read_b32 %s, %s' % (vr(T + qb), ar(A_L + 4 * qb))),
                   (r, 'v_accvgpr_read_b32 %s, %s' % (vr(T + 5 + 2 * qb), ar(A_L + 4 * qb + 1))),
                   (r, 'v_add_f32 %s, %s, %s' % (vr(T + qb), vr(T + qb), vr(T + 5 + 2 * qb))),
                   (r, 'v_cmp_ngt_f32 vcc, %s, %s' % (sr(S_THR), vr(T + qb))),
                   (r, 'v_rcp_f32 %s, %s' % (vr(T + 4 + 2 * qb), vr(T + qb))),
                   (r + 1, 's_cbranch_vccnz L_slow' if not o.exp else 's_nop 0')]
        s4 = []
        groups = [(qb, j) for qb in range(4) for j in range(4)]
        for n, (qb, j) in enumerate(groups):
            ready = max(PVS[qb] + 1 + 4 * j + 3 + 3, PVS[qb] + o.fchk + 3, 3)
            late = ready >= N - o.fpk
            if late:
                ready = N + 1
            s4 += [(ready, l) for l in self.norm_group(qb, j, late)]
        fc = lambda g: o.fcap[min(g // NP, 2)]
        G = self.pack(mf, [[(0, 's_barrier')], s3, s2, s4], lambda g: int(fc(g) * (g + 1)) - int(fc(g) * g), lambda g: 1)
        todo = []
        out, nw = [], 0
        since = 99
        for i, l in enumerate(G):
            out.append(l)
            if l.startswith('ds_write2'):
                nw += 1
                if nw % 4 == 0:
                    qb = nw // 4 - 1
                    todo += [(i, r) for r in self.o_reads(qb)] + [(i + o.fsd, st) for st in self.o_stores(qb)]
            since += 1
            left = any(ismf(x) for x in G[i + 1:])
            slot = (ismf(l) and not ismem(G[i + 1])) if left else not (i + 1 < len(G) and ismem(G[i + 1]))
            if slot and todo and todo[0][0] <= i:
                if todo[0][1].startswith('ds_read'):
                    out += [todo.pop(0)[1], todo.pop(0)[1]]
                elif since >= o.fstep:
                    out.append(todo.pop(0)[1])
                    since = 0
        G = out + [l for _, l in todo]
        for n, lo, slot in ((61, 0, 16), (62, 0, 49), (63, NP, 66)):
            self.before(G, [cv for _, cv in self.sm_seq(n)[13:] if cv], slot, lo)
        return G

    def plain_store(self):
        L = [l for qb in range(4) for j in range(4) for l in self.norm_group(qb, j, True)]
        for qb in range(4):
            L += self.o_reads(qb)
        L.append('s_waitcnt lgkmcnt(0)')
        for qb in range(4):
            L += self.o_stores(qb)
        return L

    def slow_path(self):
        L = []
        e = L.append
        T = VT
        M = V_C
        SK = V_S + 36
        SV = SK + 1
        SVA = SK + 4
        S = lambda qb: V_S + 8 * qb
        e('L_slow:')
        e('s_waitcnt vmcnt(0) lgkmcnt(0)')
        e('s_nop 7')
        e('v_mbcnt_lo_u32_b32 v1, -1, 0')
        e('v_mbcnt_hi_u32_b32 v1, -1, v1')
        e('v_and_b32 v2, 15, v1')
        e('v_lshrrev_b32 v3, 4, v1')
        e('v_lshlrev_b32 v2, 8, v2')
        e('v_lshl_add_u32 %s, v3, 4, v2' % vr(SK))
        e('v_subrev_u32 %s, %s, %s' % (vr(SV), sr(S_M0K), vr(VDV)))
        e('v_subrev_u32 %s, %s, %s' % (vr(SV + 1), sr(S_M0K), vr(VDV + 1)))
        e('s_sub_u32 s3, %s, %d' % (sr(S_STG), V_BASE))
        for db in range(8):
            e('v_add_u32 %s, s3, %s' % (vr(SVA + db), vr(VVA + db)))
        for i in range(128):
            e('v_mov_b32 %s, 0' % vr(V_O + i))
        for qb in range(4):
            e('v_mov_b32 %s, 0xff7fffff' % vr(M + qb))
            e('v_mov_b32 %s, 0' % vr(M + 4 + qb))
        e('s_mov_b32 %s, 0' % sr(S_CNT))
        e('L_slow_loop:')
        e('s_mov_b32 m0, %s' % sr(S_STG))
        e('s_add_u32 s31, %s, 4096' % sr(S_CNT))
        for i in range(4):
            e('buffer_load_dwordx4 %s, %s, %s offen offset:%d lds' % (vr(SV + (i & 1)), sr(S_V, 4), sr(S_CNT), 1024 * i))
        e('s_add_u32 m0, %s, 4096' % sr(S_STG))
        e('s_nop 0')
        for i in range(4):
            e('buffer_load_dwordx4 %s, %s, s31 offen offset:%d lds' % (vr(SV + (i & 1)), sr(S_V, 4), 1024 * i))
        for kb in range(2):
            for st in range(4):
                e('buffer_load_dwordx4 %s, %s, %s, %s offen offset:%d' % (ar(A_K + 16 * kb + 4 * st, 4), vr(SK), sr(S_K, 4), 's31' if kb else sr(S_CNT), 64 * st))
        e('s_waitcnt vmcnt(0)')
        for kb in range(2):
            for st in range(4):
                for qb in range(4):
                    d = vr(S(qb) + 4 * kb, 4)
                    e('%s %s, %s, %s, %s' % (MF, d, ar(A_K + 16 * kb + 4 * st, 4), ar(A_Q + 16 * qb + 4 * st, 4), d if st else '0'))
        for db in range(8):
            for j in range(2):
                e(self.v_read(0, 0, db, j, addr=SVA, base=0))
        for qb in range(4):
            s = S(qb)
            e('v_max3_f32 %s, %s, %s, %s' % (vr(T + qb), vr(M + qb), vr(s), vr(s + 1)))
            for k in range(1, 4):
                e('v_max3_f32 %s, %s, %s, %s' % (vr(T + qb), vr(T + qb), vr(s + 2 * k), vr(s + 2 * k + 1)))
        L += self.xlane('v_max_f32', [T + q for q in range(4)], [T + 4 + q for q in range(4)])
        for qb in range(4):
            e('v_sub_f32 %s, %s, %s' % (vr(M + 8 + qb), vr(M + qb), vr(T + qb)))
        for qb in range(4):
            e('v_exp_f32 %s, %s' % (vr(M + 8 + qb), vr(M + 8 + qb)))
        for qb in range(4):
            e('v_mov_b32 %s, %s' % (vr(M + qb), vr(T + qb)))
        for qb in range(4):
            s = S(qb)
            for r in range(8):
                e('v_sub_f32 %s, %s, %s' % (vr(s + r), vr(s + r), vr(T + qb)))
            for r in range(8):
                e('v_exp_f32 %s, %s' % (vr(s + r), vr(s + r)))
            e('v_mul_f32 %s, %s, %s' % (vr(M + 4 + qb), vr(M + 4 + qb), vr(M + 8 + qb)))
            for r in range(8):
                e('v_add_f32 %s, %s, %s' % (vr(M + 4 + qb), vr(M + 4 + qb), vr(s + r)))
            for j in range(4):
                e('v_cvt_pk_bf16_f32 %s, %s, %s' % (vr(s + j), vr(s + 2 * j), vr(s + 2 * j + 1)))
            for i in range(32):
                e('v_mul_f32 %s, %s, %s' % (vr(O(qb, 0) + i), vr(O(qb, 0) + i), vr(M + 8 + qb)))
        e('s_waitcnt lgkmcnt(0)')
        e('s_nop 1')
        for db in range(8):
            for qb in range(4):
                o = vr(O(qb, db), 4)
                e('%s %s, %s, %s, %s' % (MF, o, ar(A_V + 4 * db, 4), vr(S(qb), 4), o))
        e('s_nop 7')
        e('s_add_u32 %s, %s, 8192' % (sr(S_CNT), sr(S_CNT)))
        e('s_cmp_lt_u32 %s, 0x40000' % sr(S_CNT))
        e('s_cbranch_scc1 L_slow_loop')
        for qb in range(4):
            e('v_mov_b32 %s, %s' % (vr(T + qb), vr(M + 4 + qb)))
        L += self.xlane('v_add_f32', [T + q for q in range(4)], [T + 4 + q for q in range(4)])
        for qb in range(4):
            e('v_rcp_f32 %s, %s' % (vr(T + 4 + 2 * qb), vr(T + qb)))
        e('s_nop 0')
        L += self.plain_store()
        e('s_branch L_end')
        return L

    def stamps_out(self):
        if not self.o.stamps:
            return []
        L = []
        e = L.append
        L += self.stamp('stored')
        e('s_waitcnt vmcnt(0) lgkmcnt(0)')
        e('s_memrealtime s[100:101]')
        L += self.stamp()
        e('s_waitcnt lgkmcnt(0)')
        e('s_mov_b32 s84, s96')
        e('s_mov_b32 s85, s97')
        e('s_mov_b32 s86, 0x100000')
        e('s_mov_b32 s87, 0x20000')
        e('s_getreg_b32 s88, hwreg(HW_REG_XCC_ID)')
        e('s_getreg_b32 s89, hwreg(HW_REG_HW_ID)')
        e('s_lshl_b32 s3, s2, 2')
        e('s_add_u32 s3, s3, %s' % sr(S_W))
        e('s_lshl_b32 s3, s3, 8')
        e('v_mov_b32 v1, s3')
        vals = [98, 99, 100, 101, 88, 89] + [S_TS + 4 * k for k in range(10)] + [S_TS + 4 * k + 2 for k in range(10)]
        e('s_mov_b64 exec, 1')
        for k, s in enumerate(vals):
            e('v_mov_b32 v2, s%d' % s)
            e('buffer_store_dword v2, v1, s[84:87], 0 offen offset:%d' % (4 * k))
        return L

    def build(self):
        o = self.o
        com = self.common()
        n0 = self.nts
        com1 = com
        if 'L_qskip:' in com:
            com1 = com[:com.index('s_cbranch_scc1 L_qskip') + 1] + com[com.index('L_qskip:'):]
        pro1 = []
        if o.roles:
            pro1 = ['L_role1:'] + self.fix_hazards(com1, self.auto_lgkm(self.head(1), o.hage)) + ['s_branch L_loop']
            self.nts = n0
        pro = com + self.fix_hazards(com, self.auto_lgkm(self.head(0), o.hage))
        st_a = []
        body = [self.auto_lgkm(self.steady(4 * t + 2, 4 * t + 6), o.age) for t in range(1, 5)]
        inc, cmp_ = 's_add_u32 %s, %s, 1' % (sr(S_CNT), sr(S_CNT)), 's_cmp_lt_u32 %s, 3' % sr(S_CNT)
        b = body[3]
        ms = [i for i, l in enumerate(b) if ismf(l)]
        b.insert(ms[-2] + 1, cmp_)
        assert not any(l.startswith('s_add') for l in b[ms[-2]:])
        b.insert(ms[-4] + 1, inc)
        b.append('s_cbranch_scc1 L_loop')
        st_b = self.stamp('body')
        g13 = self.auto_lgkm(self.steady(54, 58, vmw=8, kdma=False, vdma=False), o.age)
        g14 = self.steady(58, 61, vmw=0, kdma=False, vdma=False)
        st_c = self.stamp('fin')
        fin = self.fix_hazards(g13, self.auto_lgkm(g14 + st_c + self.final(), o.age))
        for pat in o.drop:
            fin = [l for l in fin if not l.startswith(pat)]
        so = self.stamps_out()
        slow = self.slow_path()

        text = pro + st_a
        if o.align:
            text.append('.p2align %d' % o.align)
        text.append('L_loop:')
        for x in body:
            text += x
        text += st_b + g13 + fin + ['L_end:'] + so + ['L_done:', 's_endpgm'] + pro1 + slow

        loop = [l for x in body for l in x]
        probs = check_trace(pro + st_a + loop * 3 + st_b + g13 + fin + so)
        if o.roles:
            probs += check_trace(com1 + pro1 + loop)
        i0 = slow.index('L_slow_loop:')
        i1 = slow.index('s_cbranch_scc1 L_slow_loop')
        for kb in [i for i, l in enumerate(fin) if 'L_slow' in l]:
            probs += check_trace(g13 + fin[:kb + 1] + slow[:i1 + 1] + slow[i0:])
        return text, probs, [pro, body[0], fin]

    def emit(self):
        text, probs, parts = self.build()
        out = []
        for l in open(self.o.ref).read().split('\n'):
            if l.startswith('; @launch'):
                out.append('; @launch grid=(256,1,1) block=(256,1,1) lds=163840')
            elif l.startswith(';'):
                out.append(l)
            else:
                break
        out += ['.amdgcn_target "amdgcn-amd-amdhsa--gfx950"', '.text', '.globl %s_kernel' % NAME, '.p2align 8',
                '.type %s_kernel,@function' % NAME, '%s_kernel:' % NAME]
        for l in text:
            out.append(l if (l.endswith(':') or l.startswith('.')) else '    ' + l)
        out += ['.section .rodata,"a"', '.p2align 6', '.amdhsa_kernel %s_kernel' % NAME,
                '  .amdhsa_next_free_vgpr 472', '  .amdhsa_next_free_sgpr 102', '  .amdhsa_accum_offset 256',
                '  .amdhsa_group_segment_fixed_size 0', '  .amdhsa_kernarg_size 48', '  .amdhsa_user_sgpr_count 2',
                '  .amdhsa_user_sgpr_kernarg_segment_ptr 1', '  .amdhsa_system_sgpr_workgroup_id_x 1',
                '  .amdhsa_float_denorm_mode_32 3', '  .amdhsa_float_denorm_mode_16_64 3',
                '.end_amdhsa_kernel', '']
        return '\n'.join(out), probs, parts


def ilist(s):
    return [int(x) for x in s.split(',')]


def mlist(s):
    return [x.split(',') if x else [] for x in s.split('/')]


def parse(argv):
    ap = argparse.ArgumentParser()
    ap.add_argument('-o', default='cdna_kernels/%s.s' % NAME)
    ap.add_argument('--ref', default='cdna_kernels/%s.s.ref' % NAME)
    ap.add_argument('--thr', type=float, default=40)
    ap.add_argument('--stamps', action='store_true')
    ap.add_argument('--st', type=lambda s: s.split(','), default=['q0', 'q3', 'k1', 'first', 'loop', 'body', 'fin', 'stored'])
    ap.add_argument('--nodma', action='store_true')
    ap.add_argument('--nobar', action='store_true')
    ap.add_argument('--show', type=int, default=-1)
    ap.add_argument('--exp', default='')
    ap.add_argument('--drop', type=lambda s: s.split(','), default=[])
    ap.add_argument('--align', type=int, default=6)
    ap.add_argument('--age', type=int, default=12)
    ap.add_argument('--hage', type=int, default=24)
    ap.add_argument('--kdg', type=int, default=3)
    ap.add_argument('--vdg', type=int, default=7)
    ap.add_argument('--dstride', type=int, default=4)
    ap.add_argument('--roles', type=int, default=1)
    ap.add_argument('--qe', type=ilist, default=[1, 1])
    ap.add_argument('--mid', type=mlist, default=mlist('V0,Q1/Q2,C0/Q3/K1/V1/K2,V2/K3'))
    ap.add_argument('--mid1', type=mlist, default=mlist('V0/Q1,C0/Q2/Q3,K1/V1/K2,V2/K3'))
    ap.add_argument('--bgstep', type=int, default=14)
    ap.add_argument('--carry', type=int, default=16)
    ap.add_argument('--cover', type=int, default=5)
    ap.add_argument('--hcap', type=ilist, default=[4, 3, 4])
    ap.add_argument('--fcap', type=lambda s: [float(x) for x in s.split(',')], default=[6, 6, 6])
    ap.add_argument('--fpace', type=int, default=8)
    ap.add_argument('--fpk', type=int, default=4)
    ap.add_argument('--fsd', type=int, default=24)
    ap.add_argument('--fstep', type=int, default=12)
    ap.add_argument('--fchk', type=int, default=4)
    ap.add_argument('--kvflag', type=lambda s: s.replace('+', ' ') + ' ' if s else '', default='')
    ap.add_argument('--qflag', type=lambda s: s.replace('+', ' ') + ' ' if s else '', default='')
    ap.add_argument('--oflag', type=lambda s: s.replace('+', ' '), default='nt')
    return ap.parse_args(argv)


SHORT = [('v_smfmac_f32_16x16x64_bf16', 'S'), ('v_mfma_f32_16x16x32_bf16', 'M'), ('v_exp_f32', 'e'), ('ds_read_b64_tr_b16', 't'), ('v_cvt_pk_bf16_f32', 'c'), ('ds_read_b128', 'R'), ('s_waitcnt', 'w'),
         ('v_add_f32', 'a'), ('s_add_u32', 's'), ('s_mov_b32', 's'), ('s_barrier', 'BAR'), ('v_permlane32_swap_b32', 'x'), ('v_permlane16_swap_b32', 'x'),
         ('buffer_load_dwordx4', 'D'), ('v_pk_mul_f32', 'P'), ('s_nop', 'n'), ('v_accvgpr_write_b32', 'A'), ('v_lshlrev_b32', 'l'), ('v_and_b32', '&'),
         ('v_max3_f32', 'mx'), ('v_max_f32', 'mx'), ('v_mov_b32', 'mv'), ('v_sub_f32', 'sb'), ('global_load_dwordx4', 'G'), ('v_mul_f32', 'm'),
         ('ds_write2_b64', 'W'), ('buffer_store_dwordx4', 'ST'), ('v_accvgpr_read_b32', 'acc'), ('v_cmp_ngt_f32', 'cmp'), ('v_rcp_f32', 'rcp'), ('s_cbranch_vccnz', 'br')]

if __name__ == '__main__':
    o = parse(sys.argv[1:])
    g = Gen(o)
    s, probs, parts = g.emit()
    open(o.o, 'w').write(s)
    if o.show >= 0:
        d = dict(SHORT)
        cur, k = [], -1
        for l in parts[o.show] + [MF]:
            if ismf(l):
                print('%d: %s' % (k, ' '.join(cur)))
                cur = []
                k += 1
            cur.append(d.get(l.split()[0], l.split()[0]))
    for p in probs[:40]:
        print('HAZARD', p)
    print('%d hazard findings' % len(probs))
```

```python
import sys, math, struct, argparse, re
from asmlib import I, check_trace

NAME = 'standalone__gqa_softmax__near_ridge'

V_O = 8
V_S = 136
V_C = 200
VKA = 216
VVA = 220
VDK = 228
VDV = 232
VOW = 234
VOR = 238
VOG = 240
VT = 244
VIX = 168
NP = 33
A_Q = 0
A_K = 64
A_V = 128
A_L = 192
A_1 = 208

S_Q, S_K, S_V, S_OD = 4, 8, 12, 16
S_W, S_M0K, S_M0V, S_OFFK, S_OFFV, S_CNT = 20, 21, 22, 23, 24, 25
S_C = 26
S_QOFF = 28
S_THR = 29
S_TMP = 30
S_STG = 32
S_QLDS = 33
S_TS = 40
S_OQ = 80
S_QB = 84
OPITCH = 272
V_BASE = 98304
MF = 'v_mfma_f32_16x16x32_bf16'


def f2u(x):
    return struct.unpack('<I', struct.pack('<f', x))[0]


def vr(b, n=1):
    return 'v%d' % b if n == 1 else 'v[%d:%d]' % (b, b + n - 1)


def ar(b, n=1):
    return 'a%d' % b if n == 1 else 'a[%d:%d]' % (b, b + n - 1)


def sr(b, n=1):
    return 's%d' % b if n == 1 else 's[%d:%d]' % (b, b + n - 1)


def SB(n):
    return V_S + 16 * (n & 1)


def O(qb, db):
    return V_O + 32 * qb + 4 * db


def ismf(l):
    return l.startswith(MF) or l.startswith('v_smfmac')


def ismem(l):
    return I(l).kind in ('dsr', 'dsw', 'vst', 'dma', 'vld', 'wait', 'barrier', 'sctl', 'salu', 'smem')


def cost(l):
    x = I(l)
    if x.kind == 'valu' and (x.trans or x.op.startswith('v_permlane')):
        return 2
    if x.kind == 'nop':
        return x.n
    return 1


class Gen:
    def __init__(self, opt):
        self.o = opt
        self.nts = 0

    def qk_slots(self):
        return [(kb, st if kb % 2 == 0 else 3 - st, st == 0) for kb in range(4) for st in range(4)]

    def qk_mfma(self, n, kb, st, first, czero=False):
        qb = n & 3
        d = vr(SB(n) + 4 * kb, 4)
        c = d if not first else ('0' if czero else vr(V_C + 4 * qb, 4))
        return '%s %s, %s, %s, %s' % (MF, d, ar(A_K + 16 * kb + 4 * st, 4), ar(A_Q + 16 * qb + 4 * st, 4), c)

    def qk(self, n):
        return [self.qk_mfma(n, *a) for a in self.qk_slots()]

    def pv(self, n):
        qb = n & 3
        z = n < 4
        out = ['v_smfmac_f32_16x16x64_bf16 %s, %s, %s, %s' % (ar(A_L + 4 * qb, 4), ar(A_1, 4), vr(SB(n), 8), vr(VIX))]
        for db in range(8):
            o = vr(O(qb, db), 4)
            out += ['%s %s, %s, %s, %s' % (MF, o, ar(A_V + 32 * h + 4 * db, 4), vr(SB(n) + 4 * h, 4), '0' if (z and h == 0) else o) for h in range(2)]
        return out

    def k_read(self, t, kb, st):
        return 'ds_read_b128 %s, %s offset:%d' % (ar(A_K + 16 * kb + 4 * st, 4), vr(VKA + st), (t & 3) * 16384 + kb * 4096)

    def v_read(self, t, h, db, j, addr=VVA, base=None):
        off = ((t + 1) & 3) * 16384 + h * 8192 if base is None else base
        return 'ds_read_b64_tr_b16 %s, %s offset:%d' % (ar(A_V + 32 * h + 4 * db + 2 * j, 2), vr(addr + db), off + j * 4096)

    def v_list(self, t):
        return [self.v_read(t, h, db, j) for db in range(8) for h in range(2) for j in range(2)]

    def sm_seq(self, n):
        seq = []
        for kb in range(4):
            s = SB(n) + 4 * kb
            for r in range(4):
                cv = None
                if r & 1:
                    cv = 'v_cvt_pk_bf16_f32 %s, %s, %s' % (vr(SB(n) + 2 * kb + (r >> 1)), vr(s + r - 1), vr(s + r))
                seq.append(('v_exp_f32 %s, %s' % (vr(s + r), vr(s + r)), cv))
        return seq

    def sm_stream(self, n, ready=lambda k: 0, lo=0, hi=16):
        out, pend = [], []
        for k, (ex, cv) in list(enumerate(self.sm_seq(n)))[lo:hi]:
            out.append((ready(k), ex))
            out += pend
            pend = [(ready(k), cv)] if cv else []
        return out, pend

    def dma(self, kind, i):
        o = self.o
        if kind == 'K':
            return 'buffer_load_dwordx4 %s, %s, %s offen offset:%d %slds' % (vr(VDK + i), sr(S_K, 4), sr(S_OFFK), 1024 * i, o.kvflag)
        if kind == 'V':
            return 'buffer_load_dwordx4 %s, %s, %s offen offset:%d %slds' % (vr(VDV + (i & 1)), sr(S_V, 4), sr(S_OFFV), 1024 * i, o.kvflag)
        return 'buffer_load_dwordx4 %s, %s, %s offen offset:%d %slds' % (vr(VDK + i), sr(S_Q, 4), sr(S_QOFF), 1024 * i, o.qflag)

    def m0_for(self, kind, t):
        return 's_add_u32 m0, %s, %d' % (sr(S_M0V if kind == 'V' else S_M0K), ((t + (kind == 'V')) & 3) * 16384)

    def q_pre(self, j):
        return ['s_add_u32 m0, %s, %d' % (sr(S_QLDS), 4096 * j), 's_add_u32 %s, %s, %d' % (sr(S_QOFF), sr(S_QB), 4096 * j)]

    def stamp(self, name=None):
        if not self.o.stamps or (name is not None and name not in self.o.st):
            return []
        k = self.nts
        self.nts += 1
        return ['s_memtime %s' % sr(S_TS + 4 * k, 2), 's_memrealtime %s' % sr(S_TS + 4 * k + 2, 2)]

    def pack(self, mf, streams, cap, nmem=lambda g: 2):
        out = []
        for g in range(len(mf)):
            mem, val = [], []
            c = 0
            for q in streams:
                while q and q[0][0] <= g and ismem(q[0][1]) and len(mem) < nmem(g):
                    mem.append(q.pop(0)[1])
                    c += 1
            for q in streams:
                while q and q[0][0] <= g and not ismem(q[0][1]) and c + cost(q[0][1]) <= cap(g):
                    c += cost(q[0][1])
                    val.append(q.pop(0)[1])
            out.append(mf[g])
            out += mem + val
        return out + [l for q in streams for _, l in q]

    @staticmethod
    def before(lines, items, slot, lo=0):
        ms = [i for i, l in enumerate(lines) if ismf(l)]
        head = lines[ms[lo]:ms[slot]]
        for l in items:
            assert l.startswith('s_nop') or l in head, (slot, l)

    @staticmethod
    def auto_lgkm(lines, age=16):
        out, pend = [], []
        for k, l in enumerate(lines):
            x = I(l)
            if x.kind == 'wait' and x.lgkm is not None:
                pend = pend[len(pend) - x.lgkm:] if x.lgkm else []
            touched = set(x.uses) | set(x.defs)
            idx = [i for i, (r, _, _) in enumerate(pend) if touched & set(r)]
            if idx:
                last = max(idx)
                pos = len(out)
                if x.kind == 'mfma':
                    j = len(out) - 1
                    while j >= 0 and not ismf(out[j]):
                        j -= 1
                    if j >= 0 and pend[last][2] <= j:
                        pos = j + 1
                early = [p for p in pend if p[2] < pos]
                while last + 1 < len(early) and early[last + 1][1] <= k - age:
                    last += 1
                n = min(15, len(early) - 1 - last)
                out.insert(pos, 's_waitcnt lgkmcnt(%d)' % n)
                keep = early[len(early) - n:] if n else []
                pend = keep + [(r, kk, p + 1) for r, kk, p in pend[len(early):]]
            out.append(l)
            if x.kind == 'dsr':
                pend.append((x.defs, k, len(out) - 1))
            if x.kind == 'dsw':
                pend.append(([], k, len(out) - 1))
        return out

    @staticmethod
    def fix_hazards(prefix, lines):
        lines = list(lines)
        for _ in range(300):
            pr = [p for p in check_trace(prefix + lines) if int(p.split(':')[0]) >= len(prefix)]
            if not pr:
                return lines
            p = pr[0]
            m = re.search(r'needs (\d+),? has (\d+)', p)
            assert 'pending' not in p, p
            n = int(m.group(1)) - int(m.group(2)) if m else 1
            lines.insert(int(p.split(':')[0]) - len(prefix), 's_nop %d' % (n - 1))
        raise RuntimeError('hazards keep coming')

    EG = list(range(1, 32, 2))

    def steady(self, n0, n1, vmw=8, kdma=True, vdma=True, bar=True):
        o = self.o
        mf, shadow, valu, isexp = [], [], [], []
        for n in range(n0, n1):
            mf += self.qk(n + 1) + self.pv(n)
            v = [[] for _ in range(NP)]
            seq = self.sm_seq(n)[13:] + self.sm_seq(n + 1)[:13]
            for g, (ex, cv) in zip(self.EG, seq):
                v[g].append(ex)
                if cv:
                    v[g + 1].append(cv)
            valu += v
            shadow += [[] for _ in range(NP)]
            isexp += [g in self.EG for g in range(NP)]
        N = len(mf)
        free = lambda g: 0 if isexp[g] else 2 - len(valu[g]) - len([x for x in shadow[g] if not x.startswith('s_add')])

        def put(items):
            g, dbl = 0, False
            for ready, l in items:
                g = max(g, ready)
                while free(g) < 1 or (shadow[g] and g > 0 and len(shadow[g - 1]) == 2):
                    g += 1
                shadow[g].append(l)
            return g

        def put_dma(kind, t, g, step):
            off = S_OFFV if kind == 'V' else S_OFFK
            shadow[g].append(self.m0_for(kind, t))
            g += 1
            for i in range(4):
                while free(g) < 1:
                    g += 1
                shadow[g].append(self.dma(kind, i))
                g += step
            shadow[g - step + 1].append('s_add_u32 %s, %s, 16384' % (sr(off), sr(off)))
        for n in range(n0, n1):
            b = NP * (n - n0)
            t = n >> 2
            if n & 3 == 2 and t < 15:
                if bar and not o.nobar:
                    shadow[b] += ['s_waitcnt vmcnt(%d)' % vmw, 's_barrier']
                put([(b + max(s, 1), self.k_read(t + 1, kb, st)) for s, (kb, st, _) in enumerate(self.qk_slots())])
            if n & 3 == 3 and t < 15:
                put([(b + 17 + k // 2, l) for k, l in enumerate(self.v_list(t + 1))])
                if kdma and not o.nodma:
                    put_dma('K', t + 3, b + o.kdg, o.dstride)
            if n & 3 == 1 and vdma and not o.nodma:
                put_dma('V', t + 2, b + o.vdg, o.dstride)
        out = []
        for g in range(N):
            if g % NP == 4 and not shadow[g]:
                shadow[g].append('s_nop 0')
            out.append(mf[g])
            out += shadow[g] + valu[g]
        return out

    def xlane(self, op, regs, tmps):
        L = []
        for sw in ('v_permlane32_swap_b32', 'v_permlane16_swap_b32'):
            L += ['v_mov_b32 %s, %s' % (vr(t), vr(r)) for r, t in zip(regs, tmps)]
            if len(regs) < 3:
                L.append('s_nop 1')
            L += ['%s %s, %s' % (sw, vr(r), vr(t)) for r, t in zip(regs, tmps)]
            L += ['%s %s, %s, %s' % (op, vr(r), vr(r), vr(t)) for r, t in zip(regs, tmps)]
        return L

    def common(self):
        o = self.o
        L = []
        e = L.append
        e('s_cmp_ge_u32 s2, 256')
        e('s_cbranch_scc1 L_done')
        e('s_load_dwordx8 s[88:95], s[0:1], 0')
        e('s_getpc_b64 s[34:35]')
        e('L_pc:')
        e('v_lshlrev_b32 v4, 4, v0')
        if o.roles:
            e('s_bitcmp1_b32 s2, 3')
            e('s_cselect_b32 s3, L_role1 - L_pc, 0')
            e('v_add_u32 v4, s3, v4')
        e('v_add_co_u32 v8, vcc, s34, v4')
        e('v_mov_b32 v9, s35')
        e('v_lshrrev_b32 v2, 6, v0')
        e('v_addc_co_u32 v9, vcc, 0, v9, vcc')
        e('global_load_dwordx4 %s, v[8:9], off' % vr(V_C, 4))
        if o.stamps:
            e('s_load_dwordx2 s[96:97], s[0:1], 40')
            e('s_memrealtime s[98:99]')
        L += self.stamp()
        e('v_bfe_u32 v5, v0, 4, 2')
        e('v_readfirstlane_b32 %s, v2' % sr(S_W))
        e('v_and_b32 v6, 15, v0')
        e('v_lshlrev_b32 v7, 8, v5')
        e('v_lshl_add_u32 v7, v2, 12, v7')
        e('v_xor_b32 v3, v6, v5')
        e('v_lshl_add_u32 %s, v3, 4, v7' % vr(VDK))
        for i in range(1, 4):
            e('v_xor_b32 %s, %d, %s' % (vr(VDK + i), i << 6, vr(VDK)))
        e('s_and_b32 s30, s2, 7')
        e('s_lshr_b32 s3, s2, 4')
        e('s_lshl4_add_u32 s30, s30, s3')
        e('s_bfe_u32 s31, s2, 0x10003')
        e('s_lshl1_add_u32 s31, s30, s31')
        e('s_lshl_b32 s30, s30, 18')
        e('s_lshl_b32 s31, s31, 16')
        e('s_lshl_b32 %s, %s, 12' % (sr(S_M0K), sr(S_W)))
        e('s_mul_i32 %s, %s, 12288' % (sr(S_QB), sr(S_W)))
        e('s_lshl2_add_u32 %s, %s, 0xc000' % (sr(S_QLDS), sr(S_M0K)))
        e('s_mov_b32 %s, 0' % sr(S_OFFK))
        e('s_mov_b32 s10, 0x40000')
        e('s_mov_b32 s11, 0x20000')
        e('s_mov_b32 s6, 0x10000')
        e('s_mov_b32 s7, 0x20000')
        e('s_mov_b32 m0, %s' % sr(S_M0K))
        e('s_waitcnt lgkmcnt(0)')
        L += self.stamp('karg')
        e('s_add_u32 s8, s90, s30')
        e('s_addc_u32 s9, s91, 0')
        L += [self.dma('K', i) for i in range(4)]
        e('s_add_u32 s4, s88, s31')
        e('s_addc_u32 s5, s89, 0')
        for j in range(o.qe[0]):
            if o.roles and j == o.qe[1]:
                e('s_bitcmp1_b32 s2, 3')
                e('s_cbranch_scc1 L_qskip')
            L += self.q_pre(j) + [self.dma('Q', i) for i in range(4)]
        if o.roles and o.qe[1] < o.qe[0]:
            e('L_qskip:')
        L += self.stamp('iss')
        e('v_and_b32 v1, 63, v0')
        e('s_lshr_b32 s3, s2, 3')
        e('s_lshl2_add_u32 s3, s3, %s' % sr(S_W))
        e('s_and_b32 s3, s3, 31')
        e('s_min_u32 s3, s3, (L_slow - L_pc) / 1024 - 4')
        e('s_lshl_b32 s3, s3, 10')
        e('s_add_u32 s3, s3, 4096')
        e('s_add_u32 s34, s34, s3')
        e('s_addc_u32 s35, s35, 0')
        e('v_lshlrev_b32 v3, 4, v1')
        e('v_add_co_u32 %s, vcc, s34, v3' % vr(VT + 8))
        e('v_mov_b32 %s, s35' % vr(VT + 9))
        e('s_nop 0')
        e('v_addc_co_u32 %s, vcc, 0, %s, vcc' % (vr(VT + 9), vr(VT + 9)))
        e('s_add_u32 s12, s92, s30')
        e('s_addc_u32 s13, s93, 0')
        e('s_mov_b32 s14, 0x40000')
        e('s_mov_b32 s15, 0x20000')
        e('s_add_u32 %s, %s, %d' % (sr(S_M0V), sr(S_M0K), V_BASE))
        e('v_lshlrev_b32 v3, 1, v5')
        e('v_xor_b32 v3, v6, v3')
        e('v_lshl_add_u32 %s, v3, 4, v7' % vr(VDV))
        e('v_xor_b32 %s, 0x80, %s' % (vr(VDV + 1), vr(VDV)))
        e('s_add_u32 s16, s94, s31')
        e('s_addc_u32 s17, s95, 0')
        e('s_mov_b32 s18, 0x10000')
        e('s_mov_b32 s19, 0x20000')
        e('v_xor_b32 v3, v5, v6')
        e('v_lshlrev_b32 v4, 8, v6')
        e('v_lshl_add_u32 %s, v3, 4, v4' % vr(VKA))
        for st in range(1, 4):
            e('v_xor_b32 %s, %d, %s' % (vr(VKA + st), st << 6, vr(VKA)))
        for st in range(4):
            e('v_add_u32 %s, %s, %s' % (vr(VT + st), sr(S_QLDS), vr(VKA + st)))
        c = math.log2(math.e) / math.sqrt(128.0)
        e('s_mov_b32 %s, 0x%08x' % (sr(S_C), f2u(c)))
        e('s_mov_b32 %s, 0x%08x' % (sr(S_C + 1), f2u(c)))
        e('s_mov_b32 %s, 0x%08x' % (sr(S_THR), f2u(2.0 ** o.thr)))
        e('s_mov_b32 %s, 0xffff0000' % sr(S_TMP))
        e('v_lshrrev_b32 v3, 2, v1')
        e('v_lshlrev_b32 v2, 8, v3')
        e('v_and_b32 v3, 7, v3')
        e('v_lshl_add_u32 v2, v3, 5, v2')
        e('v_and_b32 v3, 3, v1')
        e('v_lshl_add_u32 v2, v3, 3, v2')
        e('v_add_u32 %s, %d, v2' % (vr(VVA), V_BASE))
        for db in range(1, 8):
            e('v_xor_b32 %s, %d, %s' % (vr(VVA + db), db << 5, vr(VVA)))
        e('s_mul_i32 %s, %s, %d' % (sr(S_STG), sr(S_W), 4 * OPITCH * 16))
        e('v_mul_u32_u24 v3, %d, v6' % OPITCH)
        e('v_lshl_add_u32 v3, v5, 3, v3')
        e('v_add_u32 %s, %s, v3' % (vr(VOW), sr(S_STG)))
        for qb in range(1, 4):
            e('v_add_u32 %s, %d, %s' % (vr(VOW + qb), qb * OPITCH * 16, vr(VOW)))
        e('v_mul_u32_u24 v3, %d, v5' % OPITCH)
        e('v_lshl_add_u32 v3, v6, 4, v3')
        e('v_add_u32 %s, %s, v3' % (vr(VOR), sr(S_STG)))
        e('s_lshl_b32 s3, %s, 14' % sr(S_W))
        e('v_lshlrev_b32 v3, 4, v1')
        e('v_add_u32 %s, s3, v3' % vr(VOG))
        for qb in range(1, 4):
            e('s_movk_i32 %s, %d' % (sr(S_OQ + qb), 4096 * qb))
        e('v_and_b32 v3, 2, v1')
        e('v_cmp_eq_u32 vcc, 0, v3')
        e('v_mov_b32 v2, 0x3f803f80')
        e('s_mov_b32 %s, 0' % sr(S_CNT))
        e('v_cndmask_b32 v3, 0, v2, vcc')
        for j in range(4):
            e('v_accvgpr_write_b32 %s, v3' % ar(A_1 + j))
        e('v_and_b32 v3, 1, v1')
        e('v_cmp_eq_u32 vcc, 0, v3')
        e('v_mov_b32 v2, 0x44444444')
        e('v_mov_b32 v3, 0xeeeeeeee')
        e('v_cndmask_b32 %s, v3, v2, vcc' % vr(VIX))
        for j in range(16):
            e('v_accvgpr_write_b32 %s, 0' % ar(A_L + j))
        if o.roles:
            e('s_bitcmp1_b32 s2, 3')
            e('s_cbranch_scc1 L_role1')
        return L

    def dmax(self, qb):
        T = VT + 4 + 2 * (qb & 1)
        sq = SB(qb)
        D = ['v_max3_f32 %s, %s, %s, %s' % (vr(T), vr(sq), vr(sq + 1), vr(sq + 2)),
             'v_max3_f32 %s, %s, %s, %s' % (vr(T + 1), vr(sq + 4), vr(sq + 5), vr(sq + 6)),
             'v_max3_f32 %s, %s, %s, %s' % (vr(T), vr(T), vr(sq + 3), vr(sq + 7)),
             'v_max_f32 %s, %s, %s' % (vr(T), vr(T), vr(T + 1))]
        for sw in ('v_permlane32_swap_b32', 'v_permlane16_swap_b32'):
            D += ['v_mov_b32 %s, %s' % (vr(T + 1), vr(T)), 's_nop 1', '%s %s, %s' % (sw, vr(T), vr(T + 1)), 'v_max_f32 %s, %s, %s' % (vr(T), vr(T), vr(T + 1))]
        D += ['v_sub_f32 %s, 0, %s' % (vr(V_C + 4 * qb + r), vr(T)) for r in range(4)]
        return D

    def sm0(self, qb):
        out = []
        st, pend = self.sm_stream(qb)
        sub = ['v_add_f32 %s, %s, %s' % (vr(SB(qb) + r), vr(SB(qb) + r), vr(V_C + 4 * qb)) for r in range(16)]
        return sub + [l for _, l in st] + ['s_nop 0'] + [l for _, l in pend]

    def head(self, role):
        o = self.o
        mid = o.mid if role == 0 else o.mid1
        L = []
        e = L.append
        vm = ['K0'] * 4 + ['Q%d' % j for j in range(o.qe[role]) for _ in range(4)]

        def wait(*tags):
            last = max(i for i, t in enumerate(vm) if t in tags)
            e('s_waitcnt vmcnt(%d)' % (len(vm) - 1 - last))

        RAW = O(3, 0)
        TM = O(3, 4)

        def prescale(qb, st):
            b = RAW + 4 * st
            t0 = TM + 8 * (st & 1)
            P = []
            for j in range(4):
                P.append('v_lshlrev_b32 %s, 16, %s' % (vr(t0 + 2 * j), vr(b + j)))
                P.append('v_and_b32 %s, %s, %s' % (vr(t0 + 2 * j + 1), sr(S_TMP), vr(b + j)))
            P += ['v_pk_mul_f32 %s, %s, %s' % (vr(t0 + 2 * j, 2), vr(t0 + 2 * j, 2), sr(S_C, 2)) for j in range(4)]
            P += ['v_cvt_pk_bf16_f32 %s, %s, %s' % (vr(t0 + 2 * j), vr(t0 + 2 * j), vr(t0 + 2 * j + 1)) for j in range(4)]
            P += ['v_accvgpr_write_b32 %s, %s' % (ar(A_Q + 16 * qb + 4 * st + j), vr(t0 + 2 * j)) for j in range(4)]
            return P

        def dma_lines(x):
            kind, t = x[0], int(x[1:])
            if kind == 'T':
                vm.append('C')
                return [([], 'buffer_load_dword %s, %s, %s, 0 offen' % (vr(VT + 7), vr(VOG), sr(S_OD, 4)))]
            if kind == 'C':
                vm.append('C')
                return [([], 'global_load_dwordx4 %s, %s, off' % (vr(VT + 8, 4), vr(VT + 8, 2)))]
            vm.extend([x] * 4)
            if kind == 'Q':
                pre = self.q_pre(t)
            else:
                pre = ['s_mov_b32 %s, %d' % (sr(S_OFFV if kind == 'V' else S_OFFK), 16384 * t), self.m0_for(kind, t), 's_nop 0']
            return [(pre if i == 0 else [], self.dma(kind, i)) for i in range(4)]

        def background(seg, xs, start, step):
            items = [z for x in xs for z in dma_lines(x)]
            out, nxt = [], start
            for i, l in enumerate(seg):
                out.append(l)
                if items and i >= nxt and (ismf(l) or not (i + 1 < len(seg) and ismf(seg[i + 1]))):
                    pre, ld = items.pop(0)
                    out += pre + [ld]
                    nxt = i + step
            for pre, ld in items:
                out += pre + [ld]
            return out

        for x in mid[0]:
            if x[0] == 'w':
                wait(x[1:])
            else:
                for pre, ld in dma_lines(x):
                    L += pre + [ld]
        L += self.stamp('set')
        F = []
        for qb in range(4):
            if qb == 1:
                wait('Q1', 'V0')
                L += self.stamp('q1')
                e('s_barrier')
            else:
                wait('Q%d' % qb)
                L += self.stamp('q%d' % qb)
            G = ['ds_read_b128 %s, %s offset:%d' % (vr(RAW + 4 * st, 4), vr(VT + st), 4096 * qb) for st in range(4)]
            G += F
            c0 = [[self.qk_mfma(qb, kb, st, st == 0, czero=True) for kb in range(4)] for st in range(4)]
            vl = self.v_list(0) if qb == 1 else []
            for st in range(4):
                P = prescale(qb, st)
                if st and qb:
                    m = c0[st - 1]
                    P = P[:12]
                    Q = prescale(qb, st)[12:]
                    for k in range(4):
                        P += [m[k]] + vl[:2] + Q[2 * k:2 * k + 2]
                        vl = vl[2:]
                G += P
            if qb == 0:
                G.append('s_barrier')
                kr = [self.k_read(0, kb, st) for st in range(4) for kb in range(4)]
                G += kr[:12] + c0[0][:1] + kr[12:] + c0[0][1:] + c0[1] + c0[2]
            for m in c0[3]:
                G += [m] + vl[:2]
                vl = vl[2:]
            assert not vl
            if qb < 3:
                S0 = self.dmax(qb) + self.sm0(qb)
                F = S0[len(S0) - o.carry:]
                S0 = S0[:len(S0) - o.carry]
                if qb:
                    G += self.pack(self.pv(qb - 1), [[(2, l) for l in S0]], lambda g: o.hcap[2])
                else:
                    G += S0
            L += background(G, mid[qb + 1], 3, o.bgstep)
        wait('K1', 'C')
        L += self.stamp('k1')
        e('s_barrier')
        mf = self.pv(2) + self.qk(4) + self.pv(3)
        s1 = [(k // 2, self.k_read(1, kb, st)) for k, (kb, st, _) in enumerate(self.qk_slots())]
        s2 = [(1, l) for l in self.dmax(3) + self.sm0(3)]
        st4, pend = self.sm_stream(4, lambda k: 17 + 4 * (k >> 2) + 3 + 3, 0, 13)
        G = self.pack(mf, [s1, s2, st4], lambda g: o.hcap[0] if g < NP else o.hcap[1])
        self.before(G, self.sm0(3), NP)
        assert not pend
        vl = self.v_list(1)
        out, k, nm = [], 0, 0
        for l in G:
            out.append(l)
            if ismf(l):
                nm += 1
                if nm == 34:
                    out.append('WAIT_V1')
                if nm > 34 + 1 and (nm & 1) == 0:
                    out += vl[k:k + 2]
                    k += 2
        j = out.index('WAIT_V1')
        L += background(out[:j], mid[5], 12, 13)
        wait('V1')
        e('s_barrier')
        L += background(out[j + 1:], mid[6], 2, 13)
        self.v_left = vl[k:]
        kv = [x for x in vm if x[0] in 'KV']
        assert [x for x in kv if x[0] == 'K'] == [x for x in ['K0', 'K1', 'K2', 'K3'] for _ in range(4)], vm
        assert [x for x in kv if x[0] == 'V'] == [x for x in ['V0', 'V1', 'V2'] for _ in range(4)], vm
        assert vm[-4:] == ['K3'] * 4, vm
        e('s_mov_b32 %s, %d' % (sr(S_OFFK), 16384 * 4))
        e('s_mov_b32 %s, %d' % (sr(S_OFFV), 16384 * 3))
        L += self.stamp('first')
        P = self.steady(4, 6)
        out, nm, left = [], -1, list(self.v_left)
        for i, l in enumerate(P):
            out.append(l)
            if ismf(l):
                nm += 1
                if left and nm not in self.EG:
                    nx = P[i + 1]
                    take = 1 if nx.startswith('v_cvt') else 2
                    out += left[:take]
                    left = left[take:]
        assert not left
        return L + out + self.stamp('loop')

    def norm_group(self, qb, j, packed):
        rc = VT + 4 + 2 * qb
        a, b = O(qb, 2 * j), O(qb, 2 * j + 1)
        if packed:
            V = ['v_pk_mul_f32 %s, %s, %s op_sel_hi:[1,0]' % (vr(a + 2 * k, 2), vr(a + 2 * k, 2), vr(rc, 2)) for k in range(4)]
        else:
            V = ['v_mul_f32 %s, %s, %s' % (vr(a + k), vr(a + k), vr(rc)) for k in range(8)]
        V += ['v_cvt_pk_bf16_f32 %s, %s, %s' % (vr(a), vr(a), vr(a + 1)), 'v_cvt_pk_bf16_f32 %s, %s, %s' % (vr(a + 1), vr(a + 2), vr(a + 3)),
              'v_cvt_pk_bf16_f32 %s, %s, %s' % (vr(a + 2), vr(b), vr(b + 1)), 'v_cvt_pk_bf16_f32 %s, %s, %s' % (vr(a + 3), vr(b + 2), vr(b + 3))]
        return V + ['ds_write2_b64 %s, %s, %s offset0:%d offset1:%d' % (vr(VOW + qb), vr(a, 2), vr(a + 2, 2), 8 * j, 8 * j + 4)]

    def o_reads(self, qb):
        return ['ds_read_b128 %s, %s offset:%d' % (vr(O(qb, 2 * i + 1), 4), vr(VOR), OPITCH * (16 * qb + 4 * i)) for i in range(4)]

    def o_stores(self, qb):
        return ['buffer_store_dwordx4 %s, %s, %s, %s offen offset:%d %s' % (vr(O(qb, 2 * i + 1), 4), vr(VOG), sr(S_OD, 4), sr(S_OQ + qb) if qb else '0', 1024 * i, self.o.oflag[qb])
                for i in range(4)]

    def final(self):
        o = self.o
        T = VT
        mf = self.qk(62) + self.pv(61) + self.qk(63) + self.pv(62) + self.pv(63)
        N = len(mf)
        PVS = {0: -100, 1: 16, 2: 49, 3: 66}
        c61, pc = self.sm_stream(61, lambda k: 0, 13, 16)
        c61 += [(0, 's_nop 0')] + pc
        a, pa = self.sm_stream(62, lambda k: 4 * (k >> 2) + 6)
        b, pb = self.sm_stream(63, lambda k: NP + 4 * (k >> 2) + 6)
        pace = lambda st, g0: [(max(r, g0 + (o.fpace * i) // 8), l) for i, (r, l) in enumerate(st)]
        s2 = c61 + pace(a + [(0, 's_nop 0')] + pa, 6) + pace(b + [(0, 's_nop 0')] + pb, NP + 6)
        s3 = []
        for qb in range(4):
            r = max(0, PVS[qb] + o.fchk)
            s3 += [(r, 'v_accvgpr_read_b32 %s, %s' % (vr(T + qb), ar(A_L + 4 * qb))),
                   (r, 'v_accvgpr_read_b32 %s, %s' % (vr(T + 5 + 2 * qb), ar(A_L + 4 * qb + 1))),
                   (r, 'v_add_f32 %s, %s, %s' % (vr(T + qb), vr(T + qb), vr(T + 5 + 2 * qb))),
                   (r, 'v_cmp_ngt_f32 vcc, %s, %s' % (sr(S_THR), vr(T + qb))),
                   (r, 'v_rcp_f32 %s, %s' % (vr(T + 4 + 2 * qb), vr(T + qb))),
                   (r + 1, 's_cbranch_vccnz L_slow' if not o.exp else 's_nop 0')]
        s4 = []
        groups = [(qb, j) for qb in range(4) for j in range(4)]
        for n, (qb, j) in enumerate(groups):
            ready = max(PVS[qb] + 1 + 4 * j + 3 + 3, PVS[qb] + o.fchk + 3, 3)
            late = ready >= N - o.fpk
            if late:
                ready = N + 1
            s4 += [(ready, l) for l in self.norm_group(qb, j, late)]
        fc = lambda g: o.fcap[min(g // NP, 2)]
        G = self.pack(mf, [[(0, 's_barrier')], s3, s2, s4], lambda g: int(fc(g) * (g + 1)) - int(fc(g) * g), lambda g: 1)
        todo = []
        out, nw = [], 0
        since = 99
        for i, l in enumerate(G):
            out.append(l)
            if l.startswith('ds_write2'):
                nw += 1
                if nw % 4 == 0:
                    qb = nw // 4 - 1
                    todo += [(i, r) for r in self.o_reads(qb)] + [(i + o.fsd, st) for st in self.o_stores(qb)]
            since += 1
            left = any(ismf(x) for x in G[i + 1:])
            slot = (ismf(l) and not ismem(G[i + 1])) if left else not (i + 1 < len(G) and ismem(G[i + 1]))
            if slot and todo and todo[0][0] <= i:
                if todo[0][1].startswith('ds_read'):
                    out += [todo.pop(0)[1], todo.pop(0)[1]]
                elif since >= o.fstep:
                    out.append(todo.pop(0)[1])
                    since = 0
        G = out + [l for _, l in todo]
        for n, lo, slot in ((61, 0, 16), (62, 0, 49), (63, NP, 66)):
            self.before(G, [cv for _, cv in self.sm_seq(n)[13:] if cv], slot, lo)
        return G

    def plain_store(self):
        L = [l for qb in range(4) for j in range(4) for l in self.norm_group(qb, j, True)]
        for qb in range(4):
            L += self.o_reads(qb)
        L.append('s_waitcnt lgkmcnt(0)')
        for qb in range(4):
            L += self.o_stores(qb)
        return L

    def slow_path(self):
        L = []
        e = L.append
        T = VT
        M = V_C
        SK = V_S + 36
        SV = SK + 1
        SVA = SK + 4
        S = lambda qb: V_S + 8 * qb
        e('L_slow:')
        e('s_waitcnt vmcnt(0) lgkmcnt(0)')
        e('s_nop 7')
        e('v_mbcnt_lo_u32_b32 v1, -1, 0')
        e('v_mbcnt_hi_u32_b32 v1, -1, v1')
        e('v_and_b32 v2, 15, v1')
        e('v_lshrrev_b32 v3, 4, v1')
        e('v_lshlrev_b32 v2, 8, v2')
        e('v_lshl_add_u32 %s, v3, 4, v2' % vr(SK))
        e('v_subrev_u32 %s, %s, %s' % (vr(SV), sr(S_M0K), vr(VDV)))
        e('v_subrev_u32 %s, %s, %s' % (vr(SV + 1), sr(S_M0K), vr(VDV + 1)))
        e('s_sub_u32 s3, %s, %d' % (sr(S_STG), V_BASE))
        for db in range(8):
            e('v_add_u32 %s, s3, %s' % (vr(SVA + db), vr(VVA + db)))
        for i in range(128):
            e('v_mov_b32 %s, 0' % vr(V_O + i))
        for qb in range(4):
            e('v_mov_b32 %s, 0xff7fffff' % vr(M + qb))
            e('v_mov_b32 %s, 0' % vr(M + 4 + qb))
        e('s_mov_b32 %s, 0' % sr(S_CNT))
        e('L_slow_loop:')
        e('s_mov_b32 m0, %s' % sr(S_STG))
        e('s_add_u32 s31, %s, 4096' % sr(S_CNT))
        for i in range(4):
            e('buffer_load_dwordx4 %s, %s, %s offen offset:%d lds' % (vr(SV + (i & 1)), sr(S_V, 4), sr(S_CNT), 1024 * i))
        e('s_add_u32 m0, %s, 4096' % sr(S_STG))
        e('s_nop 0')
        for i in range(4):
            e('buffer_load_dwordx4 %s, %s, s31 offen offset:%d lds' % (vr(SV + (i & 1)), sr(S_V, 4), 1024 * i))
        for kb in range(2):
            for st in range(4):
                e('buffer_load_dwordx4 %s, %s, %s, %s offen offset:%d' % (ar(A_K + 16 * kb + 4 * st, 4), vr(SK), sr(S_K, 4), 's31' if kb else sr(S_CNT), 64 * st))
        e('s_waitcnt vmcnt(0)')
        for kb in range(2):
            for st in range(4):
                for qb in range(4):
                    d = vr(S(qb) + 4 * kb, 4)
                    e('%s %s, %s, %s, %s' % (MF, d, ar(A_K + 16 * kb + 4 * st, 4), ar(A_Q + 16 * qb + 4 * st, 4), d if st else '0'))
        for db in range(8):
            for j in range(2):
                e(self.v_read(0, 0, db, j, addr=SVA, base=0))
        for qb in range(4):
            s = S(qb)
            e('v_max3_f32 %s, %s, %s, %s' % (vr(T + qb), vr(M + qb), vr(s), vr(s + 1)))
            for k in range(1, 4):
                e('v_max3_f32 %s, %s, %s, %s' % (vr(T + qb), vr(T + qb), vr(s + 2 * k), vr(s + 2 * k + 1)))
        L += self.xlane('v_max_f32', [T + q for q in range(4)], [T + 4 + q for q in range(4)])
        for qb in range(4):
            e('v_sub_f32 %s, %s, %s' % (vr(M + 8 + qb), vr(M + qb), vr(T + qb)))
        for qb in range(4):
            e('v_exp_f32 %s, %s' % (vr(M + 8 + qb), vr(M + 8 + qb)))
        for qb in range(4):
            e('v_mov_b32 %s, %s' % (vr(M + qb), vr(T + qb)))
        for qb in range(4):
            s = S(qb)
            for r in range(8):
                e('v_sub_f32 %s, %s, %s' % (vr(s + r), vr(s + r), vr(T + qb)))
            for r in range(8):
                e('v_exp_f32 %s, %s' % (vr(s + r), vr(s + r)))
            e('v_mul_f32 %s, %s, %s' % (vr(M + 4 + qb), vr(M + 4 + qb), vr(M + 8 + qb)))
            for r in range(8):
                e('v_add_f32 %s, %s, %s' % (vr(M + 4 + qb), vr(M + 4 + qb), vr(s + r)))
            for j in range(4):
                e('v_cvt_pk_bf16_f32 %s, %s, %s' % (vr(s + j), vr(s + 2 * j), vr(s + 2 * j + 1)))
            for i in range(32):
                e('v_mul_f32 %s, %s, %s' % (vr(O(qb, 0) + i), vr(O(qb, 0) + i), vr(M + 8 + qb)))
        e('s_waitcnt lgkmcnt(0)')
        e('s_nop 1')
        for db in range(8):
            for qb in range(4):
                o = vr(O(qb, db), 4)
                e('%s %s, %s, %s, %s' % (MF, o, ar(A_V + 4 * db, 4), vr(S(qb), 4), o))
        e('s_nop 7')
        e('s_add_u32 %s, %s, 8192' % (sr(S_CNT), sr(S_CNT)))
        e('s_cmp_lt_u32 %s, 0x40000' % sr(S_CNT))
        e('s_cbranch_scc1 L_slow_loop')
        for qb in range(4):
            e('v_mov_b32 %s, %s' % (vr(T + qb), vr(M + 4 + qb)))
        L += self.xlane('v_add_f32', [T + q for q in range(4)], [T + 4 + q for q in range(4)])
        for qb in range(4):
            e('v_rcp_f32 %s, %s' % (vr(T + 4 + 2 * qb), vr(T + qb)))
        e('s_nop 0')
        L += self.plain_store()
        e('s_branch L_end')
        return L

    def stamps_out(self):
        if not self.o.stamps:
            return []
        L = []
        e = L.append
        L += self.stamp('stored')
        e('s_waitcnt vmcnt(0) lgkmcnt(0)')
        e('s_memrealtime s[100:101]')
        L += self.stamp()
        e('s_waitcnt lgkmcnt(0)')
        e('s_mov_b32 s84, s96')
        e('s_mov_b32 s85, s97')
        e('s_mov_b32 s86, 0x100000')
        e('s_mov_b32 s87, 0x20000')
        e('s_getreg_b32 s88, hwreg(HW_REG_XCC_ID)')
        e('s_getreg_b32 s89, hwreg(HW_REG_HW_ID)')
        e('s_lshl_b32 s3, s2, 2')
        e('s_add_u32 s3, s3, %s' % sr(S_W))
        e('s_lshl_b32 s3, s3, 8')
        e('v_mov_b32 v1, s3')
        vals = [98, 99, 100, 101, 88, 89] + [S_TS + 4 * k for k in range(10)] + [S_TS + 4 * k + 2 for k in range(10)]
        e('s_mov_b64 exec, 1')
        for k, s in enumerate(vals):
            e('v_mov_b32 v2, s%d' % s)
            e('buffer_store_dword v2, v1, s[84:87], 0 offen offset:%d' % (4 * k))
        if self.o.probe:
            a, b, wg = [int(x) for x in self.o.probe.split(',')]
            e('s_cmp_eq_u32 s2, %d' % wg)
            e('s_cbranch_scc0 L_done')
            e('s_cmp_eq_u32 %s, 0' % sr(S_W))
            e('s_cbranch_scc0 L_done')
            e('s_sub_u32 s30, s%d, s%d' % (S_TS + 4 * b + 2, S_TS + 4 * a + 2))
            e('s_mul_i32 s30, s30, 10')
            e('s_add_u32 s30, s30, 10000')
            e('L_spin:')
            e('s_sleep 1')
            e('s_memrealtime s[34:35]')
            e('s_waitcnt lgkmcnt(0)')
            e('s_sub_u32 s34, s34, s98')
            e('s_cmp_lt_u32 s34, s30')
            e('s_cbranch_scc1 L_spin')
        return L

    def build(self):
        o = self.o
        com = self.common()
        n0 = self.nts
        com1 = com
        if 'L_qskip:' in com:
            com1 = com[:com.index('s_cbranch_scc1 L_qskip') + 1] + com[com.index('L_qskip:'):]
        pro1 = []
        if o.roles:
            pro1 = ['L_role1:'] + self.fix_hazards(com1, self.auto_lgkm(self.head(1), o.hage)) + ['s_branch L_loop']
            self.nts = n0
        pro = com + self.fix_hazards(com, self.auto_lgkm(self.head(0), o.hage))
        st_a = []
        body = [self.auto_lgkm(self.steady(4 * t + 2, 4 * t + 6), o.age) for t in range(1, 5)]
        inc, cmp_ = 's_add_u32 %s, %s, 1' % (sr(S_CNT), sr(S_CNT)), 's_cmp_lt_u32 %s, 3' % sr(S_CNT)
        b = body[3]
        ms = [i for i, l in enumerate(b) if ismf(l)]
        b.insert(ms[-2] + 1, cmp_)
        assert not any(l.startswith('s_add') for l in b[ms[-2]:])
        b.insert(ms[-4] + 1, inc)
        b.append('s_cbranch_scc1 L_loop')
        st_b = self.stamp('body')
        g13 = self.auto_lgkm(self.steady(54, 58, vmw=8, kdma=False, vdma=False), o.age)
        g14 = self.steady(58, 61, vmw=0, kdma=False, vdma=False)
        st_c = self.stamp('fin')
        fin = self.fix_hazards(g13, self.auto_lgkm(g14 + st_c + self.final(), o.age))
        for pat in o.drop:
            fin = [l for l in fin if not l.startswith(pat)]
        so = self.stamps_out()
        slow = self.slow_path()

        text = pro + st_a
        if o.align:
            text.append('.p2align %d' % o.align)
        text.append('L_loop:')
        for x in body:
            text += x
        text += st_b + g13 + fin + ['L_end:'] + so + ['L_done:', 's_endpgm'] + pro1 + slow

        loop = [l for x in body for l in x]
        probs = check_trace(pro + st_a + loop * 3 + st_b + g13 + fin + so)
        if o.roles:
            probs += check_trace(com1 + pro1 + loop)
        i0 = slow.index('L_slow_loop:')
        i1 = slow.index('s_cbranch_scc1 L_slow_loop')
        for kb in [i for i, l in enumerate(fin) if 'L_slow' in l]:
            probs += check_trace(g13 + fin[:kb + 1] + slow[:i1 + 1] + slow[i0:])
        return text, probs, [pro, body[0], fin]

    def emit(self):
        text, probs, parts = self.build()
        out = []
        for l in open(self.o.ref).read().split('\n'):
            if l.startswith('; @launch'):
                out.append('; @launch grid=(256,1,1) block=(256,1,1) lds=163840')
            elif l.startswith(';'):
                out.append(l)
            else:
                break
        out += ['.amdgcn_target "amdgcn-amd-amdhsa--gfx950"', '.text', '.globl %s_kernel' % NAME, '.p2align 8',
                '.type %s_kernel,@function' % NAME, '%s_kernel:' % NAME]
        for l in text:
            out.append(l if (l.endswith(':') or l.startswith('.')) else '    ' + l)
        out += ['.section .rodata,"a"', '.p2align 6', '.amdhsa_kernel %s_kernel' % NAME,
                '  .amdhsa_next_free_vgpr 472', '  .amdhsa_next_free_sgpr 102', '  .amdhsa_accum_offset 256',
                '  .amdhsa_group_segment_fixed_size 0', '  .amdhsa_kernarg_size 48', '  .amdhsa_user_sgpr_count 2',
                '  .amdhsa_user_sgpr_kernarg_segment_ptr 1', '  .amdhsa_system_sgpr_workgroup_id_x 1',
                '  .amdhsa_float_denorm_mode_32 3', '  .amdhsa_float_denorm_mode_16_64 3',
                '.end_amdhsa_kernel', '']
        return '\n'.join(out), probs, parts


def ilist(s):
    return [int(x) for x in s.split(',')]


def mlist(s):
    return [x.split(',') if x else [] for x in s.split('/')]


def parse(argv):
    ap = argparse.ArgumentParser()
    ap.add_argument('-o', default='cdna_kernels/%s.s' % NAME)
    ap.add_argument('--ref', default='cdna_kernels/%s.s.ref' % NAME)
    ap.add_argument('--thr', type=float, default=40)
    ap.add_argument('--stamps', action='store_true')
    ap.add_argument('--st', type=lambda s: s.split(','), default=['q0', 'q3', 'k1', 'first', 'loop', 'body', 'fin', 'stored'])
    ap.add_argument('--probe', default='')
    ap.add_argument('--nodma', action='store_true')
    ap.add_argument('--nobar', action='store_true')
    ap.add_argument('--show', type=int, default=-1)
    ap.add_argument('--exp', default='')
    ap.add_argument('--drop', type=lambda s: s.split(','), default=[])
    ap.add_argument('--align', type=int, default=6)
    ap.add_argument('--age', type=int, default=12)
    ap.add_argument('--hage', type=int, default=24)
    ap.add_argument('--kdg', type=int, default=3)
    ap.add_argument('--vdg', type=int, default=7)
    ap.add_argument('--dstride', type=int, default=4)
    ap.add_argument('--roles', type=int, default=1)
    ap.add_argument('--qe', type=ilist, default=[1, 1])
    ap.add_argument('--mid', type=mlist, default=mlist('V0,Q1/Q2,C0/Q3/K1/V1/K2,V2/K3'))
    ap.add_argument('--mid1', type=mlist, default=mlist('V0/Q1,C0/Q2/Q3,K1/V1/K2,V2/K3'))
    ap.add_argument('--bgstep', type=int, default=14)
    ap.add_argument('--carry', type=int, default=16)
    ap.add_argument('--cover', type=int, default=5)
    ap.add_argument('--hcap', type=ilist, default=[4, 3, 4])
    ap.add_argument('--fcap', type=lambda s: [float(x) for x in s.split(',')], default=[6, 6, 6])
    ap.add_argument('--fpace', type=int, default=8)
    ap.add_argument('--fpk', type=int, default=4)
    ap.add_argument('--fsd', type=int, default=24)
    ap.add_argument('--fstep', type=int, default=12)
    ap.add_argument('--fchk', type=int, default=4)
    ap.add_argument('--kvflag', type=lambda s: s.replace('+', ' ') + ' ' if s else '', default='')
    ap.add_argument('--qflag', type=lambda s: s.replace('+', ' ') + ' ' if s else '', default='')
    ap.add_argument('--oflag', type=lambda s: ([x.replace('+', ' ') for x in s.split(',')] * 4)[:4], default=['nt'] * 4)
    return ap.parse_args(argv)


SHORT = [('v_smfmac_f32_16x16x64_bf16', 'S'), ('v_mfma_f32_16x16x32_bf16', 'M'), ('v_exp_f32', 'e'), ('ds_read_b64_tr_b16', 't'), ('v_cvt_pk_bf16_f32', 'c'), ('ds_read_b128', 'R'), ('s_waitcnt', 'w'),
         ('v_add_f32', 'a'), ('s_add_u32', 's'), ('s_mov_b32', 's'), ('s_barrier', 'BAR'), ('v_permlane32_swap_b32', 'x'), ('v_permlane16_swap_b32', 'x'),
         ('buffer_load_dwordx4', 'D'), ('v_pk_mul_f32', 'P'), ('s_nop', 'n'), ('v_accvgpr_write_b32', 'A'), ('v_lshlrev_b32', 'l'), ('v_and_b32', '&'),
         ('v_max3_f32', 'mx'), ('v_max_f32', 'mx'), ('v_mov_b32', 'mv'), ('v_sub_f32', 'sb'), ('global_load_dwordx4', 'G'), ('v_mul_f32', 'm'),
         ('ds_write2_b64', 'W'), ('buffer_store_dwordx4', 'ST'), ('v_accvgpr_read_b32', 'acc'), ('v_cmp_ngt_f32', 'cmp'), ('v_rcp_f32', 'rcp'), ('s_cbranch_vccnz', 'br')]

if __name__ == '__main__':
    o = parse(sys.argv[1:])
    g = Gen(o)
    s, probs, parts = g.emit()
    open(o.o, 'w').write(s)
    if o.show >= 0:
        d = dict(SHORT)
        cur, k = [], -1
        for l in parts[o.show] + [MF]:
            if ismf(l):
                print('%d: %s' % (k, ' '.join(cur)))
                cur = []
                k += 1
            cur.append(d.get(l.split()[0], l.split()[0]))
    for p in probs[:40]:
        print('HAZARD', p)
    print('%d hazard findings' % len(probs))
```

```python
import sys, math, struct, argparse, re
from asmlib import I, check_trace

NAME = 'standalone__gqa_softmax__near_ridge'

V_O = 8
V_S = 136
V_C = 200
VKA = 216
VVA = 220
VDK = 228
VDV = 232
VOW = 234
VOR = 238
VOG = 240
VT = 244
VIX = 168
NP = 33
A_Q = 0
A_K = 64
A_V = 128
A_L = 192
A_1 = 208

S_Q, S_K, S_V, S_OD = 4, 8, 12, 16
S_W, S_M0K, S_M0V, S_OFFK, S_OFFV, S_CNT = 20, 21, 22, 23, 24, 25
S_C = 26
S_QOFF = 28
S_THR = 29
S_TMP = 30
S_STG = 32
S_QLDS = 33
S_TS = 40
S_OQ = 80
S_QB = 84
OPITCH = 272
V_BASE = 98304
MF = 'v_mfma_f32_16x16x32_bf16'


def f2u(x):
    return struct.unpack('<I', struct.pack('<f', x))[0]


def vr(b, n=1):
    return 'v%d' % b if n == 1 else 'v[%d:%d]' % (b, b + n - 1)


def ar(b, n=1):
    return 'a%d' % b if n == 1 else 'a[%d:%d]' % (b, b + n - 1)


def sr(b, n=1):
    return 's%d' % b if n == 1 else 's[%d:%d]' % (b, b + n - 1)


def SB(n):
    return V_S + 16 * (n & 1)


def O(qb, db):
    return V_O + 32 * qb + 4 * db


def ismf(l):
    return l.startswith(MF) or l.startswith('v_smfmac')


def ismem(l):
    return I(l).kind in ('dsr', 'dsw', 'vst', 'dma', 'vld', 'wait', 'barrier', 'sctl', 'salu', 'smem')


def cost(l):
    x = I(l)
    if x.kind == 'valu' and (x.trans or x.op.startswith('v_permlane')):
        return 2
    if x.kind == 'nop':
        return x.n
    return 1


class Gen:
    def __init__(self, opt):
        self.o = opt
        self.nts = 0

    def qk_slots(self):
        return [(kb, st if kb % 2 == 0 else 3 - st, st == 0) for kb in range(4) for st in range(4)]

    def qk_mfma(self, n, kb, st, first, czero=False):
        qb = n & 3
        d = vr(SB(n) + 4 * kb, 4)
        c = d if not first else ('0' if czero else vr(V_C + 4 * qb, 4))
        return '%s %s, %s, %s, %s' % (MF, d, ar(A_K + 16 * kb + 4 * st, 4), ar(A_Q + 16 * qb + 4 * st, 4), c)

    def qk(self, n):
        return [self.qk_mfma(n, *a) for a in self.qk_slots()]

    def pv(self, n):
        qb = n & 3
        z = n < 4
        out = ['v_smfmac_f32_16x16x64_bf16 %s, %s, %s, %s' % (ar(A_L + 4 * qb, 4), ar(A_1, 4), vr(SB(n), 8), vr(VIX))]
        for db in range(8):
            o = vr(O(qb, db), 4)
            out += ['%s %s, %s, %s, %s' % (MF, o, ar(A_V + 32 * h + 4 * db, 4), vr(SB(n) + 4 * h, 4), '0' if (z and h == 0) else o) for h in range(2)]
        return out

    def k_read(self, t, kb, st):
        return 'ds_read_b128 %s, %s offset:%d' % (ar(A_K + 16 * kb + 4 * st, 4), vr(VKA + st), (t & 3) * 16384 + kb * 4096)

    def v_read(self, t, h, db, j, addr=VVA, base=None):
        off = ((t + 1) & 3) * 16384 + h * 8192 if base is None else base
        return 'ds_read_b64_tr_b16 %s, %s offset:%d' % (ar(A_V + 32 * h + 4 * db + 2 * j, 2), vr(addr + db), off + j * 4096)

    def v_list(self, t):
        return [self.v_read(t, h, db, j) for db in range(8) for h in range(2) for j in range(2)]

    def sm_seq(self, n):
        seq = []
        for kb in range(4):
            s = SB(n) + 4 * kb
            for r in range(4):
                cv = None
                if r & 1:
                    cv = 'v_cvt_pk_bf16_f32 %s, %s, %s' % (vr(SB(n) + 2 * kb + (r >> 1)), vr(s + r - 1), vr(s + r))
                seq.append(('v_exp_f32 %s, %s' % (vr(s + r), vr(s + r)), cv))
        return seq

    def sm_stream(self, n, ready=lambda k: 0, lo=0, hi=16):
        out, pend = [], []
        for k, (ex, cv) in list(enumerate(self.sm_seq(n)))[lo:hi]:
            out.append((ready(k), ex))
            out += pend
            pend = [(ready(k), cv)] if cv else []
        return out, pend

    def dma(self, kind, i):
        o = self.o
        if kind == 'K':
            return 'buffer_load_dwordx4 %s, %s, %s offen offset:%d %slds' % (vr(VDK + i), sr(S_K, 4), sr(S_OFFK), 1024 * i, o.kvflag)
        if kind == 'V':
            return 'buffer_load_dwordx4 %s, %s, %s offen offset:%d %slds' % (vr(VDV + (i & 1)), sr(S_V, 4), sr(S_OFFV), 1024 * i, o.kvflag)
        return 'buffer_load_dwordx4 %s, %s, %s offen offset:%d %slds' % (vr(VDK + i), sr(S_Q, 4), sr(S_QOFF), 1024 * i, o.qflag)

    def m0_for(self, kind, t):
        return 's_add_u32 m0, %s, %d' % (sr(S_M0V if kind == 'V' else S_M0K), ((t + (kind == 'V')) & 3) * 16384)

    def q_pre(self, j):
        return ['s_add_u32 m0, %s, %d' % (sr(S_QLDS), 4096 * j), 's_add_u32 %s, %s, %d' % (sr(S_QOFF), sr(S_QB), 4096 * j)]

    def stamp(self, name=None):
        if not self.o.stamps or (name is not None and name not in self.o.st):
            return []
        k = self.nts
        self.nts += 1
        return ['s_memtime %s' % sr(S_TS + 4 * k, 2), 's_memrealtime %s' % sr(S_TS + 4 * k + 2, 2)]

    def pack(self, mf, streams, cap, nmem=lambda g: 2):
        out = []
        for g in range(len(mf)):
            mem, val = [], []
            c = 0
            for q in streams:
                while q and q[0][0] <= g and ismem(q[0][1]) and len(mem) < nmem(g):
                    mem.append(q.pop(0)[1])
                    c += 1
            for q in streams:
                while q and q[0][0] <= g and not ismem(q[0][1]) and c + cost(q[0][1]) <= cap(g):
                    c += cost(q[0][1])
                    val.append(q.pop(0)[1])
            out.append(mf[g])
            out += mem + val
        return out + [l for q in streams for _, l in q]

    @staticmethod
    def before(lines, items, slot, lo=0):
        ms = [i for i, l in enumerate(lines) if ismf(l)]
        head = lines[ms[lo]:ms[slot]]
        for l in items:
            assert l.startswith('s_nop') or l in head, (slot, l)

    @staticmethod
    def auto_lgkm(lines, age=16):
        out, pend = [], []
        for k, l in enumerate(lines):
            x = I(l)
            if x.kind == 'wait' and x.lgkm is not None:
                pend = pend[len(pend) - x.lgkm:] if x.lgkm else []
            touched = set(x.uses) | set(x.defs)
            idx = [i for i, (r, _, _) in enumerate(pend) if touched & set(r)]
            if idx:
                last = max(idx)
                pos = len(out)
                if x.kind == 'mfma':
                    j = len(out) - 1
                    while j >= 0 and not ismf(out[j]):
                        j -= 1
                    if j >= 0 and pend[last][2] <= j:
                        pos = j + 1
                early = [p for p in pend if p[2] < pos]
                while last + 1 < len(early) and early[last + 1][1] <= k - age:
                    last += 1
                n = min(15, len(early) - 1 - last)
                out.insert(pos, 's_waitcnt lgkmcnt(%d)' % n)
                keep = early[len(early) - n:] if n else []
                pend = keep + [(r, kk, p + 1) for r, kk, p in pend[len(early):]]
            out.append(l)
            if x.kind == 'dsr':
                pend.append((x.defs, k, len(out) - 1))
            if x.kind == 'dsw':
                pend.append(([], k, len(out) - 1))
        return out

    @staticmethod
    def fix_hazards(prefix, lines):
        lines = list(lines)
        for _ in range(300):
            pr = [p for p in check_trace(prefix + lines) if int(p.split(':')[0]) >= len(prefix)]
            if not pr:
                return lines
            p = pr[0]
            m = re.search(r'needs (\d+),? has (\d+)', p)
            assert 'pending' not in p, p
            n = int(m.group(1)) - int(m.group(2)) if m else 1
            lines.insert(int(p.split(':')[0]) - len(prefix), 's_nop %d' % (n - 1))
        raise RuntimeError('hazards keep coming')

    EG = list(range(1, 32, 2))

    def steady(self, n0, n1, vmw=8, kdma=True, vdma=True, bar=True):
        o = self.o
        mf, shadow, valu, isexp = [], [], [], []
        for n in range(n0, n1):
            mf += self.qk(n + 1) + self.pv(n)
            v = [[] for _ in range(NP)]
            seq = self.sm_seq(n)[13:] + self.sm_seq(n + 1)[:13]
            for g, (ex, cv) in zip(self.EG, seq):
                v[g].append(ex)
                if cv:
                    v[g + 1].append(cv)
            valu += v
            shadow += [[] for _ in range(NP)]
            isexp += [g in self.EG for g in range(NP)]
        N = len(mf)
        free = lambda g: 0 if isexp[g] else 2 - len(valu[g]) - len([x for x in shadow[g] if not x.startswith('s_add')])

        def put(items):
            g, dbl = 0, False
            for ready, l in items:
                g = max(g, ready)
                while free(g) < 1 or (shadow[g] and g > 0 and len(shadow[g - 1]) == 2):
                    g += 1
                shadow[g].append(l)
            return g

        def put_dma(kind, t, g, step):
            off = S_OFFV if kind == 'V' else S_OFFK
            shadow[g].append(self.m0_for(kind, t))
            g += 1
            for i in range(4):
                while free(g) < 1:
                    g += 1
                shadow[g].append(self.dma(kind, i))
                g += step
            shadow[g - step + 1].append('s_add_u32 %s, %s, 16384' % (sr(off), sr(off)))
        for n in range(n0, n1):
            b = NP * (n - n0)
            t = n >> 2
            if n & 3 == 2 and t < 15:
                if bar and not o.nobar:
                    shadow[b] += ['s_waitcnt vmcnt(%d)' % vmw, 's_barrier']
                put([(b + max(s, 1), self.k_read(t + 1, kb, st)) for s, (kb, st, _) in enumerate(self.qk_slots())])
            if n & 3 == 3 and t < 15:
                put([(b + 17 + k // 2, l) for k, l in enumerate(self.v_list(t + 1))])
                if kdma and not o.nodma:
                    put_dma('K', t + 3, b + o.kdg, o.dstride)
            if n & 3 == 1 and vdma and not o.nodma:
                put_dma('V', t + 2, b + o.vdg, o.dstride)
        out = []
        for g in range(N):
            if g % NP == 4 and not shadow[g]:
                shadow[g].append('s_nop 0')
            out.append(mf[g])
            out += shadow[g] + valu[g]
        return out

    def xlane(self, op, regs, tmps):
        L = []
        for sw in ('v_permlane32_swap_b32', 'v_permlane16_swap_b32'):
            L += ['v_mov_b32 %s, %s' % (vr(t), vr(r)) for r, t in zip(regs, tmps)]
            if len(regs) < 3:
                L.append('s_nop 1')
            L += ['%s %s, %s' % (sw, vr(r), vr(t)) for r, t in zip(regs, tmps)]
            L += ['%s %s, %s, %s' % (op, vr(r), vr(r), vr(t)) for r, t in zip(regs, tmps)]
        return L

    def common(self):
        o = self.o
        L = []
        e = L.append
        e('s_cmp_ge_u32 s2, 256')
        e('s_cbranch_scc1 L_done')
        e('s_load_dwordx8 s[88:95], s[0:1], 0')
        e('s_getpc_b64 s[34:35]')
        e('L_pc:')
        e('v_lshlrev_b32 v4, 4, v0')
        if o.roles:
            e('s_bitcmp1_b32 s2, 3')
            e('s_cselect_b32 s3, L_role1 - L_pc, 0')
            e('v_add_u32 v4, s3, v4')
        e('v_add_co_u32 v8, vcc, s34, v4')
        e('v_mov_b32 v9, s35')
        e('v_lshrrev_b32 v2, 6, v0')
        e('v_addc_co_u32 v9, vcc, 0, v9, vcc')
        e('global_load_dwordx4 %s, v[8:9], off' % vr(V_C, 4))
        if o.stamps:
            e('s_load_dwordx2 s[96:97], s[0:1], 40')
            e('s_memrealtime s[98:99]')
        L += self.stamp()
        e('v_bfe_u32 v5, v0, 4, 2')
        e('v_readfirstlane_b32 %s, v2' % sr(S_W))
        e('v_and_b32 v6, 15, v0')
        e('v_lshlrev_b32 v7, 8, v5')
        e('v_lshl_add_u32 v7, v2, 12, v7')
        e('v_xor_b32 v3, v6, v5')
        e('v_lshl_add_u32 %s, v3, 4, v7' % vr(VDK))
        for i in range(1, 4):
            e('v_xor_b32 %s, %d, %s' % (vr(VDK + i), i << 6, vr(VDK)))
        e('s_and_b32 s30, s2, 7')
        e('s_lshr_b32 s3, s2, 4')
        e('s_lshl4_add_u32 s30, s30, s3')
        e('s_bfe_u32 s31, s2, 0x10003')
        e('s_lshl1_add_u32 s31, s30, s31')
        e('s_lshl_b32 s30, s30, 18')
        e('s_lshl_b32 s31, s31, 16')
        e('s_lshl_b32 %s, %s, 12' % (sr(S_M0K), sr(S_W)))
        e('s_mul_i32 %s, %s, 12288' % (sr(S_QB), sr(S_W)))
        e('s_lshl2_add_u32 %s, %s, 0xc000' % (sr(S_QLDS), sr(S_M0K)))
        e('s_mov_b32 %s, 0' % sr(S_OFFK))
        e('s_mov_b32 s10, 0x40000')
        e('s_mov_b32 s11, 0x20000')
        e('s_mov_b32 s6, 0x10000')
        e('s_mov_b32 s7, 0x20000')
        e('s_mov_b32 m0, %s' % sr(S_M0K))
        e('s_waitcnt lgkmcnt(0)')
        L += self.stamp('karg')
        e('s_add_u32 s8, s90, s30')
        e('s_addc_u32 s9, s91, 0')
        L += [self.dma('K', i) for i in range(4)]
        e('s_add_u32 s4, s88, s31')
        e('s_addc_u32 s5, s89, 0')
        for j in range(o.qe[0]):
            if o.roles and j == o.qe[1]:
                e('s_bitcmp1_b32 s2, 3')
                e('s_cbranch_scc1 L_qskip')
            L += self.q_pre(j) + [self.dma('Q', i) for i in range(4)]
        if o.roles and o.qe[1] < o.qe[0]:
            e('L_qskip:')
        L += self.stamp('iss')
        e('v_and_b32 v1, 63, v0')
        e('s_lshr_b32 s3, s2, 3')
        e('s_lshl2_add_u32 s3, s3, %s' % sr(S_W))
        e('s_and_b32 s3, s3, 31')
        e('s_min_u32 s3, s3, (L_slow - L_pc) / 1024 - 4')
        e('s_lshl_b32 s3, s3, 10')
        e('s_add_u32 s3, s3, 4096')
        e('s_add_u32 s34, s34, s3')
        e('s_addc_u32 s35, s35, 0')
        e('v_lshlrev_b32 v3, 4, v1')
        e('v_add_co_u32 %s, vcc, s34, v3' % vr(VT + 8))
        e('v_mov_b32 %s, s35' % vr(VT + 9))
        e('s_nop 0')
        e('v_addc_co_u32 %s, vcc, 0, %s, vcc' % (vr(VT + 9), vr(VT + 9)))
        e('s_add_u32 s12, s92, s30')
        e('s_addc_u32 s13, s93, 0')
        e('s_mov_b32 s14, 0x40000')
        e('s_mov_b32 s15, 0x20000')
        e('s_add_u32 %s, %s, %d' % (sr(S_M0V), sr(S_M0K), V_BASE))
        e('v_lshlrev_b32 v3, 1, v5')
        e('v_xor_b32 v3, v6, v3')
        e('v_lshl_add_u32 %s, v3, 4, v7' % vr(VDV))
        e('v_xor_b32 %s, 0x80, %s' % (vr(VDV + 1), vr(VDV)))
        e('s_add_u32 s16, s94, s31')
        e('s_addc_u32 s17, s95, 0')
        e('s_mov_b32 s18, 0x10000')
        e('s_mov_b32 s19, 0x20000')
        e('v_xor_b32 v3, v5, v6')
        e('v_lshlrev_b32 v4, 8, v6')
        e('v_lshl_add_u32 %s, v3, 4, v4' % vr(VKA))
        for st in range(1, 4):
            e('v_xor_b32 %s, %d, %s' % (vr(VKA + st), st << 6, vr(VKA)))
        for st in range(4):
            e('v_add_u32 %s, %s, %s' % (vr(VT + st), sr(S_QLDS), vr(VKA + st)))
        c = math.log2(math.e) / math.sqrt(128.0)
        e('s_mov_b32 %s, 0x%08x' % (sr(S_C), f2u(c)))
        e('s_mov_b32 %s, 0x%08x' % (sr(S_C + 1), f2u(c)))
        e('s_mov_b32 %s, 0x%08x' % (sr(S_THR), f2u(2.0 ** o.thr)))
        e('s_mov_b32 %s, 0xffff0000' % sr(S_TMP))
        e('v_lshrrev_b32 v3, 2, v1')
        e('v_lshlrev_b32 v2, 8, v3')
        e('v_and_b32 v3, 7, v3')
        e('v_lshl_add_u32 v2, v3, 5, v2')
        e('v_and_b32 v3, 3, v1')
        e('v_lshl_add_u32 v2, v3, 3, v2')
        e('v_add_u32 %s, %d, v2' % (vr(VVA), V_BASE))
        for db in range(1, 8):
            e('v_xor_b32 %s, %d, %s' % (vr(VVA + db), db << 5, vr(VVA)))
        e('s_mul_i32 %s, %s, %d' % (sr(S_STG), sr(S_W), 4 * OPITCH * 16))
        e('v_mul_u32_u24 v3, %d, v6' % OPITCH)
        e('v_lshl_add_u32 v3, v5, 3, v3')
        e('v_add_u32 %s, %s, v3' % (vr(VOW), sr(S_STG)))
        for qb in range(1, 4):
            e('v_add_u32 %s, %d, %s' % (vr(VOW + qb), qb * OPITCH * 16, vr(VOW)))
        e('v_lshrrev_b32 v2, 3, v1')
        e('v_and_b32 v4, 7, v1')
        e('v_mul_u32_u24 v3, %d, v2' % OPITCH)
        e('v_lshl_add_u32 v3, v4, 4, v3')
        e('v_add_u32 %s, %s, v3' % (vr(VOR), sr(S_STG)))
        e('s_lshl_b32 s3, %s, 14' % sr(S_W))
        e('v_lshlrev_b32 v3, 8, v2')
        e('v_lshl_add_u32 v3, v4, 4, v3')
        e('v_add_u32 %s, s3, v3' % vr(VOG))
        for qb in range(1, 4):
            e('s_movk_i32 %s, %d' % (sr(S_OQ + qb), 4096 * qb))
        e('v_and_b32 v3, 2, v1')
        e('v_cmp_eq_u32 vcc, 0, v3')
        e('v_mov_b32 v2, 0x3f803f80')
        e('s_mov_b32 %s, 0' % sr(S_CNT))
        e('v_cndmask_b32 v3, 0, v2, vcc')
        for j in range(4):
            e('v_accvgpr_write_b32 %s, v3' % ar(A_1 + j))
        e('v_and_b32 v3, 1, v1')
        e('v_cmp_eq_u32 vcc, 0, v3')
        e('v_mov_b32 v2, 0x44444444')
        e('v_mov_b32 v3, 0xeeeeeeee')
        e('v_cndmask_b32 %s, v3, v2, vcc' % vr(VIX))
        for j in range(16):
            e('v_accvgpr_write_b32 %s, 0' % ar(A_L + j))
        if o.roles:
            e('s_bitcmp1_b32 s2, 3')
            e('s_cbranch_scc1 L_role1')
        return L

    def dmax(self, qb):
        T = VT + 4 + 2 * (qb & 1)
        sq = SB(qb)
        D = ['v_max3_f32 %s, %s, %s, %s' % (vr(T), vr(sq), vr(sq + 1), vr(sq + 2)),
             'v_max3_f32 %s, %s, %s, %s' % (vr(T + 1), vr(sq + 4), vr(sq + 5), vr(sq + 6)),
             'v_max3_f32 %s, %s, %s, %s' % (vr(T), vr(T), vr(sq + 3), vr(sq + 7)),
             'v_max_f32 %s, %s, %s' % (vr(T), vr(T), vr(T + 1))]
        for sw in ('v_permlane32_swap_b32', 'v_permlane16_swap_b32'):
            D += ['v_mov_b32 %s, %s' % (vr(T + 1), vr(T)), 's_nop 1', '%s %s, %s' % (sw, vr(T), vr(T + 1)), 'v_max_f32 %s, %s, %s' % (vr(T), vr(T), vr(T + 1))]
        D += ['v_sub_f32 %s, 0, %s' % (vr(V_C + 4 * qb + r), vr(T)) for r in range(4)]
        return D

    def sm0(self, qb):
        out = []
        st, pend = self.sm_stream(qb)
        sub = ['v_add_f32 %s, %s, %s' % (vr(SB(qb) + r), vr(SB(qb) + r), vr(V_C + 4 * qb)) for r in range(16)]
        return sub + [l for _, l in st] + ['s_nop 0'] + [l for _, l in pend]

    def head(self, role):
        o = self.o
        mid = o.mid if role == 0 else o.mid1
        L = []
        e = L.append
        vm = ['K0'] * 4 + ['Q%d' % j for j in range(o.qe[role]) for _ in range(4)]

        def wait(*tags):
            last = max(i for i, t in enumerate(vm) if t in tags)
            e('s_waitcnt vmcnt(%d)' % (len(vm) - 1 - last))

        RAW = O(3, 0)
        TM = O(3, 4)

        def prescale(qb, st):
            b = RAW + 4 * st
            t0 = TM + 8 * (st & 1)
            P = []
            for j in range(4):
                P.append('v_lshlrev_b32 %s, 16, %s' % (vr(t0 + 2 * j), vr(b + j)))
                P.append('v_and_b32 %s, %s, %s' % (vr(t0 + 2 * j + 1), sr(S_TMP), vr(b + j)))
            P += ['v_pk_mul_f32 %s, %s, %s' % (vr(t0 + 2 * j, 2), vr(t0 + 2 * j, 2), sr(S_C, 2)) for j in range(4)]
            P += ['v_cvt_pk_bf16_f32 %s, %s, %s' % (vr(t0 + 2 * j), vr(t0 + 2 * j), vr(t0 + 2 * j + 1)) for j in range(4)]
            P += ['v_accvgpr_write_b32 %s, %s' % (ar(A_Q + 16 * qb + 4 * st + j), vr(t0 + 2 * j)) for j in range(4)]
            return P

        def dma_lines(x):
            kind, t = x[0], int(x[1:])
            if kind == 'T':
                vm.append('C')
                return [([], 'buffer_load_dword %s, %s, %s, 0 offen' % (vr(VT + 7), vr(VOG), sr(S_OD, 4)))]
            if kind == 'C':
                vm.append('C')
                return [([], 'global_load_dwordx4 %s, %s, off' % (vr(VT + 8, 4), vr(VT + 8, 2)))]
            vm.extend([x] * 4)
            if kind == 'Q':
                pre = self.q_pre(t)
            else:
                pre = ['s_mov_b32 %s, %d' % (sr(S_OFFV if kind == 'V' else S_OFFK), 16384 * t), self.m0_for(kind, t), 's_nop 0']
            return [(pre if i == 0 else [], self.dma(kind, i)) for i in range(4)]

        def background(seg, xs, start, step):
            items = [z for x in xs for z in dma_lines(x)]
            out, nxt = [], start
            for i, l in enumerate(seg):
                out.append(l)
                if items and i >= nxt and (ismf(l) or not (i + 1 < len(seg) and ismf(seg[i + 1]))):
                    pre, ld = items.pop(0)
                    out += pre + [ld]
                    nxt = i + step
            for pre, ld in items:
                out += pre + [ld]
            return out

        for x in mid[0]:
            if x[0] == 'w':
                wait(x[1:])
            else:
                for pre, ld in dma_lines(x):
                    L += pre + [ld]
        L += self.stamp('set')
        F = []
        for qb in range(4):
            if qb == 1:
                wait('Q1', 'V0')
                L += self.stamp('q1')
                e('s_barrier')
            else:
                wait('Q%d' % qb)
                L += self.stamp('q%d' % qb)
            G = ['ds_read_b128 %s, %s offset:%d' % (vr(RAW + 4 * st, 4), vr(VT + st), 4096 * qb) for st in range(4)]
            G += F
            c0 = [[self.qk_mfma(qb, kb, st, st == 0, czero=True) for kb in range(4)] for st in range(4)]
            vl = self.v_list(0) if qb == 1 else []
            for st in range(4):
                P = prescale(qb, st)
                if st and qb:
                    m = c0[st - 1]
                    P = P[:12]
                    Q = prescale(qb, st)[12:]
                    for k in range(4):
                        P += [m[k]] + vl[:2] + Q[2 * k:2 * k + 2]
                        vl = vl[2:]
                G += P
            if qb == 0:
                G.append('s_barrier')
                kr = [self.k_read(0, kb, st) for st in range(4) for kb in range(4)]
                G += kr[:12] + c0[0][:1] + kr[12:] + c0[0][1:] + c0[1] + c0[2]
            for m in c0[3]:
                G += [m] + vl[:2]
                vl = vl[2:]
            assert not vl
            if qb < 3:
                S0 = self.dmax(qb) + self.sm0(qb)
                F = S0[len(S0) - o.carry:]
                S0 = S0[:len(S0) - o.carry]
                if qb:
                    G += self.pack(self.pv(qb - 1), [[(2, l) for l in S0]], lambda g: o.hcap[2])
                else:
                    G += S0
            L += background(G, mid[qb + 1], 3, o.bgstep)
        wait('K1', 'C')
        L += self.stamp('k1')
        e('s_barrier')
        mf = self.pv(2) + self.qk(4) + self.pv(3)
        s1 = [(k // 2, self.k_read(1, kb, st)) for k, (kb, st, _) in enumerate(self.qk_slots())]
        s2 = [(1, l) for l in self.dmax(3) + self.sm0(3)]
        st4, pend = self.sm_stream(4, lambda k: 17 + 4 * (k >> 2) + 3 + 3, 0, 13)
        G = self.pack(mf, [s1, s2, st4], lambda g: o.hcap[0] if g < NP else o.hcap[1])
        self.before(G, self.sm0(3), NP)
        assert not pend
        vl = self.v_list(1)
        out, k, nm = [], 0, 0
        for l in G:
            out.append(l)
            if ismf(l):
                nm += 1
                if nm == 34:
                    out.append('WAIT_V1')
                if nm > 34 + 1 and (nm & 1) == 0:
                    out += vl[k:k + 2]
                    k += 2
        j = out.index('WAIT_V1')
        L += background(out[:j], mid[5], 12, 13)
        wait('V1')
        e('s_barrier')
        L += background(out[j + 1:], mid[6], 2, 13)
        self.v_left = vl[k:]
        kv = [x for x in vm if x[0] in 'KV']
        assert [x for x in kv if x[0] == 'K'] == [x for x in ['K0', 'K1', 'K2', 'K3'] for _ in range(4)], vm
        assert [x for x in kv if x[0] == 'V'] == [x for x in ['V0', 'V1', 'V2'] for _ in range(4)], vm
        assert vm[-4:] == ['K3'] * 4, vm
        e('s_mov_b32 %s, %d' % (sr(S_OFFK), 16384 * 4))
        e('s_mov_b32 %s, %d' % (sr(S_OFFV), 16384 * 3))
        L += self.stamp('first')
        P = self.steady(4, 6)
        out, nm, left = [], -1, list(self.v_left)
        for i, l in enumerate(P):
            out.append(l)
            if ismf(l):
                nm += 1
                if left and nm not in self.EG:
                    nx = P[i + 1]
                    take = 1 if nx.startswith('v_cvt') else 2
                    out += left[:take]
                    left = left[take:]
        assert not left
        return L + out + self.stamp('loop')

    def norm_group(self, qb, j, packed):
        rc = VT + 4 + 2 * qb
        a, b = O(qb, 2 * j), O(qb, 2 * j + 1)
        if packed:
            V = ['v_pk_mul_f32 %s, %s, %s op_sel_hi:[1,0]' % (vr(a + 2 * k, 2), vr(a + 2 * k, 2), vr(rc, 2)) for k in range(4)]
        else:
            V = ['v_mul_f32 %s, %s, %s' % (vr(a + k), vr(a + k), vr(rc)) for k in range(8)]
        V += ['v_cvt_pk_bf16_f32 %s, %s, %s' % (vr(a), vr(a), vr(a + 1)), 'v_cvt_pk_bf16_f32 %s, %s, %s' % (vr(a + 1), vr(a + 2), vr(a + 3)),
              'v_cvt_pk_bf16_f32 %s, %s, %s' % (vr(a + 2), vr(b), vr(b + 1)), 'v_cvt_pk_bf16_f32 %s, %s, %s' % (vr(a + 3), vr(b + 2), vr(b + 3))]
        return V + ['ds_write2_b64 %s, %s, %s offset0:%d offset1:%d' % (vr(VOW + qb), vr(a, 2), vr(a + 2, 2), 8 * j, 8 * j + 4)]

    def o_reads(self, qb):
        return ['ds_read_b128 %s, %s offset:%d' % (vr(O(qb, 2 * i + 1), 4), vr(VOR), OPITCH * (16 * qb + 8 * (i & 1)) + 128 * (i >> 1)) for i in range(4)]

    def o_stores(self, qb):
        return ['buffer_store_dwordx4 %s, %s, %s, %s offen offset:%d %s' % (vr(O(qb, 2 * i + 1), 4), vr(VOG), sr(S_OD, 4), sr(S_OQ + qb) if qb else '0', 2048 * (i & 1) + 128 * (i >> 1), self.o.oflag[qb])
                for i in range(4)]

    def final(self):
        o = self.o
        T = VT
        mf = self.qk(62) + self.pv(61) + self.qk(63) + self.pv(62) + self.pv(63)
        N = len(mf)
        PVS = {0: -100, 1: 16, 2: 49, 3: 66}
        c61, pc = self.sm_stream(61, lambda k: 0, 13, 16)
        c61 += [(0, 's_nop 0')] + pc
        a, pa = self.sm_stream(62, lambda k: 4 * (k >> 2) + 6)
        b, pb = self.sm_stream(63, lambda k: NP + 4 * (k >> 2) + 6)
        pace = lambda st, g0: [(max(r, g0 + (o.fpace * i) // 8), l) for i, (r, l) in enumerate(st)]
        s2 = c61 + pace(a + [(0, 's_nop 0')] + pa, 6) + pace(b + [(0, 's_nop 0')] + pb, NP + 6)
        s3 = []
        for qb in range(4):
            r = max(0, PVS[qb] + o.fchk)
            s3 += [(r, 'v_accvgpr_read_b32 %s, %s' % (vr(T + qb), ar(A_L + 4 * qb))),
                   (r, 'v_accvgpr_read_b32 %s, %s' % (vr(T + 5 + 2 * qb), ar(A_L + 4 * qb + 1))),
                   (r, 'v_add_f32 %s, %s, %s' % (vr(T + qb), vr(T + qb), vr(T + 5 + 2 * qb))),
                   (r, 'v_cmp_ngt_f32 vcc, %s, %s' % (sr(S_THR), vr(T + qb))),
                   (r, 'v_rcp_f32 %s, %s' % (vr(T + 4 + 2 * qb), vr(T + qb))),
                   (r + 1, 's_cbranch_vccnz L_slow' if not o.exp else 's_nop 0')]
        s4 = []
        groups = [(qb, j) for qb in range(4) for j in range(4)]
        for n, (qb, j) in enumerate(groups):
            ready = max(PVS[qb] + 1 + 4 * j + 3 + 3, PVS[qb] + o.fchk + 3, 3)
            late = ready >= N - o.fpk
            if late:
                ready = N + 1
            s4 += [(ready, l) for l in self.norm_group(qb, j, late)]
        fc = lambda g: o.fcap[min(g // NP, 2)]
        G = self.pack(mf, [[(0, 's_barrier')], s3, s2, s4], lambda g: int(fc(g) * (g + 1)) - int(fc(g) * g), lambda g: 1)
        todo = []
        out, nw = [], 0
        since = 99
        for i, l in enumerate(G):
            out.append(l)
            if l.startswith('ds_write2'):
                nw += 1
                if nw % 2 == 0:
                    qb, h = (nw - 1) // 4, ((nw - 1) >> 1) & 1
                    todo += [(i, r) for r in self.o_reads(qb)[2 * h:2 * h + 2]] + [(i + o.fsd, st) for st in self.o_stores(qb)[2 * h:2 * h + 2]]
                    todo.sort(key=lambda z: not z[1].startswith('ds_read'))
            since += 1
            left = any(ismf(x) for x in G[i + 1:])
            slot = (ismf(l) and not ismem(G[i + 1])) if left else not (i + 1 < len(G) and ismem(G[i + 1]))
            if slot and todo and todo[0][0] <= i:
                if todo[0][1].startswith('ds_read'):
                    out += [todo.pop(0)[1], todo.pop(0)[1]]
                elif since >= o.fstep:
                    out.append(todo.pop(0)[1])
                    since = 0
        G = out + [l for _, l in todo]
        for n, lo, slot in ((61, 0, 16), (62, 0, 49), (63, NP, 66)):
            self.before(G, [cv for _, cv in self.sm_seq(n)[13:] if cv], slot, lo)
        return G

    def plain_store(self):
        L = [l for qb in range(4) for j in range(4) for l in self.norm_group(qb, j, True)]
        for qb in range(4):
            L += self.o_reads(qb)
        L.append('s_waitcnt lgkmcnt(0)')
        for qb in range(4):
            L += self.o_stores(qb)
        return L

    def slow_path(self):
        L = []
        e = L.append
        T = VT
        M = V_C
        SK = V_S + 36
        SV = SK + 1
        SVA = SK + 4
        S = lambda qb: V_S + 8 * qb
        e('L_slow:')
        e('s_waitcnt vmcnt(0) lgkmcnt(0)')
        e('s_nop 7')
        e('v_mbcnt_lo_u32_b32 v1, -1, 0')
        e('v_mbcnt_hi_u32_b32 v1, -1, v1')
        e('v_and_b32 v2, 15, v1')
        e('v_lshrrev_b32 v3, 4, v1')
        e('v_lshlrev_b32 v2, 8, v2')
        e('v_lshl_add_u32 %s, v3, 4, v2' % vr(SK))
        e('v_subrev_u32 %s, %s, %s' % (vr(SV), sr(S_M0K), vr(VDV)))
        e('v_subrev_u32 %s, %s, %s' % (vr(SV + 1), sr(S_M0K), vr(VDV + 1)))
        e('s_sub_u32 s3, %s, %d' % (sr(S_STG), V_BASE))
        for db in range(8):
            e('v_add_u32 %s, s3, %s' % (vr(SVA + db), vr(VVA + db)))
        for i in range(128):
            e('v_mov_b32 %s, 0' % vr(V_O + i))
        for qb in range(4):
            e('v_mov_b32 %s, 0xff7fffff' % vr(M + qb))
            e('v_mov_b32 %s, 0' % vr(M + 4 + qb))
        e('s_mov_b32 %s, 0' % sr(S_CNT))
        e('L_slow_loop:')
        e('s_mov_b32 m0, %s' % sr(S_STG))
        e('s_add_u32 s31, %s, 4096' % sr(S_CNT))
        for i in range(4):
            e('buffer_load_dwordx4 %s, %s, %s offen offset:%d lds' % (vr(SV + (i & 1)), sr(S_V, 4), sr(S_CNT), 1024 * i))
        e('s_add_u32 m0, %s, 4096' % sr(S_STG))
        e('s_nop 0')
        for i in range(4):
            e('buffer_load_dwordx4 %s, %s, s31 offen offset:%d lds' % (vr(SV + (i & 1)), sr(S_V, 4), 1024 * i))
        for kb in range(2):
            for st in range(4):
                e('buffer_load_dwordx4 %s, %s, %s, %s offen offset:%d' % (ar(A_K + 16 * kb + 4 * st, 4), vr(SK), sr(S_K, 4), 's31' if kb else sr(S_CNT), 64 * st))
        e('s_waitcnt vmcnt(0)')
        for kb in range(2):
            for st in range(4):
                for qb in range(4):
                    d = vr(S(qb) + 4 * kb, 4)
                    e('%s %s, %s, %s, %s' % (MF, d, ar(A_K + 16 * kb + 4 * st, 4), ar(A_Q + 16 * qb + 4 * st, 4), d if st else '0'))
        for db in range(8):
            for j in range(2):
                e(self.v_read(0, 0, db, j, addr=SVA, base=0))
        for qb in range(4):
            s = S(qb)
            e('v_max3_f32 %s, %s, %s, %s' % (vr(T + qb), vr(M + qb), vr(s), vr(s + 1)))
            for k in range(1, 4):
                e('v_max3_f32 %s, %s, %s, %s' % (vr(T + qb), vr(T + qb), vr(s + 2 * k), vr(s + 2 * k + 1)))
        L += self.xlane('v_max_f32', [T + q for q in range(4)], [T + 4 + q for q in range(4)])
        for qb in range(4):
            e('v_sub_f32 %s, %s, %s' % (vr(M + 8 + qb), vr(M + qb), vr(T + qb)))
        for qb in range(4):
            e('v_exp_f32 %s, %s' % (vr(M + 8 + qb), vr(M + 8 + qb)))
        for qb in range(4):
            e('v_mov_b32 %s, %s' % (vr(M + qb), vr(T + qb)))
        for qb in range(4):
            s = S(qb)
            for r in range(8):
                e('v_sub_f32 %s, %s, %s' % (vr(s + r), vr(s + r), vr(T + qb)))
            for r in range(8):
                e('v_exp_f32 %s, %s' % (vr(s + r), vr(s + r)))
            e('v_mul_f32 %s, %s, %s' % (vr(M + 4 + qb), vr(M + 4 + qb), vr(M + 8 + qb)))
            for r in range(8):
                e('v_add_f32 %s, %s, %s' % (vr(M + 4 + qb), vr(M + 4 + qb), vr(s + r)))
            for j in range(4):
                e('v_cvt_pk_bf16_f32 %s, %s, %s' % (vr(s + j), vr(s + 2 * j), vr(s + 2 * j + 1)))
            for i in range(32):
                e('v_mul_f32 %s, %s, %s' % (vr(O(qb, 0) + i), vr(O(qb, 0) + i), vr(M + 8 + qb)))
        e('s_waitcnt lgkmcnt(0)')
        e('s_nop 1')
        for db in range(8):
            for qb in range(4):
                o = vr(O(qb, db), 4)
                e('%s %s, %s, %s, %s' % (MF, o, ar(A_V + 4 * db, 4), vr(S(qb), 4), o))
        e('s_nop 7')
        e('s_add_u32 %s, %s, 8192' % (sr(S_CNT), sr(S_CNT)))
        e('s_cmp_lt_u32 %s, 0x40000' % sr(S_CNT))
        e('s_cbranch_scc1 L_slow_loop')
        for qb in range(4):
            e('v_mov_b32 %s, %s' % (vr(T + qb), vr(M + 4 + qb)))
        L += self.xlane('v_add_f32', [T + q for q in range(4)], [T + 4 + q for q in range(4)])
        for qb in range(4):
            e('v_rcp_f32 %s, %s' % (vr(T + 4 + 2 * qb), vr(T + qb)))
        e('s_nop 0')
        L += self.plain_store()
        e('s_branch L_end')
        return L

    def stamps_out(self):
        if not self.o.stamps:
            return []
        L = []
        e = L.append
        L += self.stamp('stored')
        e('s_waitcnt vmcnt(0) lgkmcnt(0)')
        e('s_memrealtime s[100:101]')
        L += self.stamp()
        e('s_waitcnt lgkmcnt(0)')
        e('s_mov_b32 s84, s96')
        e('s_mov_b32 s85, s97')
        e('s_mov_b32 s86, 0x100000')
        e('s_mov_b32 s87, 0x20000')
        e('s_getreg_b32 s88, hwreg(HW_REG_XCC_ID)')
        e('s_getreg_b32 s89, hwreg(HW_REG_HW_ID)')
        e('s_lshl_b32 s3, s2, 2')
        e('s_add_u32 s3, s3, %s' % sr(S_W))
        e('s_lshl_b32 s3, s3, 8')
        e('v_mov_b32 v1, s3')
        vals = [98, 99, 100, 101, 88, 89] + [S_TS + 4 * k for k in range(10)] + [S_TS + 4 * k + 2 for k in range(10)]
        e('s_mov_b64 exec, 1')
        for k, s in enumerate(vals):
            e('v_mov_b32 v2, s%d' % s)
            e('buffer_store_dword v2, v1, s[84:87], 0 offen offset:%d' % (4 * k))
        if self.o.probe:
            a, b, wg = [int(x) for x in self.o.probe.split(',')]
            e('s_cmp_eq_u32 s2, %d' % wg)
            e('s_cbranch_scc0 L_done')
            e('s_cmp_eq_u32 %s, 0' % sr(S_W))
            e('s_cbranch_scc0 L_done')
            e('s_sub_u32 s30, s%d, s%d' % (S_TS + 4 * b + 2, S_TS + 4 * a + 2))
            e('s_mul_i32 s30, s30, 10')
            e('s_add_u32 s30, s30, 10000')
            e('L_spin:')
            e('s_sleep 1')
            e('s_memrealtime s[34:35]')
            e('s_waitcnt lgkmcnt(0)')
            e('s_sub_u32 s34, s34, s98')
            e('s_cmp_lt_u32 s34, s30')
            e('s_cbranch_scc1 L_spin')
        return L

    def build(self):
        o = self.o
        com = self.common()
        n0 = self.nts
        com1 = com
        if 'L_qskip:' in com:
            com1 = com[:com.index('s_cbranch_scc1 L_qskip') + 1] + com[com.index('L_qskip:'):]
        pro1 = []
        if o.roles:
            pro1 = ['L_role1:'] + self.fix_hazards(com1, self.auto_lgkm(self.head(1), o.hage)) + ['s_branch L_loop']
            self.nts = n0
        pro = com + self.fix_hazards(com, self.auto_lgkm(self.head(0), o.hage))
        st_a = []
        body = [self.auto_lgkm(self.steady(4 * t + 2, 4 * t + 6), o.age) for t in range(1, 5)]
        inc, cmp_ = 's_add_u32 %s, %s, 1' % (sr(S_CNT), sr(S_CNT)), 's_cmp_lt_u32 %s, 3' % sr(S_CNT)
        b = body[3]
        ms = [i for i, l in enumerate(b) if ismf(l)]
        b.insert(ms[-2] + 1, cmp_)
        assert not any(l.startswith('s_add') for l in b[ms[-2]:])
        b.insert(ms[-4] + 1, inc)
        b.append('s_cbranch_scc1 L_loop')
        st_b = self.stamp('body')
        g13 = self.auto_lgkm(self.steady(54, 58, vmw=8, kdma=False, vdma=False), o.age)
        g14 = self.steady(58, 61, vmw=0, kdma=False, vdma=False)
        st_c = self.stamp('fin')
        fin = self.fix_hazards(g13, self.auto_lgkm(g14 + st_c + self.final(), o.age))
        for pat in o.drop:
            fin = [l for l in fin if not l.startswith(pat)]
        so = self.stamps_out()
        slow = self.slow_path()

        text = pro + st_a
        if o.align:
            text.append('.p2align %d' % o.align)
        text.append('L_loop:')
        for x in body:
            text += x
        text += st_b + g13 + fin + ['L_end:'] + so + ['L_done:', 's_endpgm'] + pro1 + slow

        loop = [l for x in body for l in x]
        probs = check_trace(pro + st_a + loop * 3 + st_b + g13 + fin + so)
        if o.roles:
            probs += check_trace(com1 + pro1 + loop)
        i0 = slow.index('L_slow_loop:')
        i1 = slow.index('s_cbranch_scc1 L_slow_loop')
        for kb in [i for i, l in enumerate(fin) if 'L_slow' in l]:
            probs += check_trace(g13 + fin[:kb + 1] + slow[:i1 + 1] + slow[i0:])
        return text, probs, [pro, body[0], fin]

    def emit(self):
        text, probs, parts = self.build()
        out = []
        for l in open(self.o.ref).read().split('\n'):
            if l.startswith('; @launch'):
                out.append('; @launch grid=(256,1,1) block=(256,1,1) lds=163840')
            elif l.startswith(';'):
                out.append(l)
            else:
                break
        out += ['.amdgcn_target "amdgcn-amd-amdhsa--gfx950"', '.text', '.globl %s_kernel' % NAME, '.p2align 8',
                '.type %s_kernel,@function' % NAME, '%s_kernel:' % NAME]
        for l in text:
            out.append(l if (l.endswith(':') or l.startswith('.')) else '    ' + l)
        out += ['.section .rodata,"a"', '.p2align 6', '.amdhsa_kernel %s_kernel' % NAME,
                '  .amdhsa_next_free_vgpr 472', '  .amdhsa_next_free_sgpr 102', '  .amdhsa_accum_offset 256',
                '  .amdhsa_group_segment_fixed_size 0', '  .amdhsa_kernarg_size 48', '  .amdhsa_user_sgpr_count 2',
                '  .amdhsa_user_sgpr_kernarg_segment_ptr 1', '  .amdhsa_system_sgpr_workgroup_id_x 1',
                '  .amdhsa_float_denorm_mode_32 3', '  .amdhsa_float_denorm_mode_16_64 3',
                '.end_amdhsa_kernel', '']
        return '\n'.join(out), probs, parts


def ilist(s):
    return [int(x) for x in s.split(',')]


def mlist(s):
    return [x.split(',') if x else [] for x in s.split('/')]


def parse(argv):
    ap = argparse.ArgumentParser()
    ap.add_argument('-o', default='cdna_kernels/%s.s' % NAME)
    ap.add_argument('--ref', default='cdna_kernels/%s.s.ref' % NAME)
    ap.add_argument('--thr', type=float, default=40)
    ap.add_argument('--stamps', action='store_true')
    ap.add_argument('--st', type=lambda s: s.split(','), default=['q0', 'q3', 'k1', 'first', 'loop', 'body', 'fin', 'stored'])
    ap.add_argument('--probe', default='')
    ap.add_argument('--nodma', action='store_true')
    ap.add_argument('--nobar', action='store_true')
    ap.add_argument('--show', type=int, default=-1)
    ap.add_argument('--exp', default='')
    ap.add_argument('--drop', type=lambda s: s.split(','), default=[])
    ap.add_argument('--align', type=int, default=6)
    ap.add_argument('--age', type=int, default=12)
    ap.add_argument('--hage', type=int, default=24)
    ap.add_argument('--kdg', type=int, default=3)
    ap.add_argument('--vdg', type=int, default=7)
    ap.add_argument('--dstride', type=int, default=4)
    ap.add_argument('--roles', type=int, default=1)
    ap.add_argument('--qe', type=ilist, default=[1, 1])
    ap.add_argument('--mid', type=mlist, default=mlist('V0,Q1/Q2,C0/Q3/K1/V1/K2,V2/K3'))
    ap.add_argument('--mid1', type=mlist, default=mlist('V0/Q1,C0/Q2/Q3,K1/V1/K2,V2/K3'))
    ap.add_argument('--bgstep', type=int, default=14)
    ap.add_argument('--carry', type=int, default=16)
    ap.add_argument('--cover', type=int, default=5)
    ap.add_argument('--hcap', type=ilist, default=[4, 3, 4])
    ap.add_argument('--fcap', type=lambda s: [float(x) for x in s.split(',')], default=[6, 6, 6])
    ap.add_argument('--fpace', type=int, default=8)
    ap.add_argument('--fpk', type=int, default=4)
    ap.add_argument('--fsd', type=int, default=14)
    ap.add_argument('--fstep', type=int, default=9)
    ap.add_argument('--fchk', type=int, default=4)
    ap.add_argument('--kvflag', type=lambda s: s.replace('+', ' ') + ' ' if s else '', default='')
    ap.add_argument('--qflag', type=lambda s: s.replace('+', ' ') + ' ' if s else '', default='')
    ap.add_argument('--oflag', type=lambda s: ([x.replace('+', ' ') for x in s.split(',')] * 4)[:4], default=['nt'] * 4)
    return ap.parse_args(argv)


SHORT = [('v_smfmac_f32_16x16x64_bf16', 'S'), ('v_mfma_f32_16x16x32_bf16', 'M'), ('v_exp_f32', 'e'), ('ds_read_b64_tr_b16', 't'), ('v_cvt_pk_bf16_f32', 'c'), ('ds_read_b128', 'R'), ('s_waitcnt', 'w'),
         ('v_add_f32', 'a'), ('s_add_u32', 's'), ('s_mov_b32', 's'), ('s_barrier', 'BAR'), ('v_permlane32_swap_b32', 'x'), ('v_permlane16_swap_b32', 'x'),
         ('buffer_load_dwordx4', 'D'), ('v_pk_mul_f32', 'P'), ('s_nop', 'n'), ('v_accvgpr_write_b32', 'A'), ('v_lshlrev_b32', 'l'), ('v_and_b32', '&'),
         ('v_max3_f32', 'mx'), ('v_max_f32', 'mx'), ('v_mov_b32', 'mv'), ('v_sub_f32', 'sb'), ('global_load_dwordx4', 'G'), ('v_mul_f32', 'm'),
         ('ds_write2_b64', 'W'), ('buffer_store_dwordx4', 'ST'), ('v_accvgpr_read_b32', 'acc'), ('v_cmp_ngt_f32', 'cmp'), ('v_rcp_f32', 'rcp'), ('s_cbranch_vccnz', 'br')]

if __name__ == '__main__':
    o = parse(sys.argv[1:])
    g = Gen(o)
    s, probs, parts = g.emit()
    open(o.o, 'w').write(s)
    if o.show >= 0:
        d = dict(SHORT)
        cur, k = [], -1
        for l in parts[o.show] + [MF]:
            if ismf(l):
                print('%d: %s' % (k, ' '.join(cur)))
                cur = []
                k += 1
            cur.append(d.get(l.split()[0], l.split()[0]))
    for p in probs[:40]:
        print('HAZARD', p)
    print('%d hazard findings' % len(probs))
```

```python
import sys, math, struct, argparse, re
from asmlib import I, check_trace

NAME = 'standalone__gqa_softmax__near_ridge'

V_O = 8
V_S = 136
V_C = 200
VKA = 216
VVA = 220
VDK = 228
VDV = 232
VOW = 234
VOR = 238
VOG = 240
VT = 244
VIX = 168
NP = 33
A_Q = 0
A_K = 64
A_V = 128
A_L = 192
A_1 = 208

S_Q, S_K, S_V, S_OD = 4, 8, 12, 16
S_W, S_M0K, S_M0V, S_OFFK, S_OFFV, S_CNT = 20, 21, 22, 23, 24, 25
S_C = 26
S_QOFF = 28
S_THR = 29
S_TMP = 30
S_STG = 32
S_QLDS = 33
S_TS = 40
S_OQ = 80
S_QB = 84
OPITCH = 272
V_BASE = 98304
MF = 'v_mfma_f32_16x16x32_bf16'


DOC = '''; Flash-style attention, one workgroup per (batch, q head): 4 waves x 64 query rows, all 1024 keys in 64-key tiles.
;  - K/V tiles stream through a 4-slot LDS ring by LDS-DMA (XOR-swizzled source, conflict-free reads); the two q heads of
;    one kv head run on workgroups 8 ids apart so that they share the L2 lines (speed only).
;  - S^T = K.(c*Q)^T with c = log2(e)/sqrt(128) folded into Q, O^T += V^T.P^T, 16x16x32 bf16 MFMA, fp32 accumulation;
;    row sums come from one 2:4-sparse MFMA per tile against a pattern of ones.
;  - softmax guard: every row subtracts its true max over the first 32 keys (fed in as the MFMA C operand). That value is
;    <= the row max, so nothing underflows that the true max would keep; overflow is caught at run time: if any row sum
;    is not < 2^32 (or is NaN) the wave redoes its rows in L_slow with a true running max (online softmax).
;  - finished q blocks are scaled by 1/sum, packed to bf16, transposed through LDS and stored as full 128-byte lines.'''.split('\n')


def f2u(x):
    return struct.unpack('<I', struct.pack('<f', x))[0]


def vr(b, n=1):
    return 'v%d' % b if n == 1 else 'v[%d:%d]' % (b, b + n - 1)


def ar(b, n=1):
    return 'a%d' % b if n == 1 else 'a[%d:%d]' % (b, b + n - 1)


def sr(b, n=1):
    return 's%d' % b if n == 1 else 's[%d:%d]' % (b, b + n - 1)


def SB(n):
    return V_S + 16 * (n & 1)


def O(qb, db):
    return V_O + 32 * qb + 4 * db


def ismf(l):
    return l.startswith(MF) or l.startswith('v_smfmac')


def ismem(l):
    return I(l).kind in ('dsr', 'dsw', 'vst', 'dma', 'vld', 'wait', 'barrier', 'sctl', 'salu', 'smem')


def cost(l):
    x = I(l)
    if x.kind == 'valu' and (x.trans or x.op.startswith('v_permlane')):
        return 2
    if x.kind == 'nop':
        return x.n
    return 1


class Gen:
    def __init__(self, opt):
        self.o = opt
        self.nts = 0

    def qk_slots(self):
        return [(kb, st if kb % 2 == 0 else 3 - st, st == 0) for kb in range(4) for st in range(4)]

    def qk_mfma(self, n, kb, st, first, czero=False):
        qb = n & 3
        d = vr(SB(n) + 4 * kb, 4)
        c = d if not first else ('0' if czero else vr(V_C + 4 * qb, 4))
        return '%s %s, %s, %s, %s' % (MF, d, ar(A_K + 16 * kb + 4 * st, 4), ar(A_Q + 16 * qb + 4 * st, 4), c)

    def qk(self, n):
        return [self.qk_mfma(n, *a) for a in self.qk_slots()]

    def pv(self, n):
        qb = n & 3
        z = n < 4
        out = ['v_smfmac_f32_16x16x64_bf16 %s, %s, %s, %s' % (ar(A_L + 4 * qb, 4), ar(A_1, 4), vr(SB(n), 8), vr(VIX))]
        for db in range(8):
            o = vr(O(qb, db), 4)
            out += ['%s %s, %s, %s, %s' % (MF, o, ar(A_V + 32 * h + 4 * db, 4), vr(SB(n) + 4 * h, 4), '0' if (z and h == 0) else o) for h in range(2)]
        return out

    def k_read(self, t, kb, st):
        return 'ds_read_b128 %s, %s offset:%d' % (ar(A_K + 16 * kb + 4 * st, 4), vr(VKA + st), (t & 3) * 16384 + kb * 4096)

    def v_read(self, t, h, db, j, addr=VVA, base=None):
        off = ((t + 1) & 3) * 16384 + h * 8192 if base is None else base
        return 'ds_read_b64_tr_b16 %s, %s offset:%d' % (ar(A_V + 32 * h + 4 * db + 2 * j, 2), vr(addr + db), off + j * 4096)

    def v_list(self, t):
        return [self.v_read(t, h, db, j) for db in range(8) for h in range(2) for j in range(2)]

    def sm_seq(self, n):
        seq = []
        for kb in range(4):
            s = SB(n) + 4 * kb
            for r in range(4):
                cv = None
                if r & 1:
                    cv = 'v_cvt_pk_bf16_f32 %s, %s, %s' % (vr(SB(n) + 2 * kb + (r >> 1)), vr(s + r - 1), vr(s + r))
                seq.append(('v_exp_f32 %s, %s' % (vr(s + r), vr(s + r)), cv))
        return seq

    def sm_stream(self, n, ready=lambda k: 0, lo=0, hi=16):
        out, pend = [], []
        for k, (ex, cv) in list(enumerate(self.sm_seq(n)))[lo:hi]:
            out.append((ready(k), ex))
            out += pend
            pend = [(ready(k), cv)] if cv else []
        return out, pend

    def dma(self, kind, i):
        o = self.o
        if kind == 'K':
            return 'buffer_load_dwordx4 %s, %s, %s offen offset:%d %slds' % (vr(VDK + i), sr(S_K, 4), sr(S_OFFK), 1024 * i, o.kvflag)
        if kind == 'V':
            return 'buffer_load_dwordx4 %s, %s, %s offen offset:%d %slds' % (vr(VDV + (i & 1)), sr(S_V, 4), sr(S_OFFV), 1024 * i, o.kvflag)
        return 'buffer_load_dwordx4 %s, %s, %s offen offset:%d %slds' % (vr(VDK + i), sr(S_Q, 4), sr(S_QOFF), 1024 * i, o.qflag)

    def m0_for(self, kind, t):
        return 's_add_u32 m0, %s, %d' % (sr(S_M0V if kind == 'V' else S_M0K), ((t + (kind == 'V')) & 3) * 16384)

    def q_pre(self, j):
        return ['s_add_u32 m0, %s, %d' % (sr(S_QLDS), 4096 * j), 's_add_u32 %s, %s, %d' % (sr(S_QOFF), sr(S_QB), 4096 * j)]

    def stamp(self, name=None):
        if not self.o.stamps or (name is not None and name not in self.o.st):
            return []
        k = self.nts
        self.nts += 1
        return ['s_memtime %s' % sr(S_TS + 4 * k, 2), 's_memrealtime %s' % sr(S_TS + 4 * k + 2, 2)]

    def pack(self, mf, streams, cap, nmem=lambda g: 2):
        out = []
        for g in range(len(mf)):
            mem, val = [], []
            c = 0
            for q in streams:
                while q and q[0][0] <= g and ismem(q[0][1]) and len(mem) < nmem(g):
                    mem.append(q.pop(0)[1])
                    c += 1
            for q in streams:
                while q and q[0][0] <= g and not ismem(q[0][1]) and c + cost(q[0][1]) <= cap(g):
                    c += cost(q[0][1])
                    val.append(q.pop(0)[1])
            out.append(mf[g])
            out += mem + val
        return out + [l for q in streams for _, l in q]

    @staticmethod
    def before(lines, items, slot, lo=0):
        ms = [i for i, l in enumerate(lines) if ismf(l)]
        head = lines[ms[lo]:ms[slot]]
        for l in items:
            assert l.startswith('s_nop') or l in head, (slot, l)

    @staticmethod
    def auto_lgkm(lines, age=16):
        out, pend = [], []
        for k, l in enumerate(lines):
            x = I(l)
            if x.kind == 'wait' and x.lgkm is not None:
                pend = pend[len(pend) - x.lgkm:] if x.lgkm else []
            touched = set(x.uses) | set(x.defs)
            idx = [i for i, (r, _, _) in enumerate(pend) if touched & set(r)]
            if idx:
                last = max(idx)
                pos = len(out)
                if x.kind == 'mfma':
                    j = len(out) - 1
                    while j >= 0 and not ismf(out[j]):
                        j -= 1
                    if j >= 0 and pend[last][2] <= j:
                        pos = j + 1
                early = [p for p in pend if p[2] < pos]
                while last + 1 < len(early) and early[last + 1][1] <= k - age:
                    last += 1
                n = min(15, len(early) - 1 - last)
                out.insert(pos, 's_waitcnt lgkmcnt(%d)' % n)
                keep = early[len(early) - n:] if n else []
                pend = keep + [(r, kk, p + 1) for r, kk, p in pend[len(early):]]
            out.append(l)
            if x.kind == 'dsr':
                pend.append((x.defs, k, len(out) - 1))
            if x.kind == 'dsw':
                pend.append(([], k, len(out) - 1))
        return out

    @staticmethod
    def fix_hazards(prefix, lines):
        lines = list(lines)
        for _ in range(300):
            pr = [p for p in check_trace(prefix + lines) if int(p.split(':')[0]) >= len(prefix)]
            if not pr:
                return lines
            p = pr[0]
            m = re.search(r'needs (\d+),? has (\d+)', p)
            assert 'pending' not in p, p
            n = int(m.group(1)) - int(m.group(2)) if m else 1
            lines.insert(int(p.split(':')[0]) - len(prefix), 's_nop %d' % (n - 1))
        raise RuntimeError('hazards keep coming')

    EG = list(range(1, 32, 2))

    def steady(self, n0, n1, vmw=8, kdma=True, vdma=True, bar=True):
        o = self.o
        mf, shadow, valu, isexp = [], [], [], []
        for n in range(n0, n1):
            mf += self.qk(n + 1) + self.pv(n)
            v = [[] for _ in range(NP)]
            seq = self.sm_seq(n)[13:] + self.sm_seq(n + 1)[:13]
            for g, (ex, cv) in zip(self.EG, seq):
                v[g].append(ex)
                if cv:
                    v[g + 1].append(cv)
            valu += v
            shadow += [[] for _ in range(NP)]
            isexp += [g in self.EG for g in range(NP)]
        N = len(mf)
        free = lambda g: 0 if isexp[g] else 2 - len(valu[g]) - len([x for x in shadow[g] if not x.startswith('s_add')])

        def put(items):
            g, dbl = 0, False
            for ready, l in items:
                g = max(g, ready)
                while free(g) < 1 or (shadow[g] and g > 0 and len(shadow[g - 1]) == 2):
                    g += 1
                shadow[g].append(l)
            return g

        def put_dma(kind, t, g, step):
            off = S_OFFV if kind == 'V' else S_OFFK
            shadow[g].append(self.m0_for(kind, t))
            g += 1
            for i in range(4):
                while free(g) < 1:
                    g += 1
                shadow[g].append(self.dma(kind, i))
                g += step
            shadow[g - step + 1].append('s_add_u32 %s, %s, 16384' % (sr(off), sr(off)))
        for n in range(n0, n1):
            b = NP * (n - n0)
            t = n >> 2
            if n & 3 == 2 and t < 15:
                if bar and not o.nobar:
                    shadow[b] += ['s_waitcnt vmcnt(%d)' % vmw, 's_barrier']
                put([(b + max(s, 1), self.k_read(t + 1, kb, st)) for s, (kb, st, _) in enumerate(self.qk_slots())])
            if n & 3 == 3 and t < 15:
                put([(b + 17 + k // 2, l) for k, l in enumerate(self.v_list(t + 1))])
                if kdma and not o.nodma:
                    put_dma('K', t + 3, b + o.kdg, o.dstride)
            if n & 3 == 1 and vdma and not o.nodma:
                put_dma('V', t + 2, b + o.vdg, o.dstride)
        out = []
        for g in range(N):
            if g % NP == 4 and not shadow[g]:
                shadow[g].append('s_nop 0')
            out.append(mf[g])
            out += shadow[g] + valu[g]
        return out

    def xlane(self, op, regs, tmps):
        L = []
        for sw in ('v_permlane32_swap_b32', 'v_permlane16_swap_b32'):
            L += ['v_mov_b32 %s, %s' % (vr(t), vr(r)) for r, t in zip(regs, tmps)]
            if len(regs) < 3:
                L.append('s_nop 1')
            L += ['%s %s, %s' % (sw, vr(r), vr(t)) for r, t in zip(regs, tmps)]
            L += ['%s %s, %s, %s' % (op, vr(r), vr(r), vr(t)) for r, t in zip(regs, tmps)]
        return L

    def common(self):
        o = self.o
        L = []
        e = L.append
        e('s_load_dwordx8 s[88:95], s[0:1], 0')
        e('s_cmp_ge_u32 s2, 256')
        e('s_cbranch_scc1 L_done')
        e('s_getpc_b64 s[34:35]')
        e('L_pc:')
        e('v_lshlrev_b32 v4, 4, v0')
        if o.roles:
            e('s_bitcmp1_b32 s2, 3')
            e('s_cselect_b32 s3, L_role1 - L_pc, 0')
            e('v_add_u32 v4, s3, v4')
        e('v_add_co_u32 v8, vcc, s34, v4')
        e('v_mov_b32 v9, s35')
        e('v_lshrrev_b32 v2, 6, v0')
        e('v_addc_co_u32 v9, vcc, 0, v9, vcc')
        e('global_load_dwordx4 %s, v[8:9], off' % vr(V_C, 4))
        if o.stamps:
            e('s_load_dwordx2 s[96:97], s[0:1], 40')
            e('s_memrealtime s[98:99]')
        L += self.stamp()
        e('v_bfe_u32 v5, v0, 4, 2')
        e('v_readfirstlane_b32 %s, v2' % sr(S_W))
        e('v_and_b32 v6, 15, v0')
        e('v_lshlrev_b32 v7, 8, v5')
        e('v_lshl_add_u32 v7, v2, 12, v7')
        e('v_xor_b32 v3, v6, v5')
        e('v_lshl_add_u32 %s, v3, 4, v7' % vr(VDK))
        for i in range(1, 4):
            e('v_xor_b32 %s, %d, %s' % (vr(VDK + i), i << 6, vr(VDK)))
        e('s_and_b32 s30, s2, 7')
        e('s_lshr_b32 s3, s2, 4')
        e('s_lshl4_add_u32 s30, s30, s3')
        e('s_bfe_u32 s31, s2, 0x10003')
        e('s_lshl1_add_u32 s31, s30, s31')
        e('s_lshl_b32 s30, s30, 18')
        e('s_lshl_b32 s31, s31, 16')
        e('s_lshl_b32 %s, %s, 12' % (sr(S_M0K), sr(S_W)))
        e('s_mul_i32 %s, %s, 12288' % (sr(S_QB), sr(S_W)))
        e('s_lshl2_add_u32 %s, %s, 0xc000' % (sr(S_QLDS), sr(S_M0K)))
        e('s_mov_b32 %s, 0' % sr(S_OFFK))
        e('s_mov_b32 s10, 0x40000')
        e('s_mov_b32 s11, 0x20000')
        e('s_mov_b32 s6, 0x10000')
        e('s_mov_b32 s7, 0x20000')
        e('s_mov_b32 m0, %s' % sr(S_M0K))
        e('s_waitcnt lgkmcnt(0)')
        L += self.stamp('karg')
        e('s_add_u32 s8, s90, s30')
        e('s_addc_u32 s9, s91, 0')
        L += [self.dma('K', i) for i in range(4)]
        e('s_add_u32 s4, s88, s31')
        e('s_addc_u32 s5, s89, 0')
        for j in range(o.qe[0]):
            if o.roles and j == o.qe[1]:
                e('s_bitcmp1_b32 s2, 3')
                e('s_cbranch_scc1 L_qskip')
            L += self.q_pre(j) + [self.dma('Q', i) for i in range(4)]
        if o.roles and o.qe[1] < o.qe[0]:
            e('L_qskip:')
        L += self.stamp('iss')
        e('v_and_b32 v1, 63, v0')
        e('s_lshr_b32 s3, s2, 3')
        e('s_lshl2_add_u32 s3, s3, %s' % sr(S_W))
        e('s_and_b32 s3, s3, 31')
        e('s_min_u32 s3, s3, (L_slow - L_pc) / 1024 - 4')
        e('s_lshl_b32 s3, s3, 10')
        e('s_add_u32 s3, s3, 4096')
        e('s_add_u32 s34, s34, s3')
        e('s_addc_u32 s35, s35, 0')
        e('v_lshlrev_b32 v3, 4, v1')
        e('v_add_co_u32 %s, vcc, s34, v3' % vr(VT + 8))
        e('v_mov_b32 %s, s35' % vr(VT + 9))
        e('s_nop 0')
        e('v_addc_co_u32 %s, vcc, 0, %s, vcc' % (vr(VT + 9), vr(VT + 9)))
        e('s_add_u32 s12, s92, s30')
        e('s_addc_u32 s13, s93, 0')
        e('s_mov_b32 s14, 0x40000')
        e('s_mov_b32 s15, 0x20000')
        e('s_add_u32 %s, %s, %d' % (sr(S_M0V), sr(S_M0K), V_BASE))
        e('v_lshlrev_b32 v3, 1, v5')
        e('v_xor_b32 v3, v6, v3')
        e('v_lshl_add_u32 %s, v3, 4, v7' % vr(VDV))
        e('v_xor_b32 %s, 0x80, %s' % (vr(VDV + 1), vr(VDV)))
        e('s_add_u32 s16, s94, s31')
        e('s_addc_u32 s17, s95, 0')
        e('s_mov_b32 s18, 0x10000')
        e('s_mov_b32 s19, 0x20000')
        e('v_xor_b32 v3, v5, v6')
        e('v_lshlrev_b32 v4, 8, v6')
        e('v_lshl_add_u32 %s, v3, 4, v4' % vr(VKA))
        for st in range(1, 4):
            e('v_xor_b32 %s, %d, %s' % (vr(VKA + st), st << 6, vr(VKA)))
        for st in range(4):
            e('v_add_u32 %s, %s, %s' % (vr(VT + st), sr(S_QLDS), vr(VKA + st)))
        c = math.log2(math.e) / math.sqrt(128.0)
        e('s_mov_b32 %s, 0x%08x' % (sr(S_C), f2u(c)))
        e('s_mov_b32 %s, 0x%08x' % (sr(S_C + 1), f2u(c)))
        e('s_mov_b32 %s, 0x%08x' % (sr(S_THR), f2u(2.0 ** o.thr)))
        e('s_mov_b32 %s, 0xffff0000' % sr(S_TMP))
        e('v_lshrrev_b32 v3, 2, v1')
        e('v_lshlrev_b32 v2, 8, v3')
        e('v_and_b32 v3, 7, v3')
        e('v_lshl_add_u32 v2, v3, 5, v2')
        e('v_and_b32 v3, 3, v1')
        e('v_lshl_add_u32 v2, v3, 3, v2')
        e('v_add_u32 %s, %d, v2' % (vr(VVA), V_BASE))
        for db in range(1, 8):
            e('v_xor_b32 %s, %d, %s' % (vr(VVA + db), db << 5, vr(VVA)))
        e('s_mul_i32 %s, %s, %d' % (sr(S_STG), sr(S_W), 4 * OPITCH * 16))
        e('v_mul_u32_u24 v3, %d, v6' % OPITCH)
        e('v_lshl_add_u32 v3, v5, 3, v3')
        e('v_add_u32 %s, %s, v3' % (vr(VOW), sr(S_STG)))
        for qb in range(1, 4):
            e('v_add_u32 %s, %d, %s' % (vr(VOW + qb), qb * OPITCH * 16, vr(VOW)))
        e('v_lshrrev_b32 v2, 3, v1')
        e('v_and_b32 v4, 7, v1')
        e('v_mul_u32_u24 v3, %d, v2' % OPITCH)
        e('v_lshl_add_u32 v3, v4, 4, v3')
        e('v_add_u32 %s, %s, v3' % (vr(VOR), sr(S_STG)))
        e('s_lshl_b32 s3, %s, 14' % sr(S_W))
        e('v_lshlrev_b32 v3, 8, v2')
        e('v_lshl_add_u32 v3, v4, 4, v3')
        e('v_add_u32 %s, s3, v3' % vr(VOG))
        for qb in range(1, 4):
            e('s_movk_i32 %s, %d' % (sr(S_OQ + qb), 4096 * qb))
        e('v_and_b32 v3, 2, v1')
        e('v_cmp_eq_u32 vcc, 0, v3')
        e('v_mov_b32 v2, 0x3f803f80')
        e('s_mov_b32 %s, 0' % sr(S_CNT))
        e('v_cndmask_b32 v3, 0, v2, vcc')
        for j in range(4):
            e('v_accvgpr_write_b32 %s, v3' % ar(A_1 + j))
        e('v_and_b32 v3, 1, v1')
        e('v_cmp_eq_u32 vcc, 0, v3')
        e('v_mov_b32 v2, 0x44444444')
        e('v_mov_b32 v3, 0xeeeeeeee')
        e('v_cndmask_b32 %s, v3, v2, vcc' % vr(VIX))
        for j in range(16):
            e('v_accvgpr_write_b32 %s, 0' % ar(A_L + j))
        if o.roles:
            e('s_bitcmp1_b32 s2, 3')
            e('s_cbranch_scc1 L_role1')
        return L

    def dmax(self, qb):
        T = VT + 4 + 2 * (qb & 1)
        sq = SB(qb)
        D = ['v_max3_f32 %s, %s, %s, %s' % (vr(T), vr(sq), vr(sq + 1), vr(sq + 2)),
             'v_max3_f32 %s, %s, %s, %s' % (vr(T + 1), vr(sq + 4), vr(sq + 5), vr(sq + 6)),
             'v_max3_f32 %s, %s, %s, %s' % (vr(T), vr(T), vr(sq + 3), vr(sq + 7)),
             'v_max_f32 %s, %s, %s' % (vr(T), vr(T), vr(T + 1))]
        for sw in ('v_permlane32_swap_b32', 'v_permlane16_swap_b32'):
            D += ['v_mov_b32 %s, %s' % (vr(T + 1), vr(T)), 's_nop 1', '%s %s, %s' % (sw, vr(T), vr(T + 1)), 'v_max_f32 %s, %s, %s' % (vr(T), vr(T), vr(T + 1))]
        D += ['v_sub_f32 %s, 0, %s' % (vr(V_C + 4 * qb + r), vr(T)) for r in range(4)]
        return D

    def sm0(self, qb):
        out = []
        st, pend = self.sm_stream(qb)
        sub = ['v_add_f32 %s, %s, %s' % (vr(SB(qb) + r), vr(SB(qb) + r), vr(V_C + 4 * qb)) for r in range(16)]
        return sub + [l for _, l in st] + ['s_nop 0'] + [l for _, l in pend]

    def head(self, role):
        o = self.o
        mid = o.mid if role == 0 else o.mid1
        L = []
        e = L.append
        vm = ['K0'] * 4 + ['Q%d' % j for j in range(o.qe[role]) for _ in range(4)]

        def wait(*tags):
            last = max(i for i, t in enumerate(vm) if t in tags)
            e('s_waitcnt vmcnt(%d)' % (len(vm) - 1 - last))

        RAW = O(3, 0)
        TM = O(3, 4)

        def prescale(qb, st):
            b = RAW + 4 * st
            t0 = TM + 8 * (st & 1)
            P = []
            for j in range(4):
                P.append('v_lshlrev_b32 %s, 16, %s' % (vr(t0 + 2 * j), vr(b + j)))
                P.append('v_and_b32 %s, %s, %s' % (vr(t0 + 2 * j + 1), sr(S_TMP), vr(b + j)))
            P += ['v_pk_mul_f32 %s, %s, %s' % (vr(t0 + 2 * j, 2), vr(t0 + 2 * j, 2), sr(S_C, 2)) for j in range(4)]
            P += ['v_cvt_pk_bf16_f32 %s, %s, %s' % (vr(t0 + 2 * j), vr(t0 + 2 * j), vr(t0 + 2 * j + 1)) for j in range(4)]
            P += ['v_accvgpr_write_b32 %s, %s' % (ar(A_Q + 16 * qb + 4 * st + j), vr(t0 + 2 * j)) for j in range(4)]
            return P

        def dma_lines(x):
            kind, t = x[0], int(x[1:])
            if kind == 'T':
                vm.append('C')
                return [([], 'buffer_load_dword %s, %s, %s, 0 offen' % (vr(VT + 7), vr(VOG), sr(S_OD, 4)))]
            if kind == 'C':
                vm.append('C')
                return [([], 'global_load_dwordx4 %s, %s, off' % (vr(VT + 8, 4), vr(VT + 8, 2)))]
            vm.extend([x] * 4)
            if kind == 'Q':
                pre = self.q_pre(t)
            else:
                pre = ['s_mov_b32 %s, %d' % (sr(S_OFFV if kind == 'V' else S_OFFK), 16384 * t), self.m0_for(kind, t), 's_nop 0']
            return [(pre if i == 0 else [], self.dma(kind, i)) for i in range(4)]

        def background(seg, xs, start, step):
            items = [z for x in xs for z in dma_lines(x)]
            out, nxt = [], start
            for i, l in enumerate(seg):
                out.append(l)
                if items and i >= nxt and (ismf(l) or not (i + 1 < len(seg) and ismf(seg[i + 1]))):
                    pre, ld = items.pop(0)
                    out += pre + [ld]
                    nxt = i + step
            for pre, ld in items:
                out += pre + [ld]
            return out

        for x in mid[0]:
            if x[0] == 'w':
                wait(x[1:])
            else:
                for pre, ld in dma_lines(x):
                    L += pre + [ld]
        L += self.stamp('set')
        F = []
        for qb in range(4):
            if qb == 1:
                wait('Q1', 'V0')
                L += self.stamp('q1')
                e('s_barrier')
            else:
                wait('Q%d' % qb)
                L += self.stamp('q%d' % qb)
            G = ['ds_read_b128 %s, %s offset:%d' % (vr(RAW + 4 * st, 4), vr(VT + st), 4096 * qb) for st in range(4)]
            G += F
            c0 = [[self.qk_mfma(qb, kb, st, st == 0, czero=True) for kb in range(4)] for st in range(4)]
            vl = self.v_list(0) if qb == 1 else []
            for st in range(4):
                P = prescale(qb, st)
                if st and qb:
                    m = c0[st - 1]
                    P = P[:12]
                    Q = prescale(qb, st)[12:]
                    for k in range(4):
                        P += [m[k]] + vl[:2] + Q[2 * k:2 * k + 2]
                        vl = vl[2:]
                G += P
            if qb == 0:
                G.append('s_barrier')
                kr = [self.k_read(0, kb, st) for st in range(4) for kb in range(4)]
                G += kr[:12] + c0[0][:1] + kr[12:] + c0[0][1:] + c0[1] + c0[2]
            for m in c0[3]:
                G += [m] + vl[:2]
                vl = vl[2:]
            assert not vl
            if qb < 3:
                S0 = self.dmax(qb) + self.sm0(qb)
                F = S0[len(S0) - o.carry:]
                S0 = S0[:len(S0) - o.carry]
                if qb:
                    G += self.pack(self.pv(qb - 1), [[(2, l) for l in S0]], lambda g: o.hcap[2])
                else:
                    G += S0
            L += background(G, mid[qb + 1], 3, o.bgstep)
        wait('K1', 'C')
        L += self.stamp('k1')
        e('s_barrier')
        mf = self.pv(2) + self.qk(4) + self.pv(3)
        s1 = [(k // 2, self.k_read(1, kb, st)) for k, (kb, st, _) in enumerate(self.qk_slots())]
        s2 = [(1, l) for l in self.dmax(3) + self.sm0(3)]
        st4, pend = self.sm_stream(4, lambda k: 17 + 4 * (k >> 2) + 3 + 3, 0, 13)
        G = self.pack(mf, [s1, s2, st4], lambda g: o.hcap[0] if g < NP else o.hcap[1])
        self.before(G, self.sm0(3), NP)
        assert not pend
        vl = self.v_list(1)
        out, k, nm = [], 0, 0
        for l in G:
            out.append(l)
            if ismf(l):
                nm += 1
                if nm == 34:
                    out.append('WAIT_V1')
                if nm > 34 + 1 and (nm & 1) == 0:
                    out += vl[k:k + 2]
                    k += 2
        j = out.index('WAIT_V1')
        L += background(out[:j], mid[5], 12, 13)
        wait('V1')
        e('s_barrier')
        L += background(out[j + 1:], mid[6], 2, 13)
        self.v_left = vl[k:]
        kv = [x for x in vm if x[0] in 'KV']
        assert [x for x in kv if x[0] == 'K'] == [x for x in ['K0', 'K1', 'K2', 'K3'] for _ in range(4)], vm
        assert [x for x in kv if x[0] == 'V'] == [x for x in ['V0', 'V1', 'V2'] for _ in range(4)], vm
        assert vm[-4:] == ['K3'] * 4, vm
        e('s_mov_b32 %s, %d' % (sr(S_OFFK), 16384 * 4))
        e('s_mov_b32 %s, %d' % (sr(S_OFFV), 16384 * 3))
        L += self.stamp('first')
        P = self.steady(4, 6)
        out, nm, left = [], -1, list(self.v_left)
        for i, l in enumerate(P):
            out.append(l)
            if ismf(l):
                nm += 1
                if left and nm not in self.EG:
                    nx = P[i + 1]
                    take = 1 if nx.startswith('v_cvt') else 2
                    out += left[:take]
                    left = left[take:]
        assert not left
        return L + out + self.stamp('loop')

    def norm_group(self, qb, j, packed):
        rc = VT + 4 + 2 * qb
        a, b = O(qb, 2 * j), O(qb, 2 * j + 1)
        if packed:
            V = ['v_pk_mul_f32 %s, %s, %s op_sel_hi:[1,0]' % (vr(a + 2 * k, 2), vr(a + 2 * k, 2), vr(rc, 2)) for k in range(4)]
        else:
            V = ['v_mul_f32 %s, %s, %s' % (vr(a + k), vr(a + k), vr(rc)) for k in range(8)]
        V += ['v_cvt_pk_bf16_f32 %s, %s, %s' % (vr(a), vr(a), vr(a + 1)), 'v_cvt_pk_bf16_f32 %s, %s, %s' % (vr(a + 1), vr(a + 2), vr(a + 3)),
              'v_cvt_pk_bf16_f32 %s, %s, %s' % (vr(a + 2), vr(b), vr(b + 1)), 'v_cvt_pk_bf16_f32 %s, %s, %s' % (vr(a + 3), vr(b + 2), vr(b + 3))]
        return V + ['ds_write2_b64 %s, %s, %s offset0:%d offset1:%d' % (vr(VOW + qb), vr(a, 2), vr(a + 2, 2), 8 * j, 8 * j + 4)]

    def o_reads(self, qb):
        return ['ds_read_b128 %s, %s offset:%d' % (vr(O(qb, 2 * i + 1), 4), vr(VOR), OPITCH * (16 * qb + 8 * (i & 1)) + 128 * (i >> 1)) for i in range(4)]

    def o_stores(self, qb):
        return ['buffer_store_dwordx4 %s, %s, %s, %s offen offset:%d %s' % (vr(O(qb, 2 * i + 1), 4), vr(VOG), sr(S_OD, 4), sr(S_OQ + qb) if qb else '0', 2048 * (i & 1) + 128 * (i >> 1), self.o.oflag[qb])
                for i in range(4)]

    def final(self):
        o = self.o
        T = VT
        mf = self.qk(62) + self.pv(61) + self.qk(63) + self.pv(62) + self.pv(63)
        N = len(mf)
        PVS = {0: -100, 1: 16, 2: 49, 3: 66}
        c61, pc = self.sm_stream(61, lambda k: 0, 13, 16)
        c61 += [(0, 's_nop 0')] + pc
        a, pa = self.sm_stream(62, lambda k: 4 * (k >> 2) + 6)
        b, pb = self.sm_stream(63, lambda k: NP + 4 * (k >> 2) + 6)
        pace = lambda st, g0: [(max(r, g0 + (o.fpace * i) // 8), l) for i, (r, l) in enumerate(st)]
        s2 = c61 + pace(a + [(0, 's_nop 0')] + pa, 6) + pace(b + [(0, 's_nop 0')] + pb, NP + 6)
        s3 = []
        for qb in range(4):
            r = max(0, PVS[qb] + o.fchk)
            s3 += [(r, 'v_accvgpr_read_b32 %s, %s' % (vr(T + qb), ar(A_L + 4 * qb))),
                   (r, 'v_accvgpr_read_b32 %s, %s' % (vr(T + 5 + 2 * qb), ar(A_L + 4 * qb + 1))),
                   (r, 'v_add_f32 %s, %s, %s' % (vr(T + qb), vr(T + qb), vr(T + 5 + 2 * qb))),
                   (r, 'v_cmp_ngt_f32 vcc, %s, %s' % (sr(S_THR), vr(T + qb))),
                   (r, 'v_rcp_f32 %s, %s' % (vr(T + 4 + 2 * qb), vr(T + qb))),
                   (r + 1, 's_cbranch_vccnz L_slow' if not o.exp else 's_nop 0')]
        s4 = []
        groups = [(qb, j) for qb in range(4) for j in range(4)]
        for n, (qb, j) in enumerate(groups):
            ready = max(PVS[qb] + 1 + 4 * j + 3 + 3, PVS[qb] + o.fchk + 3, 3)
            late = ready >= N - o.fpk
            if late:
                ready = N + 1
            s4 += [(ready, l) for l in self.norm_group(qb, j, late)]
        fc = lambda g: o.fcap[min(g // NP, 2)]
        G = self.pack(mf, [[(0, 's_barrier')], s3, s2, s4], lambda g: int(fc(g) * (g + 1)) - int(fc(g) * g), lambda g: 1)
        todo = []
        out, nw = [], 0
        since = 99
        for i, l in enumerate(G):
            out.append(l)
            if l.startswith('ds_write2'):
                nw += 1
                if nw % 2 == 0:
                    qb, h = (nw - 1) // 4, ((nw - 1) >> 1) & 1
                    todo += [(i, r) for r in self.o_reads(qb)[2 * h:2 * h + 2]] + [(i + o.fsd, st) for st in self.o_stores(qb)[2 * h:2 * h + 2]]
                    todo.sort(key=lambda z: not z[1].startswith('ds_read'))
            since += 1
            left = any(ismf(x) for x in G[i + 1:])
            slot = (ismf(l) and not ismem(G[i + 1])) if left else not (i + 1 < len(G) and ismem(G[i + 1]))
            if slot and todo and todo[0][0] <= i:
                if todo[0][1].startswith('ds_read'):
                    out += [todo.pop(0)[1], todo.pop(0)[1]]
                elif since >= o.fstep:
                    out.append(todo.pop(0)[1])
                    since = 0
        G = out + [l for _, l in todo]
        for n, lo, slot in ((61, 0, 16), (62, 0, 49), (63, NP, 66)):
            self.before(G, [cv for _, cv in self.sm_seq(n)[13:] if cv], slot, lo)
        return G

    def plain_store(self):
        L = [l for qb in range(4) for j in range(4) for l in self.norm_group(qb, j, True)]
        for qb in range(4):
            L += self.o_reads(qb)
        L.append('s_waitcnt lgkmcnt(0)')
        for qb in range(4):
            L += self.o_stores(qb)
        return L

    def slow_path(self):
        L = []
        e = L.append
        T = VT
        M = V_C
        SK = V_S + 36
        SV = SK + 1
        SVA = SK + 4
        S = lambda qb: V_S + 8 * qb
        e('L_slow:')
        e('s_waitcnt vmcnt(0) lgkmcnt(0)')
        e('s_nop 7')
        e('v_mbcnt_lo_u32_b32 v1, -1, 0')
        e('v_mbcnt_hi_u32_b32 v1, -1, v1')
        e('v_and_b32 v2, 15, v1')
        e('v_lshrrev_b32 v3, 4, v1')
        e('v_lshlrev_b32 v2, 8, v2')
        e('v_lshl_add_u32 %s, v3, 4, v2' % vr(SK))
        e('v_subrev_u32 %s, %s, %s' % (vr(SV), sr(S_M0K), vr(VDV)))
        e('v_subrev_u32 %s, %s, %s' % (vr(SV + 1), sr(S_M0K), vr(VDV + 1)))
        e('s_sub_u32 s3, %s, %d' % (sr(S_STG), V_BASE))
        for db in range(8):
            e('v_add_u32 %s, s3, %s' % (vr(SVA + db), vr(VVA + db)))
        for i in range(128):
            e('v_mov_b32 %s, 0' % vr(V_O + i))
        for qb in range(4):
            e('v_mov_b32 %s, 0xff7fffff' % vr(M + qb))
            e('v_mov_b32 %s, 0' % vr(M + 4 + qb))
        e('s_mov_b32 %s, 0' % sr(S_CNT))
        e('L_slow_loop:')
        e('s_mov_b32 m0, %s' % sr(S_STG))
        e('s_add_u32 s31, %s, 4096' % sr(S_CNT))
        for i in range(4):
            e('buffer_load_dwordx4 %s, %s, %s offen offset:%d lds' % (vr(SV + (i & 1)), sr(S_V, 4), sr(S_CNT), 1024 * i))
        e('s_add_u32 m0, %s, 4096' % sr(S_STG))
        e('s_nop 0')
        for i in range(4):
            e('buffer_load_dwordx4 %s, %s, s31 offen offset:%d lds' % (vr(SV + (i & 1)), sr(S_V, 4), 1024 * i))
        for kb in range(2):
            for st in range(4):
                e('buffer_load_dwordx4 %s, %s, %s, %s offen offset:%d' % (ar(A_K + 16 * kb + 4 * st, 4), vr(SK), sr(S_K, 4), 's31' if kb else sr(S_CNT), 64 * st))
        e('s_waitcnt vmcnt(0)')
        for kb in range(2):
            for st in range(4):
                for qb in range(4):
                    d = vr(S(qb) + 4 * kb, 4)
                    e('%s %s, %s, %s, %s' % (MF, d, ar(A_K + 16 * kb + 4 * st, 4), ar(A_Q + 16 * qb + 4 * st, 4), d if st else '0'))
        for db in range(8):
            for j in range(2):
                e(self.v_read(0, 0, db, j, addr=SVA, base=0))
        for qb in range(4):
            s = S(qb)
            e('v_max3_f32 %s, %s, %s, %s' % (vr(T + qb), vr(M + qb), vr(s), vr(s + 1)))
            for k in range(1, 4):
                e('v_max3_f32 %s, %s, %s, %s' % (vr(T + qb), vr(T + qb), vr(s + 2 * k), vr(s + 2 * k + 1)))
        L += self.xlane('v_max_f32', [T + q for q in range(4)], [T + 4 + q for q in range(4)])
        for qb in range(4):
            e('v_sub_f32 %s, %s, %s' % (vr(M + 8 + qb), vr(M + qb), vr(T + qb)))
        for qb in range(4):
            e('v_exp_f32 %s, %s' % (vr(M + 8 + qb), vr(M + 8 + qb)))
        for qb in range(4):
            e('v_mov_b32 %s, %s' % (vr(M + qb), vr(T + qb)))
        for qb in range(4):
            s = S(qb)
            for r in range(8):
                e('v_sub_f32 %s, %s, %s' % (vr(s + r), vr(s + r), vr(T + qb)))
            for r in range(8):
                e('v_exp_f32 %s, %s' % (vr(s + r), vr(s + r)))
            e('v_mul_f32 %s, %s, %s' % (vr(M + 4 + qb), vr(M + 4 + qb), vr(M + 8 + qb)))
            for r in range(8):
                e('v_add_f32 %s, %s, %s' % (vr(M + 4 + qb), vr(M + 4 + qb), vr(s + r)))
            for j in range(4):
                e('v_cvt_pk_bf16_f32 %s, %s, %s' % (vr(s + j), vr(s + 2 * j), vr(s + 2 * j + 1)))
            for i in range(32):
                e('v_mul_f32 %s, %s, %s' % (vr(O(qb, 0) + i), vr(O(qb, 0) + i), vr(M + 8 + qb)))
        e('s_waitcnt lgkmcnt(0)')
        e('s_nop 1')
        for db in range(8):
            for qb in range(4):
                o = vr(O(qb, db), 4)
                e('%s %s, %s, %s, %s' % (MF, o, ar(A_V + 4 * db, 4), vr(S(qb), 4), o))
        e('s_nop 7')
        e('s_add_u32 %s, %s, 8192' % (sr(S_CNT), sr(S_CNT)))
        e('s_cmp_lt_u32 %s, 0x40000' % sr(S_CNT))
        e('s_cbranch_scc1 L_slow_loop')
        for qb in range(4):
            e('v_mov_b32 %s, %s' % (vr(T + qb), vr(M + 4 + qb)))
        L += self.xlane('v_add_f32', [T + q for q in range(4)], [T + 4 + q for q in range(4)])
        for qb in range(4):
            e('v_rcp_f32 %s, %s' % (vr(T + 4 + 2 * qb), vr(T + qb)))
        e('s_nop 0')
        L += self.plain_store()
        e('s_branch L_end')
        return L

    def stamps_out(self):
        if not self.o.stamps:
            return []
        L = []
        e = L.append
        L += self.stamp('stored')
        e('s_waitcnt vmcnt(0) lgkmcnt(0)')
        e('s_memrealtime s[100:101]')
        L += self.stamp()
        e('s_waitcnt lgkmcnt(0)')
        e('s_mov_b32 s84, s96')
        e('s_mov_b32 s85, s97')
        e('s_mov_b32 s86, 0x100000')
        e('s_mov_b32 s87, 0x20000')
        e('s_getreg_b32 s88, hwreg(HW_REG_XCC_ID)')
        e('s_getreg_b32 s89, hwreg(HW_REG_HW_ID)')
        e('s_lshl_b32 s3, s2, 2')
        e('s_add_u32 s3, s3, %s' % sr(S_W))
        e('s_lshl_b32 s3, s3, 8')
        e('v_mov_b32 v1, s3')
        vals = [98, 99, 100, 101, 88, 89] + [S_TS + 4 * k for k in range(10)] + [S_TS + 4 * k + 2 for k in range(10)]
        e('s_mov_b64 exec, 1')
        for k, s in enumerate(vals):
            e('v_mov_b32 v2, s%d' % s)
            e('buffer_store_dword v2, v1, s[84:87], 0 offen offset:%d' % (4 * k))
        if self.o.probe:
            a, b, wg = [int(x) for x in self.o.probe.split(',')]
            e('s_cmp_eq_u32 s2, %d' % wg)
            e('s_cbranch_scc0 L_done')
            e('s_cmp_eq_u32 %s, 0' % sr(S_W))
            e('s_cbranch_scc0 L_done')
            e('s_sub_u32 s30, s%d, s%d' % (S_TS + 4 * b + 2, S_TS + 4 * a + 2))
            e('s_mul_i32 s30, s30, 10')
            e('s_add_u32 s30, s30, 10000')
            e('L_spin:')
            e('s_sleep 1')
            e('s_memrealtime s[34:35]')
            e('s_waitcnt lgkmcnt(0)')
            e('s_sub_u32 s34, s34, s98')
            e('s_cmp_lt_u32 s34, s30')
            e('s_cbranch_scc1 L_spin')
        return L

    def build(self):
        o = self.o
        com = self.common()
        n0 = self.nts
        com1 = com
        if 'L_qskip:' in com:
            com1 = com[:com.index('s_cbranch_scc1 L_qskip') + 1] + com[com.index('L_qskip:'):]
        pro1 = []
        if o.roles:
            pro1 = ['L_role1:'] + self.fix_hazards(com1, self.auto_lgkm(self.head(1), o.hage)) + ['s_branch L_loop']
            self.nts = n0
        pro = com + self.fix_hazards(com, self.auto_lgkm(self.head(0), o.hage))
        st_a = []
        body = [self.auto_lgkm(self.steady(4 * t + 2, 4 * t + 6), o.age) for t in range(1, 5)]
        inc, cmp_ = 's_add_u32 %s, %s, 1' % (sr(S_CNT), sr(S_CNT)), 's_cmp_lt_u32 %s, 3' % sr(S_CNT)
        b = body[3]
        ms = [i for i, l in enumerate(b) if ismf(l)]
        b.insert(ms[-2] + 1, cmp_)
        assert not any(l.startswith('s_add') for l in b[ms[-2]:])
        b.insert(ms[-4] + 1, inc)
        b.append('s_cbranch_scc1 L_loop')
        st_b = self.stamp('body')
        g13 = self.auto_lgkm(self.steady(54, 58, vmw=8, kdma=False, vdma=False), o.age)
        g14 = self.steady(58, 61, vmw=0, kdma=False, vdma=False)
        st_c = self.stamp('fin')
        fin = self.fix_hazards(g13, self.auto_lgkm(g14 + st_c + self.final(), o.age))
        for pat in o.drop:
            fin = [l for l in fin if not l.startswith(pat)]
        so = self.stamps_out()
        slow = self.slow_path()

        text = pro + st_a + ['; ---- steady state: 4 tiles per trip, per q block QK(next) | row sum | PV, softmax in the MFMA gaps ----']
        if o.align:
            text.append('.p2align %d' % o.align)
        text.append('L_loop:')
        for x in body:
            text += x
        text += st_b + ['; ---- last tiles, overflow check, scaling and stores ----'] + g13 + fin + ['L_end:'] + so + ['L_done:', 's_endpgm']
        text += ['; ---- start-up of the second q head of a pair (same work, its Q is requested a little later) ----'] + pro1
        text += ['; ---- guarded path: true running max ----'] + slow

        loop = [l for x in body for l in x]
        probs = check_trace(pro + st_a + loop * 3 + st_b + g13 + fin + so)
        if o.roles:
            probs += check_trace(com1 + pro1 + loop)
        i0 = slow.index('L_slow_loop:')
        i1 = slow.index('s_cbranch_scc1 L_slow_loop')
        for kb in [i for i, l in enumerate(fin) if 'L_slow' in l]:
            probs += check_trace(g13 + fin[:kb + 1] + slow[:i1 + 1] + slow[i0:])
        return text, probs, [pro, body[0], fin]

    def emit(self):
        text, probs, parts = self.build()
        out = []
        for l in open(self.o.ref).read().split('\n'):
            if l.startswith('; @launch'):
                out.append('; @launch grid=(256,1,1) block=(256,1,1) lds=163840')
            elif l.startswith(';'):
                out.append(l)
            else:
                break
        out += DOC
        out += ['.amdgcn_target "amdgcn-amd-amdhsa--gfx950"', '.text', '.globl %s_kernel' % NAME, '.p2align 8',
                '.type %s_kernel,@function' % NAME, '%s_kernel:' % NAME]
        for l in text:
            out.append(l if (l.endswith(':') or l.startswith('.') or l.startswith(';')) else '    ' + l)
        out += ['.section .rodata,"a"', '.p2align 6', '.amdhsa_kernel %s_kernel' % NAME,
                '  .amdhsa_next_free_vgpr 472', '  .amdhsa_next_free_sgpr 102', '  .amdhsa_accum_offset 256',
                '  .amdhsa_group_segment_fixed_size 0', '  .amdhsa_kernarg_size 48', '  .amdhsa_user_sgpr_count 2',
                '  .amdhsa_user_sgpr_kernarg_segment_ptr 1', '  .amdhsa_system_sgpr_workgroup_id_x 1',
                '  .amdhsa_float_denorm_mode_32 3', '  .amdhsa_float_denorm_mode_16_64 3',
                '.end_amdhsa_kernel', '']
        return '\n'.join(out), probs, parts


def ilist(s):
    return [int(x) for x in s.split(',')]


def mlist(s):
    return [x.split(',') if x else [] for x in s.split('/')]


def parse(argv):
    ap = argparse.ArgumentParser()
    ap.add_argument('-o', default='cdna_kernels/%s.s' % NAME)
    ap.add_argument('--ref', default='cdna_kernels/%s.s.ref' % NAME)
    ap.add_argument('--thr', type=float, default=32)
    ap.add_argument('--stamps', action='store_true')
    ap.add_argument('--st', type=lambda s: s.split(','), default=['q0', 'q3', 'k1', 'first', 'loop', 'body', 'fin', 'stored'])
    ap.add_argument('--probe', default='')
    ap.add_argument('--nodma', action='store_true')
    ap.add_argument('--nobar', action='store_true')
    ap.add_argument('--show', type=int, default=-1)
    ap.add_argument('--exp', default='')
    ap.add_argument('--drop', type=lambda s: s.split(','), default=[])
    ap.add_argument('--align', type=int, default=6)
    ap.add_argument('--age', type=int, default=12)
    ap.add_argument('--hage', type=int, default=24)
    ap.add_argument('--kdg', type=int, default=3)
    ap.add_argument('--vdg', type=int, default=7)
    ap.add_argument('--dstride', type=int, default=4)
    ap.add_argument('--roles', type=int, default=1)
    ap.add_argument('--qe', type=ilist, default=[1, 1])
    ap.add_argument('--mid', type=mlist, default=mlist('V0,Q1/Q2,C0/Q3/K1/V1/K2,V2/K3'))
    ap.add_argument('--mid1', type=mlist, default=mlist('V0/Q1,C0/Q2/Q3,K1/V1/K2,V2/K3'))
    ap.add_argument('--bgstep', type=int, default=14)
    ap.add_argument('--carry', type=int, default=16)
    ap.add_argument('--cover', type=int, default=5)
    ap.add_argument('--hcap', type=ilist, default=[4, 3, 4])
    ap.add_argument('--fcap', type=lambda s: [float(x) for x in s.split(',')], default=[6, 6, 6])
    ap.add_argument('--fpace', type=int, default=8)
    ap.add_argument('--fpk', type=int, default=4)
    ap.add_argument('--fsd', type=int, default=14)
    ap.add_argument('--fstep', type=int, default=9)
    ap.add_argument('--fchk', type=int, default=4)
    ap.add_argument('--kvflag', type=lambda s: s.replace('+', ' ') + ' ' if s else '', default='')
    ap.add_argument('--qflag', type=lambda s: s.replace('+', ' ') + ' ' if s else '', default='')
    ap.add_argument('--oflag', type=lambda s: ([x.replace('+', ' ') for x in s.split(',')] * 4)[:4], default=['nt'] * 4)
    return ap.parse_args(argv)


SHORT = [('v_smfmac_f32_16x16x64_bf16', 'S'), ('v_mfma_f32_16x16x32_bf16', 'M'), ('v_exp_f32', 'e'), ('ds_read_b64_tr_b16', 't'), ('v_cvt_pk_bf16_f32', 'c'), ('ds_read_b128', 'R'), ('s_waitcnt', 'w'),
         ('v_add_f32', 'a'), ('s_add_u32', 's'), ('s_mov_b32', 's'), ('s_barrier', 'BAR'), ('v_permlane32_swap_b32', 'x'), ('v_permlane16_swap_b32', 'x'),
         ('buffer_load_dwordx4', 'D'), ('v_pk_mul_f32', 'P'), ('s_nop', 'n'), ('v_accvgpr_write_b32', 'A'), ('v_lshlrev_b32', 'l'), ('v_and_b32', '&'),
         ('v_max3_f32', 'mx'), ('v_max_f32', 'mx'), ('v_mov_b32', 'mv'), ('v_sub_f32', 'sb'), ('global_load_dwordx4', 'G'), ('v_mul_f32', 'm'),
         ('ds_write2_b64', 'W'), ('buffer_store_dwordx4', 'ST'), ('v_accvgpr_read_b32', 'acc'), ('v_cmp_ngt_f32', 'cmp'), ('v_rcp_f32', 'rcp'), ('s_cbranch_vccnz', 'br')]

if __name__ == '__main__':
    o = parse(sys.argv[1:])
    g = Gen(o)
    s, probs, parts = g.emit()
    open(o.o, 'w').write(s)
    if o.show >= 0:
        d = dict(SHORT)
        cur, k = [], -1
        for l in parts[o.show] + [MF]:
            if ismf(l):
                print('%d: %s' % (k, ' '.join(cur)))
                cur = []
                k += 1
            cur.append(d.get(l.split()[0], l.split()[0]))
    for p in probs[:40]:
        print('HAZARD', p)
    print('%d hazard findings' % len(probs))
```

```python
import sys, math, struct, argparse, re
from asmlib import I, check_trace

NAME = 'standalone__gqa_softmax__near_ridge'

V_O = 8
V_S = 136
V_C = 200
VKA = 216
VVA = 220
VDK = 228
VDV = 232
VOW = 234
VOR = 238
VOG = 240
VT = 244
VIX = 168
NP = 33
A_Q = 0
A_K = 64
A_V = 128
A_L = 192
A_1 = 208

S_Q, S_K, S_V, S_OD = 4, 8, 12, 16
S_W, S_M0K, S_M0V, S_OFFK, S_OFFV, S_CNT = 20, 21, 22, 23, 24, 25
S_C = 26
S_QOFF = 28
S_THR = 29
S_TMP = 30
S_STG = 32
S_QLDS = 33
S_TS = 40
S_OQ = 80
S_QB = 84
OPITCH = 272
V_BASE = 98304
MF = 'v_mfma_f32_16x16x32_bf16'


DOC = '''; Flash-style attention, one workgroup per (batch, q head): 4 waves x 64 query rows, all 1024 keys in 64-key tiles.
;  - K/V tiles stream through a 4-slot LDS ring by LDS-DMA (XOR-swizzled source, conflict-free reads); the two q heads of
;    one kv head run on workgroups 8 ids apart so that they share the L2 lines (speed only).
;  - S^T = K.(c*Q)^T with c = log2(e)/sqrt(128) folded into Q, O^T += V^T.P^T, 16x16x32 bf16 MFMA, fp32 accumulation;
;    row sums come from one 2:4-sparse MFMA per tile against a pattern of ones.
;  - softmax guard: every row subtracts its true max over the first 32 keys (fed in as the MFMA C operand). That value is
;    <= the row max, so nothing underflows that the true max would keep; overflow is caught at run time: if any row sum
;    is not < 2^32 (or is NaN) the wave redoes its rows in L_slow with a true running max (online softmax).
;  - finished q blocks are scaled by 1/sum, packed to bf16, transposed through LDS and stored as full 128-byte lines.'''.split('\n')


def f2u(x):
    return struct.unpack('<I', struct.pack('<f', x))[0]


def vr(b, n=1):
    return 'v%d' % b if n == 1 else 'v[%d:%d]' % (b, b + n - 1)


def ar(b, n=1):
    return 'a%d' % b if n == 1 else 'a[%d:%d]' % (b, b + n - 1)


def sr(b, n=1):
    return 's%d' % b if n == 1 else 's[%d:%d]' % (b, b + n - 1)


def SB(n):
    return V_S + 16 * (n & 1)


def O(qb, db):
    return V_O + 32 * qb + 4 * db


def ismf(l):
    return l.startswith(MF) or l.startswith('v_smfmac')


def ismem(l):
    return I(l).kind in ('dsr', 'dsw', 'vst', 'dma', 'vld', 'wait', 'barrier', 'sctl', 'salu', 'smem')


def cost(l):
    x = I(l)
    if x.kind == 'valu' and (x.trans or x.op.startswith('v_permlane')):
        return 2
    if x.kind == 'nop':
        return x.n
    return 1


E32 = ('v_add_f32', 'v_sub_f32', 'v_mul_f32', 'v_max_f32', 'v_mov_b32', 'v_exp_f32', 'v_rcp_f32', 'v_lshlrev_b32', 'v_lshrrev_b32', 'v_and_b32',
       'v_xor_b32', 'v_add_u32', 'v_subrev_u32', 'v_mul_u32_u24', 'v_cndmask_b32', 'v_cmp_ngt_f32', 'v_cmp_eq_u32', 'v_readfirstlane_b32',
       'v_permlane32_swap_b32', 'v_permlane16_swap_b32', 'v_add_co_u32', 'v_addc_co_u32')
WIDEN = E32[:10]


def has_literal(l):
    for t in re.findall(r'[ ,](-?0x[0-9a-fA-F]+|-?\d+)(?=,|$)', l.split(';')[0].rstrip()):
        if not -16 <= int(t, 0) <= 64:
            return True
    return 'L_' in l and not l.startswith('s_cbranch') and not l.startswith('s_branch')


def isize(l):
    op = l.split()[0] if l.split() else ''
    if not op or l.endswith(':') or op.startswith('.') or op.startswith(';'):
        return 0
    if op.startswith('s_load') or op in ('s_memtime', 's_memrealtime'):
        return 8
    if op.startswith('s_'):
        if op in ('s_waitcnt', 's_nop', 's_movk_i32', 's_sleep', 's_getreg_b32'):
            return 4
        return 8 if has_literal(l) else 4
    if op in E32:
        return 8 if has_literal(l) else 4
    return 8


def keep_phase(lines, start=0):
    out, off, cand = [], start, None
    for l in lines:
        n = isize(l)
        if n == 8 and off % 8 == 4 and cand is not None:
            out[cand] = out[cand].replace(out[cand].split()[0], out[cand].split()[0] + '_e64', 1)
            off += 4
        if n == 8 or l.endswith(':'):
            cand = None
        out.append(l)
        if n == 4 and l.split()[0] in WIDEN:
            cand = len(out) - 1
        off += n
    return out


class Gen:
    def __init__(self, opt):
        self.o = opt
        self.nts = 0

    def qk_slots(self):
        return [(kb, st if kb % 2 == 0 else 3 - st, st == 0) for kb in range(4) for st in range(4)]

    def qk_mfma(self, n, kb, st, first, czero=False):
        qb = n & 3
        d = vr(SB(n) + 4 * kb, 4)
        c = d if not first else ('0' if czero else vr(V_C + 4 * qb, 4))
        return '%s %s, %s, %s, %s' % (MF, d, ar(A_K + 16 * kb + 4 * st, 4), ar(A_Q + 16 * qb + 4 * st, 4), c)

    def qk(self, n):
        return [self.qk_mfma(n, *a) for a in self.qk_slots()]

    def pv(self, n):
        qb = n & 3
        z = n < 4
        out = ['v_smfmac_f32_16x16x64_bf16 %s, %s, %s, %s' % (ar(A_L + 4 * qb, 4), ar(A_1, 4), vr(SB(n), 8), vr(VIX))]
        for db in range(8):
            o = vr(O(qb, db), 4)
            out += ['%s %s, %s, %s, %s' % (MF, o, ar(A_V + 32 * h + 4 * db, 4), vr(SB(n) + 4 * h, 4), '0' if (z and h == 0) else o) for h in range(2)]
        return out

    def k_read(self, t, kb, st):
        return 'ds_read_b128 %s, %s offset:%d' % (ar(A_K + 16 * kb + 4 * st, 4), vr(VKA + st), (t & 3) * 16384 + kb * 4096)

    def v_read(self, t, h, db, j, addr=VVA, base=None):
        off = ((t + 1) & 3) * 16384 + h * 8192 if base is None else base
        return 'ds_read_b64_tr_b16 %s, %s offset:%d' % (ar(A_V + 32 * h + 4 * db + 2 * j, 2), vr(addr + db), off + j * 4096)

    def v_list(self, t):
        return [self.v_read(t, h, db, j) for db in range(8) for h in range(2) for j in range(2)]

    def sm_seq(self, n):
        seq = []
        for kb in range(4):
            s = SB(n) + 4 * kb
            for r in range(4):
                cv = None
                if r & 1:
                    cv = 'v_cvt_pk_bf16_f32 %s, %s, %s' % (vr(SB(n) + 2 * kb + (r >> 1)), vr(s + r - 1), vr(s + r))
                seq.append(('v_exp_f32 %s, %s' % (vr(s + r), vr(s + r)), cv))
        return seq

    def sm_stream(self, n, ready=lambda k: 0, lo=0, hi=16):
        out, pend = [], []
        for k, (ex, cv) in list(enumerate(self.sm_seq(n)))[lo:hi]:
            out.append((ready(k), ex))
            out += pend
            pend = [(ready(k), cv)] if cv else []
        return out, pend

    def dma(self, kind, i):
        o = self.o
        if kind == 'K':
            return 'buffer_load_dwordx4 %s, %s, %s offen offset:%d %slds' % (vr(VDK + i), sr(S_K, 4), sr(S_OFFK), 1024 * i, o.kvflag)
        if kind == 'V':
            return 'buffer_load_dwordx4 %s, %s, %s offen offset:%d %slds' % (vr(VDV + (i & 1)), sr(S_V, 4), sr(S_OFFV), 1024 * i, o.kvflag)
        return 'buffer_load_dwordx4 %s, %s, %s offen offset:%d %slds' % (vr(VDK + i), sr(S_Q, 4), sr(S_QOFF), 1024 * i, o.qflag)

    def m0_for(self, kind, t):
        return 's_add_u32 m0, %s, %d' % (sr(S_M0V if kind == 'V' else S_M0K), ((t + (kind == 'V')) & 3) * 16384)

    def q_pre(self, j):
        return ['s_add_u32 m0, %s, %d' % (sr(S_QLDS), 4096 * j), 's_add_u32 %s, %s, %d' % (sr(S_QOFF), sr(S_QB), 4096 * j)]

    def stamp(self, name=None):
        if not self.o.stamps or (name is not None and name not in self.o.st):
            return []
        k = self.nts
        self.nts += 1
        return ['s_memtime %s' % sr(S_TS + 4 * k, 2), 's_memrealtime %s' % sr(S_TS + 4 * k + 2, 2)]

    def pack(self, mf, streams, cap, nmem=lambda g: 2):
        out = []
        for g in range(len(mf)):
            mem, val = [], []
            c = 0
            for q in streams:
                while q and q[0][0] <= g and ismem(q[0][1]) and len(mem) < nmem(g):
                    mem.append(q.pop(0)[1])
                    c += 1
            for q in streams:
                while q and q[0][0] <= g and not ismem(q[0][1]) and c + cost(q[0][1]) <= cap(g):
                    c += cost(q[0][1])
                    val.append(q.pop(0)[1])
            out.append(mf[g])
            out += mem + val
        return out + [l for q in streams for _, l in q]

    @staticmethod
    def before(lines, items, slot, lo=0):
        ms = [i for i, l in enumerate(lines) if ismf(l)]
        head = lines[ms[lo]:ms[slot]]
        for l in items:
            assert l.startswith('s_nop') or l in head, (slot, l)

    @staticmethod
    def auto_lgkm(lines, age=16):
        out, pend = [], []
        for k, l in enumerate(lines):
            x = I(l)
            if x.kind == 'wait' and x.lgkm is not None:
                pend = pend[len(pend) - x.lgkm:] if x.lgkm else []
            touched = set(x.uses) | set(x.defs)
            idx = [i for i, (r, _, _) in enumerate(pend) if touched & set(r)]
            if idx:
                last = max(idx)
                pos = len(out)
                if x.kind == 'mfma':
                    j = len(out) - 1
                    while j >= 0 and not ismf(out[j]):
                        j -= 1
                    if j >= 0 and pend[last][2] <= j:
                        pos = j + 1
                early = [p for p in pend if p[2] < pos]
                while last + 1 < len(early) and early[last + 1][1] <= k - age:
                    last += 1
                n = min(15, len(early) - 1 - last)
                out.insert(pos, 's_waitcnt lgkmcnt(%d)' % n)
                keep = early[len(early) - n:] if n else []
                pend = keep + [(r, kk, p + 1) for r, kk, p in pend[len(early):]]
            out.append(l)
            if x.kind == 'dsr':
                pend.append((x.defs, k, len(out) - 1))
            if x.kind == 'dsw':
                pend.append(([], k, len(out) - 1))
        return out

    @staticmethod
    def fix_hazards(prefix, lines):
        lines = list(lines)
        for _ in range(300):
            pr = [p for p in check_trace(prefix + lines) if int(p.split(':')[0]) >= len(prefix)]
            if not pr:
                return lines
            p = pr[0]
            m = re.search(r'needs (\d+),? has (\d+)', p)
            assert 'pending' not in p, p
            n = int(m.group(1)) - int(m.group(2)) if m else 1
            lines.insert(int(p.split(':')[0]) - len(prefix), 's_nop %d' % (n - 1))
        raise RuntimeError('hazards keep coming')

    EG = list(range(1, 32, 2))

    def steady(self, n0, n1, vmw=8, kdma=True, vdma=True, bar=True):
        o = self.o
        mf, shadow, valu, isexp = [], [], [], []
        for n in range(n0, n1):
            mf += self.qk(n + 1) + self.pv(n)
            v = [[] for _ in range(NP)]
            seq = self.sm_seq(n)[13:] + self.sm_seq(n + 1)[:13]
            for g, (ex, cv) in zip(self.EG, seq):
                v[g].append(ex)
                if cv:
                    v[g + 1].append(cv)
            valu += v
            shadow += [[] for _ in range(NP)]
            isexp += [g in self.EG for g in range(NP)]
        N = len(mf)
        free = lambda g: 0 if isexp[g] else 2 - len(valu[g]) - len([x for x in shadow[g] if not x.startswith('s_add')])

        def put(items):
            g, dbl = 0, False
            for ready, l in items:
                g = max(g, ready)
                while free(g) < 1 or (shadow[g] and g > 0 and len(shadow[g - 1]) == 2):
                    g += 1
                shadow[g].append(l)
            return g

        def put_dma(kind, t, g, step):
            off = S_OFFV if kind == 'V' else S_OFFK
            shadow[g].append(self.m0_for(kind, t))
            g += 1
            for i in range(4):
                while free(g) < 1:
                    g += 1
                shadow[g].append(self.dma(kind, i))
                g += step
            shadow[g - step + 1].append('s_add_u32 %s, %s, 16384' % (sr(off), sr(off)))
        for n in range(n0, n1):
            b = NP * (n - n0)
            t = n >> 2
            if n & 3 == 2 and t < 15:
                if bar and not o.nobar:
                    shadow[b] += ['s_waitcnt vmcnt(%d)' % vmw, 's_barrier']
                put([(b + max(s, 1), self.k_read(t + 1, kb, st)) for s, (kb, st, _) in enumerate(self.qk_slots())])
            if n & 3 == 3 and t < 15:
                put([(b + 17 + k // 2, l) for k, l in enumerate(self.v_list(t + 1))])
                if kdma and not o.nodma:
                    put_dma('K', t + 3, b + o.kdg, o.dstride)
            if n & 3 == 1 and vdma and not o.nodma:
                put_dma('V', t + 2, b + o.vdg, o.dstride)
        out = []
        for g in range(N):
            if g % NP == 4 and not shadow[g]:
                shadow[g].append('s_nop 0')
            out.append(mf[g])
            out += shadow[g] + valu[g]
        return out

    def xlane(self, op, regs, tmps):
        L = []
        for sw in ('v_permlane32_swap_b32', 'v_permlane16_swap_b32'):
            L += ['v_mov_b32 %s, %s' % (vr(t), vr(r)) for r, t in zip(regs, tmps)]
            if len(regs) < 3:
                L.append('s_nop 1')
            L += ['%s %s, %s' % (sw, vr(r), vr(t)) for r, t in zip(regs, tmps)]
            L += ['%s %s, %s, %s' % (op, vr(r), vr(r), vr(t)) for r, t in zip(regs, tmps)]
        return L

    def common(self):
        o = self.o
        L = []
        e = L.append
        e('s_load_dwordx8 s[88:95], s[0:1], 0')
        e('s_cmp_ge_u32 s2, 256')
        e('s_cbranch_scc1 L_done')
        e('s_getpc_b64 s[34:35]')
        e('L_pc:')
        e('v_lshlrev_b32 v4, 4, v0')
        if o.roles:
            e('s_bitcmp1_b32 s2, 3')
            e('s_cselect_b32 s3, L_role1 - L_pc, 0')
            e('v_add_u32 v4, s3, v4')
        e('v_add_co_u32 v8, vcc, s34, v4')
        e('v_mov_b32 v9, s35')
        e('v_lshrrev_b32 v2, 6, v0')
        e('v_addc_co_u32 v9, vcc, 0, v9, vcc')
        e('global_load_dwordx4 %s, v[8:9], off' % vr(V_C, 4))
        if o.stamps:
            e('s_load_dwordx2 s[96:97], s[0:1], 40')
            e('s_memrealtime s[98:99]')
        L += self.stamp()
        e('v_bfe_u32 v5, v0, 4, 2')
        e('v_readfirstlane_b32 %s, v2' % sr(S_W))
        e('v_and_b32 v6, 15, v0')
        e('v_lshlrev_b32 v7, 8, v5')
        e('v_lshl_add_u32 v7, v2, 12, v7')
        e('v_xor_b32 v3, v6, v5')
        e('v_lshl_add_u32 %s, v3, 4, v7' % vr(VDK))
        for i in range(1, 4):
            e('v_xor_b32 %s, %d, %s' % (vr(VDK + i), i << 6, vr(VDK)))
        e('s_and_b32 s30, s2, 7')
        e('s_lshr_b32 s3, s2, 4')
        e('s_lshl4_add_u32 s30, s30, s3')
        e('s_bfe_u32 s31, s2, 0x10003')
        e('s_lshl1_add_u32 s31, s30, s31')
        e('s_lshl_b32 s30, s30, 18')
        e('s_lshl_b32 s31, s31, 16')
        e('s_lshl_b32 %s, %s, 12' % (sr(S_M0K), sr(S_W)))
        e('s_mul_i32 %s, %s, 12288' % (sr(S_QB), sr(S_W)))
        e('s_lshl2_add_u32 %s, %s, 0xc000' % (sr(S_QLDS), sr(S_M0K)))
        e('s_mov_b32 %s, 0' % sr(S_OFFK))
        e('s_mov_b32 s10, 0x40000')
        e('s_mov_b32 s11, 0x20000')
        e('s_mov_b32 s6, 0x10000')
        e('s_mov_b32 s7, 0x20000')
        e('s_mov_b32 m0, %s' % sr(S_M0K))
        e('s_waitcnt lgkmcnt(0)')
        L += self.stamp('karg')
        e('s_add_u32 s8, s90, s30')
        e('s_addc_u32 s9, s91, 0')
        L += [self.dma('K', i) for i in range(4)]
        e('s_add_u32 s4, s88, s31')
        e('s_addc_u32 s5, s89, 0')
        for j in range(o.qe[0]):
            if o.vearly and j == o.vearly:
                L += self.v_setup() + ['s_mov_b32 %s, 0' % sr(S_OFFV), self.m0_for('V', 0), 's_nop 0'] + [self.dma('V', i) for i in range(4)]
            if o.roles and j == o.qe[1]:
                e('s_bitcmp1_b32 s2, 3')
                e('s_cbranch_scc1 L_qskip')
            L += self.q_pre(j) + [self.dma('Q', i) for i in range(4)]
        if o.vearly and o.vearly == o.qe[0]:
            assert o.qe[0] == o.qe[1] or not o.roles
            L += self.v_setup() + ['s_mov_b32 %s, 0' % sr(S_OFFV), self.m0_for('V', 0), 's_nop 0'] + [self.dma('V', i) for i in range(4)]
        if o.roles and o.qe[1] < o.qe[0]:
            e('L_qskip:')
        L += self.stamp('iss')
        e('v_and_b32 v1, 63, v0')
        e('s_lshr_b32 s3, s2, 3')
        e('s_lshl2_add_u32 s3, s3, %s' % sr(S_W))
        e('s_and_b32 s3, s3, 31')
        e('s_min_u32 s3, s3, (L_slow - L_pc) / 1024 - 4')
        e('s_lshl_b32 s3, s3, 10')
        e('s_add_u32 s3, s3, 4096')
        e('s_add_u32 s34, s34, s3')
        e('s_addc_u32 s35, s35, 0')
        e('v_lshlrev_b32 v3, 4, v1')
        e('v_add_co_u32 %s, vcc, s34, v3' % vr(VT + 8))
        e('v_mov_b32 %s, s35' % vr(VT + 9))
        e('s_nop 0')
        e('v_addc_co_u32 %s, vcc, 0, %s, vcc' % (vr(VT + 9), vr(VT + 9)))
        if not o.vearly:
            L += self.v_setup()
        e('s_add_u32 s16, s94, s31')
        e('s_addc_u32 s17, s95, 0')
        e('s_mov_b32 s18, 0x10000')
        e('s_mov_b32 s19, 0x20000')
        e('v_xor_b32 v3, v5, v6')
        e('v_lshlrev_b32 v4, 8, v6')
        e('v_lshl_add_u32 %s, v3, 4, v4' % vr(VKA))
        for st in range(1, 4):
            e('v_xor_b32 %s, %d, %s' % (vr(VKA + st), st << 6, vr(VKA)))
        for st in range(4):
            e('v_add_u32 %s, %s, %s' % (vr(VT + st), sr(S_QLDS), vr(VKA + st)))
        c = math.log2(math.e) / math.sqrt(128.0)
        e('s_mov_b32 %s, 0x%08x' % (sr(S_C), f2u(c)))
        e('s_mov_b32 %s, 0x%08x' % (sr(S_C + 1), f2u(c)))
        e('s_mov_b32 %s, 0x%08x' % (sr(S_THR), f2u(2.0 ** o.thr)))
        e('s_mov_b32 %s, 0xffff0000' % sr(S_TMP))
        e('v_lshrrev_b32 v3, 2, v1')
        e('v_lshlrev_b32 v2, 8, v3')
        e('v_and_b32 v3, 7, v3')
        e('v_lshl_add_u32 v2, v3, 5, v2')
        e('v_and_b32 v3, 3, v1')
        e('v_lshl_add_u32 v2, v3, 3, v2')
        e('v_add_u32 %s, %d, v2' % (vr(VVA), V_BASE))
        for db in range(1, 8):
            e('v_xor_b32 %s, %d, %s' % (vr(VVA + db), db << 5, vr(VVA)))
        e('s_mul_i32 %s, %s, %d' % (sr(S_STG), sr(S_W), 4 * OPITCH * 16))
        e('v_mul_u32_u24 v3, %d, v6' % OPITCH)
        e('v_lshl_add_u32 v3, v5, 3, v3')
        e('v_add_u32 %s, %s, v3' % (vr(VOW), sr(S_STG)))
        for qb in range(1, 4):
            e('v_add_u32 %s, %d, %s' % (vr(VOW + qb), qb * OPITCH * 16, vr(VOW)))
        e('v_lshrrev_b32 v2, 3, v1')
        e('v_and_b32 v4, 7, v1')
        e('v_mul_u32_u24 v3, %d, v2' % OPITCH)
        e('v_lshl_add_u32 v3, v4, 4, v3')
        e('v_add_u32 %s, %s, v3' % (vr(VOR), sr(S_STG)))
        e('s_lshl_b32 s3, %s, 14' % sr(S_W))
        e('v_lshlrev_b32 v3, 8, v2')
        e('v_lshl_add_u32 v3, v4, 4, v3')
        e('v_add_u32 %s, s3, v3' % vr(VOG))
        for qb in range(1, 4):
            e('s_movk_i32 %s, %d' % (sr(S_OQ + qb), 4096 * qb))
        e('v_and_b32 v3, 2, v1')
        e('v_cmp_eq_u32 vcc, 0, v3')
        e('v_mov_b32 v2, 0x3f803f80')
        e('s_mov_b32 %s, 0' % sr(S_CNT))
        e('v_cndmask_b32 v3, 0, v2, vcc')
        for j in range(4):
            e('v_accvgpr_write_b32 %s, v3' % ar(A_1 + j))
        e('v_and_b32 v3, 1, v1')
        e('v_cmp_eq_u32 vcc, 0, v3')
        e('v_mov_b32 v2, 0x44444444')
        e('v_mov_b32 v3, 0xeeeeeeee')
        e('v_cndmask_b32 %s, v3, v2, vcc' % vr(VIX))
        for j in range(16):
            e('v_accvgpr_write_b32 %s, 0' % ar(A_L + j))
        if o.roles:
            e('s_bitcmp1_b32 s2, 3')
            e('s_cbranch_scc1 L_role1')
        return L

    def v_setup(self):
        return ['s_add_u32 s12, s92, s30', 's_addc_u32 s13, s93, 0', 's_mov_b32 s14, 0x40000', 's_mov_b32 s15, 0x20000',
                's_add_u32 %s, %s, %d' % (sr(S_M0V), sr(S_M0K), V_BASE), 'v_lshlrev_b32 v3, 1, v5', 'v_xor_b32 v3, v6, v3',
                'v_lshl_add_u32 %s, v3, 4, v7' % vr(VDV), 'v_xor_b32 %s, 0x80, %s' % (vr(VDV + 1), vr(VDV))]

    def dmax(self, qb):
        T = VT + 4 + 2 * (qb & 1)
        sq = SB(qb)
        D = ['v_max3_f32 %s, %s, %s, %s' % (vr(T), vr(sq), vr(sq + 1), vr(sq + 2)),
             'v_max3_f32 %s, %s, %s, %s' % (vr(T + 1), vr(sq + 4), vr(sq + 5), vr(sq + 6)),
             'v_max3_f32 %s, %s, %s, %s' % (vr(T), vr(T), vr(sq + 3), vr(sq + 7)),
             'v_max_f32 %s, %s, %s' % (vr(T), vr(T), vr(T + 1))]
        for sw in ('v_permlane32_swap_b32', 'v_permlane16_swap_b32'):
            D += ['v_mov_b32 %s, %s' % (vr(T + 1), vr(T)), 's_nop 1', '%s %s, %s' % (sw, vr(T), vr(T + 1)), 'v_max_f32 %s, %s, %s' % (vr(T), vr(T), vr(T + 1))]
        D += ['v_sub_f32 %s, 0, %s' % (vr(V_C + 4 * qb + r), vr(T)) for r in range(4)]
        return D

    def sm0(self, qb):
        out = []
        st, pend = self.sm_stream(qb)
        sub = ['v_add_f32 %s, %s, %s' % (vr(SB(qb) + r), vr(SB(qb) + r), vr(V_C + 4 * qb)) for r in range(16)]
        return sub + [l for _, l in st] + ['s_nop 0'] + [l for _, l in pend]

    def head(self, role):
        o = self.o
        mid = o.mid if role == 0 else o.mid1
        L = []
        e = L.append
        vm = ['K0'] * 4 + ['Q%d' % j for j in range(o.qe[role]) for _ in range(4)]
        if o.vearly:
            vm[4 + 4 * o.vearly:4 + 4 * o.vearly] = ['V0'] * 4

        def wait(*tags):
            last = max(i for i, t in enumerate(vm) if t in tags)
            e('s_waitcnt vmcnt(%d)' % (len(vm) - 1 - last))

        RAW = O(3, 0)
        TM = O(3, 4)

        def prescale(qb, st):
            b = RAW + 4 * st
            t0 = TM + 8 * (st & 1)
            P = []
            for j in range(4):
                P.append('v_lshlrev_b32 %s, 16, %s' % (vr(t0 + 2 * j), vr(b + j)))
                P.append('v_and_b32 %s, %s, %s' % (vr(t0 + 2 * j + 1), sr(S_TMP), vr(b + j)))
            P += ['v_pk_mul_f32 %s, %s, %s' % (vr(t0 + 2 * j, 2), vr(t0 + 2 * j, 2), sr(S_C, 2)) for j in range(4)]
            P += ['v_cvt_pk_bf16_f32 %s, %s, %s' % (vr(t0 + 2 * j), vr(t0 + 2 * j), vr(t0 + 2 * j + 1)) for j in range(4)]
            P += ['v_accvgpr_write_b32 %s, %s' % (ar(A_Q + 16 * qb + 4 * st + j), vr(t0 + 2 * j)) for j in range(4)]
            return P

        def dma_lines(x):
            kind, t = x[0], int(x[1:])
            if kind == 'T':
                vm.append('C')
                return [([], 'buffer_load_dword %s, %s, %s, 0 offen' % (vr(VT + 7), vr(VOG), sr(S_OD, 4)))]
            if kind == 'C':
                vm.append('C')
                return [([], 'global_load_dwordx4 %s, %s, off' % (vr(VT + 8, 4), vr(VT + 8, 2)))]
            vm.extend([x] * 4)
            if kind == 'Q':
                pre = self.q_pre(t)
            else:
                pre = ['s_mov_b32 %s, %d' % (sr(S_OFFV if kind == 'V' else S_OFFK), 16384 * t), self.m0_for(kind, t), 's_nop 0']
            return [(pre if i == 0 else [], self.dma(kind, i)) for i in range(4)]

        def background(seg, xs, start, step):
            items = [z for x in xs for z in dma_lines(x)]
            out, nxt = [], start
            for i, l in enumerate(seg):
                out.append(l)
                if items and i >= nxt and (ismf(l) or not (i + 1 < len(seg) and ismf(seg[i + 1]))):
                    pre, ld = items.pop(0)
                    out += pre + [ld]
                    nxt = i + step
            for pre, ld in items:
                out += pre + [ld]
            return out

        for x in mid[0]:
            if x[0] == 'w':
                wait(x[1:])
            else:
                for pre, ld in dma_lines(x):
                    L += pre + [ld]
        L += self.stamp('set')
        F = []
        for qb in range(4):
            if qb == 1:
                wait('Q1', 'V0')
                L += self.stamp('q1')
                e('s_barrier')
            else:
                wait('Q%d' % qb)
                L += self.stamp('q%d' % qb)
            G = ['ds_read_b128 %s, %s offset:%d' % (vr(RAW + 4 * st, 4), vr(VT + st), 4096 * qb) for st in range(4)]
            G += F
            c0 = [[self.qk_mfma(qb, kb, st, st == 0, czero=True) for kb in range(4)] for st in range(4)]
            vl = self.v_list(0) if qb == 1 else []
            for st in range(4):
                P = prescale(qb, st)
                if st and qb:
                    m = c0[st - 1]
                    P = P[:12]
                    Q = prescale(qb, st)[12:]
                    for k in range(4):
                        P += [m[k]] + vl[:2] + Q[2 * k:2 * k + 2]
                        vl = vl[2:]
                G += P
            if qb == 0:
                G.append('s_barrier')
                kr = [self.k_read(0, kb, st) for st in range(4) for kb in range(4)]
                G += kr[:12] + c0[0][:1] + kr[12:] + c0[0][1:] + c0[1] + c0[2]
            for m in c0[3]:
                G += [m] + vl[:2]
                vl = vl[2:]
            assert not vl
            if qb < 3:
                S0 = self.dmax(qb) + self.sm0(qb)
                F = S0[len(S0) - o.carry:]
                S0 = S0[:len(S0) - o.carry]
                if qb:
                    G += self.pack(self.pv(qb - 1), [[(2, l) for l in S0]], lambda g: o.hcap[2])
                else:
                    G += S0
            L += background(G, mid[qb + 1], 3, o.bgstep)
        wait('K1', 'C')
        L += self.stamp('k1')
        e('s_barrier')
        mf = self.pv(2) + self.qk(4) + self.pv(3)
        s1 = [(k // 2, self.k_read(1, kb, st)) for k, (kb, st, _) in enumerate(self.qk_slots())]
        s2 = [(1, l) for l in self.dmax(3) + self.sm0(3)]
        st4, pend = self.sm_stream(4, lambda k: 17 + 4 * (k >> 2) + 3 + 3, 0, 13)
        G = self.pack(mf, [s1, s2, st4], lambda g: o.hcap[0] if g < NP else o.hcap[1])
        self.before(G, self.sm0(3), NP)
        assert not pend
        vl = self.v_list(1)
        out, k, nm = [], 0, 0
        for l in G:
            out.append(l)
            if ismf(l):
                nm += 1
                if nm == 34:
                    out.append('WAIT_V1')
                if nm > 34 + 1 and (nm & 1) == 0:
                    out += vl[k:k + 2]
                    k += 2
        j = out.index('WAIT_V1')
        L += background(out[:j], mid[5], 12, 13)
        wait('V1')
        e('s_barrier')
        L += background(out[j + 1:], mid[6], 2, 13)
        self.v_left = vl[k:]
        kv = [x for x in vm if x[0] in 'KV']
        assert [x for x in kv if x[0] == 'K'] == [x for x in ['K0', 'K1', 'K2', 'K3'] for _ in range(4)], vm
        assert [x for x in kv if x[0] == 'V'] == [x for x in ['V0', 'V1', 'V2'] for _ in range(4)], vm
        assert vm[-4:] == ['K3'] * 4, vm
        e('s_mov_b32 %s, %d' % (sr(S_OFFK), 16384 * 4))
        e('s_mov_b32 %s, %d' % (sr(S_OFFV), 16384 * 3))
        L += self.stamp('first')
        P = self.steady(4, 6)
        out, nm, left = [], -1, list(self.v_left)
        for i, l in enumerate(P):
            out.append(l)
            if ismf(l):
                nm += 1
                if left and nm not in self.EG:
                    nx = P[i + 1]
                    take = 1 if nx.startswith('v_cvt') else 2
                    out += left[:take]
                    left = left[take:]
        assert not left
        return L + out + self.stamp('loop')

    def norm_group(self, qb, j, packed):
        rc = VT + 4 + 2 * qb
        a, b = O(qb, 2 * j), O(qb, 2 * j + 1)
        if packed:
            V = ['v_pk_mul_f32 %s, %s, %s op_sel_hi:[1,0]' % (vr(a + 2 * k, 2), vr(a + 2 * k, 2), vr(rc, 2)) for k in range(4)]
        else:
            V = ['v_mul_f32 %s, %s, %s' % (vr(a + k), vr(a + k), vr(rc)) for k in range(8)]
        V += ['v_cvt_pk_bf16_f32 %s, %s, %s' % (vr(a), vr(a), vr(a + 1)), 'v_cvt_pk_bf16_f32 %s, %s, %s' % (vr(a + 1), vr(a + 2), vr(a + 3)),
              'v_cvt_pk_bf16_f32 %s, %s, %s' % (vr(a + 2), vr(b), vr(b + 1)), 'v_cvt_pk_bf16_f32 %s, %s, %s' % (vr(a + 3), vr(b + 2), vr(b + 3))]
        return V + ['ds_write2_b64 %s, %s, %s offset0:%d offset1:%d' % (vr(VOW + qb), vr(a, 2), vr(a + 2, 2), 8 * j, 8 * j + 4)]

    def o_reads(self, qb):
        return ['ds_read_b128 %s, %s offset:%d' % (vr(O(qb, 2 * i + 1), 4), vr(VOR), OPITCH * (16 * qb + 8 * (i & 1)) + 128 * (i >> 1)) for i in range(4)]

    def o_stores(self, qb):
        return ['buffer_store_dwordx4 %s, %s, %s, %s offen offset:%d %s' % (vr(O(qb, 2 * i + 1), 4), vr(VOG), sr(S_OD, 4), sr(S_OQ + qb) if qb else '0', 2048 * (i & 1) + 128 * (i >> 1), self.o.oflag[qb])
                for i in range(4)]

    def final(self):
        o = self.o
        T = VT
        mf = self.qk(62) + self.pv(61) + self.qk(63) + self.pv(62) + self.pv(63)
        N = len(mf)
        PVS = {0: -100, 1: 16, 2: 49, 3: 66}
        c61, pc = self.sm_stream(61, lambda k: 0, 13, 16)
        c61 += [(0, 's_nop 0')] + pc
        a, pa = self.sm_stream(62, lambda k: 4 * (k >> 2) + 6)
        b, pb = self.sm_stream(63, lambda k: NP + 4 * (k >> 2) + 6)
        pace = lambda st, g0: [(max(r, g0 + (o.fpace * i) // 8), l) for i, (r, l) in enumerate(st)]
        s2 = c61 + pace(a + [(0, 's_nop 0')] + pa, 6) + pace(b + [(0, 's_nop 0')] + pb, NP + 6)
        s3 = []
        for qb in range(4):
            r = max(0, PVS[qb] + o.fchk)
            s3 += [(r, 'v_accvgpr_read_b32 %s, %s' % (vr(T + qb), ar(A_L + 4 * qb))),
                   (r, 'v_accvgpr_read_b32 %s, %s' % (vr(T + 5 + 2 * qb), ar(A_L + 4 * qb + 1))),
                   (r, 'v_add_f32 %s, %s, %s' % (vr(T + qb), vr(T + qb), vr(T + 5 + 2 * qb))),
                   (r, 'v_cmp_ngt_f32 vcc, %s, %s' % (sr(S_THR), vr(T + qb))),
                   (r, 'v_rcp_f32 %s, %s' % (vr(T + 4 + 2 * qb), vr(T + qb))),
                   (r + 1, 's_cbranch_vccnz L_slow' if not o.exp else 's_nop 0')]
        s4 = []
        groups = [(qb, j) for qb in range(4) for j in range(4)]
        for n, (qb, j) in enumerate(groups):
            ready = max(PVS[qb] + 1 + 4 * j + 3 + 3, PVS[qb] + o.fchk + 3, 3)
            late = ready >= N - o.fpk
            if late:
                ready = N + 1
            s4 += [(ready, l) for l in self.norm_group(qb, j, late)]
        fc = lambda g: o.fcap[min(g // NP, 2)]
        G = self.pack(mf, [[(0, 's_barrier')], s3, s2, s4], lambda g: int(fc(g) * (g + 1)) - int(fc(g) * g), lambda g: 1)
        todo = []
        out, nw = [], 0
        since = 99
        for i, l in enumerate(G):
            out.append(l)
            if l.startswith('ds_write2'):
                nw += 1
                if nw % 2 == 0:
                    qb, h = (nw - 1) // 4, ((nw - 1) >> 1) & 1
                    todo += [(i, r) for r in self.o_reads(qb)[2 * h:2 * h + 2]] + [(i + o.fsd, st) for st in self.o_stores(qb)[2 * h:2 * h + 2]]
                    todo.sort(key=lambda z: not z[1].startswith('ds_read'))
            since += 1
            left = any(ismf(x) for x in G[i + 1:])
            slot = (ismf(l) and not ismem(G[i + 1])) if left else not (i + 1 < len(G) and ismem(G[i + 1]))
            if slot and todo and todo[0][0] <= i:
                if todo[0][1].startswith('ds_read'):
                    out += [todo.pop(0)[1], todo.pop(0)[1]]
                elif since >= o.fstep:
                    out.append(todo.pop(0)[1])
                    since = 0
        G = out + [l for _, l in todo]
        for n, lo, slot in ((61, 0, 16), (62, 0, 49), (63, NP, 66)):
            self.before(G, [cv for _, cv in self.sm_seq(n)[13:] if cv], slot, lo)
        return G

    def plain_store(self):
        L = [l for qb in range(4) for j in range(4) for l in self.norm_group(qb, j, True)]
        for qb in range(4):
            L += self.o_reads(qb)
        L.append('s_waitcnt lgkmcnt(0)')
        for qb in range(4):
            L += self.o_stores(qb)
        return L

    def slow_path(self):
        L = []
        e = L.append
        T = VT
        M = V_C
        SK = V_S + 36
        SV = SK + 1
        SVA = SK + 4
        S = lambda qb: V_S + 8 * qb
        e('L_slow:')
        e('s_waitcnt vmcnt(0) lgkmcnt(0)')
        e('s_nop 7')
        e('v_mbcnt_lo_u32_b32 v1, -1, 0')
        e('v_mbcnt_hi_u32_b32 v1, -1, v1')
        e('v_and_b32 v2, 15, v1')
        e('v_lshrrev_b32 v3, 4, v1')
        e('v_lshlrev_b32 v2, 8, v2')
        e('v_lshl_add_u32 %s, v3, 4, v2' % vr(SK))
        e('v_subrev_u32 %s, %s, %s' % (vr(SV), sr(S_M0K), vr(VDV)))
        e('v_subrev_u32 %s, %s, %s' % (vr(SV + 1), sr(S_M0K), vr(VDV + 1)))
        e('s_sub_u32 s3, %s, %d' % (sr(S_STG), V_BASE))
        for db in range(8):
            e('v_add_u32 %s, s3, %s' % (vr(SVA + db), vr(VVA + db)))
        for i in range(128):
            e('v_mov_b32 %s, 0' % vr(V_O + i))
        for qb in range(4):
            e('v_mov_b32 %s, 0xff7fffff' % vr(M + qb))
            e('v_mov_b32 %s, 0' % vr(M + 4 + qb))
        e('s_mov_b32 %s, 0' % sr(S_CNT))
        e('L_slow_loop:')
        e('s_mov_b32 m0, %s' % sr(S_STG))
        e('s_add_u32 s31, %s, 4096' % sr(S_CNT))
        for i in range(4):
            e('buffer_load_dwordx4 %s, %s, %s offen offset:%d lds' % (vr(SV + (i & 1)), sr(S_V, 4), sr(S_CNT), 1024 * i))
        e('s_add_u32 m0, %s, 4096' % sr(S_STG))
        e('s_nop 0')
        for i in range(4):
            e('buffer_load_dwordx4 %s, %s, s31 offen offset:%d lds' % (vr(SV + (i & 1)), sr(S_V, 4), 1024 * i))
        for kb in range(2):
            for st in range(4):
                e('buffer_load_dwordx4 %s, %s, %s, %s offen offset:%d' % (ar(A_K + 16 * kb + 4 * st, 4), vr(SK), sr(S_K, 4), 's31' if kb else sr(S_CNT), 64 * st))
        e('s_waitcnt vmcnt(0)')
        for kb in range(2):
            for st in range(4):
                for qb in range(4):
                    d = vr(S(qb) + 4 * kb, 4)
                    e('%s %s, %s, %s, %s' % (MF, d, ar(A_K + 16 * kb + 4 * st, 4), ar(A_Q + 16 * qb + 4 * st, 4), d if st else '0'))
        for db in range(8):
            for j in range(2):
                e(self.v_read(0, 0, db, j, addr=SVA, base=0))
        for qb in range(4):
            s = S(qb)
            e('v_max3_f32 %s, %s, %s, %s' % (vr(T + qb), vr(M + qb), vr(s), vr(s + 1)))
            for k in range(1, 4):
                e('v_max3_f32 %s, %s, %s, %s' % (vr(T + qb), vr(T + qb), vr(s + 2 * k), vr(s + 2 * k + 1)))
        L += self.xlane('v_max_f32', [T + q for q in range(4)], [T + 4 + q for q in range(4)])
        for qb in range(4):
            e('v_sub_f32 %s, %s, %s' % (vr(M + 8 + qb), vr(M + qb), vr(T + qb)))
        for qb in range(4):
            e('v_exp_f32 %s, %s' % (vr(M + 8 + qb), vr(M + 8 + qb)))
        for qb in range(4):
            e('v_mov_b32 %s, %s' % (vr(M + qb), vr(T + qb)))
        for qb in range(4):
            s = S(qb)
            for r in range(8):
                e('v_sub_f32 %s, %s, %s' % (vr(s + r), vr(s + r), vr(T + qb)))
            for r in range(8):
                e('v_exp_f32 %s, %s' % (vr(s + r), vr(s + r)))
            e('v_mul_f32 %s, %s, %s' % (vr(M + 4 + qb), vr(M + 4 + qb), vr(M + 8 + qb)))
            for r in range(8):
                e('v_add_f32 %s, %s, %s' % (vr(M + 4 + qb), vr(M + 4 + qb), vr(s + r)))
            for j in range(4):
                e('v_cvt_pk_bf16_f32 %s, %s, %s' % (vr(s + j), vr(s + 2 * j), vr(s + 2 * j + 1)))
            for i in range(32):
                e('v_mul_f32 %s, %s, %s' % (vr(O(qb, 0) + i), vr(O(qb, 0) + i), vr(M + 8 + qb)))
        e('s_waitcnt lgkmcnt(0)')
        e('s_nop 1')
        for db in range(8):
            for qb in range(4):
                o = vr(O(qb, db), 4)
                e('%s %s, %s, %s, %s' % (MF, o, ar(A_V + 4 * db, 4), vr(S(qb), 4), o))
        e('s_nop 7')
        e('s_add_u32 %s, %s, 8192' % (sr(S_CNT), sr(S_CNT)))
        e('s_cmp_lt_u32 %s, 0x40000' % sr(S_CNT))
        e('s_cbranch_scc1 L_slow_loop')
        for qb in range(4):
            e('v_mov_b32 %s, %s' % (vr(T + qb), vr(M + 4 + qb)))
        L += self.xlane('v_add_f32', [T + q for q in range(4)], [T + 4 + q for q in range(4)])
        for qb in range(4):
            e('v_rcp_f32 %s, %s' % (vr(T + 4 + 2 * qb), vr(T + qb)))
        e('s_nop 0')
        L += self.plain_store()
        e('s_branch L_end')
        return L

    def stamps_out(self):
        if not self.o.stamps:
            return []
        L = []
        e = L.append
        L += self.stamp('stored')
        e('s_waitcnt vmcnt(0) lgkmcnt(0)')
        e('s_memrealtime s[100:101]')
        L += self.stamp()
        e('s_waitcnt lgkmcnt(0)')
        e('s_mov_b32 s84, s96')
        e('s_mov_b32 s85, s97')
        e('s_mov_b32 s86, 0x100000')
        e('s_mov_b32 s87, 0x20000')
        e('s_getreg_b32 s88, hwreg(HW_REG_XCC_ID)')
        e('s_getreg_b32 s89, hwreg(HW_REG_HW_ID)')
        e('s_lshl_b32 s3, s2, 2')
        e('s_add_u32 s3, s3, %s' % sr(S_W))
        e('s_lshl_b32 s3, s3, 8')
        e('v_mov_b32 v1, s3')
        vals = [98, 99, 100, 101, 88, 89] + [S_TS + 4 * k for k in range(10)] + [S_TS + 4 * k + 2 for k in range(10)]
        e('s_mov_b64 exec, 1')
        for k, s in enumerate(vals):
            e('v_mov_b32 v2, s%d' % s)
            e('buffer_store_dword v2, v1, s[84:87], 0 offen offset:%d' % (4 * k))
        if self.o.probe:
            a, b, wg = [int(x) for x in self.o.probe.split(',')]
            e('s_cmp_eq_u32 s2, %d' % wg)
            e('s_cbranch_scc0 L_done')
            e('s_cmp_eq_u32 %s, 0' % sr(S_W))
            e('s_cbranch_scc0 L_done')
            e('s_sub_u32 s30, s%d, s%d' % (S_TS + 4 * b + 2, S_TS + 4 * a + 2))
            e('s_mul_i32 s30, s30, 10')
            e('s_add_u32 s30, s30, 10000')
            e('L_spin:')
            e('s_sleep 1')
            e('s_memrealtime s[34:35]')
            e('s_waitcnt lgkmcnt(0)')
            e('s_sub_u32 s34, s34, s98')
            e('s_cmp_lt_u32 s34, s30')
            e('s_cbranch_scc1 L_spin')
        return L

    def build(self):
        o = self.o
        com = self.common()
        n0 = self.nts
        com1 = com
        if 'L_qskip:' in com:
            com1 = com[:com.index('s_cbranch_scc1 L_qskip') + 1] + com[com.index('L_qskip:'):]
        pro1 = []
        if o.roles:
            pro1 = ['L_role1:'] + self.fix_hazards(com1, self.auto_lgkm(self.head(1), o.hage)) + ['s_branch L_loop']
            self.nts = n0
        pro = com + self.fix_hazards(com, self.auto_lgkm(self.head(0), o.hage))
        st_a = []
        body = [self.auto_lgkm(self.steady(4 * t + 2, 4 * t + 6), o.age) for t in range(1, 5)]
        inc, cmp_ = 's_add_u32 %s, %s, 1' % (sr(S_CNT), sr(S_CNT)), 's_cmp_lt_u32 %s, 3' % sr(S_CNT)
        b = body[3]
        ms = [i for i, l in enumerate(b) if ismf(l)]
        b.insert(ms[-2] + 1, cmp_)
        assert not any(l.startswith('s_add') for l in b[ms[-2]:])
        b.insert(ms[-4] + 1, inc)
        b.append('s_cbranch_scc1 L_loop')
        st_b = self.stamp('body')
        g13 = self.auto_lgkm(self.steady(54, 58, vmw=8, kdma=False, vdma=False), o.age)
        g14 = self.steady(58, 61, vmw=0, kdma=False, vdma=False)
        st_c = self.stamp('fin')
        fin = self.fix_hazards(g13, self.auto_lgkm(g14 + st_c + self.final(), o.age))
        for pat in o.drop:
            fin = [l for l in fin if not l.startswith(pat)]
        so = self.stamps_out()
        slow = self.slow_path()
        if o.phase:
            pro = keep_phase(pro)
            pro1 = ['.p2align 3'] + keep_phase(pro1) if pro1 else []
            if o.phase > 1:
                flat = keep_phase([l for x in body for l in x])
                body = [flat]
            n = sum(isize(l) for x in body for l in x) + sum(isize(l) for l in st_b)
            if o.phase > 1:
                g13 = keep_phase(g13, n)
            n += sum(isize(l) for l in g13)
            fin = keep_phase(fin, n)

        text = pro + st_a + ['; ---- steady state: 4 tiles per trip, per q block QK(next) | row sum | PV, softmax in the MFMA gaps ----']
        if o.align:
            text.append('.p2align %d' % o.align)
        text.append('L_loop:')
        for x in body:
            text += x
        text += st_b + ['; ---- last tiles, overflow check, scaling and stores ----'] + g13 + fin + ['L_end:'] + so + ['L_done:', 's_endpgm']
        text += ['; ---- start-up of the second q head of a pair (same work, its Q is requested a little later) ----'] + pro1
        text += ['; ---- guarded path: true running max ----'] + slow

        loop = [l for x in body for l in x]
        probs = check_trace(pro + st_a + loop * 3 + st_b + g13 + fin + so)
        if o.roles:
            probs += check_trace(com1 + pro1 + loop)
        i0 = slow.index('L_slow_loop:')
        i1 = slow.index('s_cbranch_scc1 L_slow_loop')
        for kb in [i for i, l in enumerate(fin) if 'L_slow' in l]:
            probs += check_trace(g13 + fin[:kb + 1] + slow[:i1 + 1] + slow[i0:])
        return text, probs, [pro, body[0], fin]

    def emit(self):
        text, probs, parts = self.build()
        out = []
        for l in open(self.o.ref).read().split('\n'):
            if l.startswith('; @launch'):
                out.append('; @launch grid=(256,1,1) block=(256,1,1) lds=163840')
            elif l.startswith(';'):
                out.append(l)
            else:
                break
        out += DOC
        out += ['.amdgcn_target "amdgcn-amd-amdhsa--gfx950"', '.text', '.globl %s_kernel' % NAME, '.p2align 8',
                '.type %s_kernel,@function' % NAME, '%s_kernel:' % NAME]
        for l in text:
            out.append(l if (l.endswith(':') or l.startswith('.') or l.startswith(';')) else '    ' + l)
        out += ['.section .rodata,"a"', '.p2align 6', '.amdhsa_kernel %s_kernel' % NAME,
                '  .amdhsa_next_free_vgpr 472', '  .amdhsa_next_free_sgpr 102', '  .amdhsa_accum_offset 256',
                '  .amdhsa_group_segment_fixed_size 0', '  .amdhsa_kernarg_size 48', '  .amdhsa_user_sgpr_count 2',
                '  .amdhsa_user_sgpr_kernarg_segment_ptr 1', '  .amdhsa_system_sgpr_workgroup_id_x 1',
                '  .amdhsa_float_denorm_mode_32 3', '  .amdhsa_float_denorm_mode_16_64 3',
                '.end_amdhsa_kernel', '']
        return '\n'.join(out), probs, parts


def ilist(s):
    return [int(x) for x in s.split(',')]


def mlist(s):
    return [x.split(',') if x else [] for x in s.split('/')]


def parse(argv):
    ap = argparse.ArgumentParser()
    ap.add_argument('-o', default='cdna_kernels/%s.s' % NAME)
    ap.add_argument('--ref', default='cdna_kernels/%s.s.ref' % NAME)
    ap.add_argument('--thr', type=float, default=32)
    ap.add_argument('--stamps', action='store_true')
    ap.add_argument('--st', type=lambda s: s.split(','), default=['q0', 'q3', 'k1', 'first', 'loop', 'body', 'fin', 'stored'])
    ap.add_argument('--probe', default='')
    ap.add_argument('--vearly', type=int, default=0)
    ap.add_argument('--phase', type=int, default=0)
    ap.add_argument('--nodma', action='store_true')
    ap.add_argument('--nobar', action='store_true')
    ap.add_argument('--show', type=int, default=-1)
    ap.add_argument('--exp', default='')
    ap.add_argument('--drop', type=lambda s: s.split(','), default=[])
    ap.add_argument('--align', type=int, default=6)
    ap.add_argument('--age', type=int, default=12)
    ap.add_argument('--hage', type=int, default=24)
    ap.add_argument('--kdg', type=int, default=3)
    ap.add_argument('--vdg', type=int, default=7)
    ap.add_argument('--dstride', type=int, default=4)
    ap.add_argument('--roles', type=int, default=1)
    ap.add_argument('--qe', type=ilist, default=[1, 1])
    ap.add_argument('--mid', type=mlist, default=mlist('V0,Q1/Q2,C0/Q3/K1/V1/K2,V2/K3'))
    ap.add_argument('--mid1', type=mlist, default=mlist('V0/Q1,C0/Q2/Q3,K1/V1/K2,V2/K3'))
    ap.add_argument('--bgstep', type=int, default=14)
    ap.add_argument('--carry', type=int, default=16)
    ap.add_argument('--cover', type=int, default=5)
    ap.add_argument('--hcap', type=ilist, default=[4, 3, 4])
    ap.add_argument('--fcap', type=lambda s: [float(x) for x in s.split(',')], default=[6, 6, 6])
    ap.add_argument('--fpace', type=int, default=8)
    ap.add_argument('--fpk', type=int, default=4)
    ap.add_argument('--fsd', type=int, default=14)
    ap.add_argument('--fstep', type=int, default=9)
    ap.add_argument('--fchk', type=int, default=4)
    ap.add_argument('--kvflag', type=lambda s: s.replace('+', ' ') + ' ' if s else '', default='')
    ap.add_argument('--qflag', type=lambda s: s.replace('+', ' ') + ' ' if s else '', default='')
    ap.add_argument('--oflag', type=lambda s: ([x.replace('+', ' ') for x in s.split(',')] * 4)[:4], default=['nt'] * 4)
    return ap.parse_args(argv)


SHORT = [('v_smfmac_f32_16x16x64_bf16', 'S'), ('v_mfma_f32_16x16x32_bf16', 'M'), ('v_exp_f32', 'e'), ('ds_read_b64_tr_b16', 't'), ('v_cvt_pk_bf16_f32', 'c'), ('ds_read_b128', 'R'), ('s_waitcnt', 'w'),
         ('v_add_f32', 'a'), ('s_add_u32', 's'), ('s_mov_b32', 's'), ('s_barrier', 'BAR'), ('v_permlane32_swap_b32', 'x'), ('v_permlane16_swap_b32', 'x'),
         ('buffer_load_dwordx4', 'D'), ('v_pk_mul_f32', 'P'), ('s_nop', 'n'), ('v_accvgpr_write_b32', 'A'), ('v_lshlrev_b32', 'l'), ('v_and_b32', '&'),
         ('v_max3_f32', 'mx'), ('v_max_f32', 'mx'), ('v_mov_b32', 'mv'), ('v_sub_f32', 'sb'), ('global_load_dwordx4', 'G'), ('v_mul_f32', 'm'),
         ('ds_write2_b64', 'W'), ('buffer_store_dwordx4', 'ST'), ('v_accvgpr_read_b32', 'acc'), ('v_cmp_ngt_f32', 'cmp'), ('v_rcp_f32', 'rcp'), ('s_cbranch_vccnz', 'br')]

if __name__ == '__main__':
    o = parse(sys.argv[1:])
    g = Gen(o)
    s, probs, parts = g.emit()
    open(o.o, 'w').write(s)
    if o.show >= 0:
        d = dict(SHORT)
        cur, k = [], -1
        for l in parts[o.show] + [MF]:
            if ismf(l):
                print('%d: %s' % (k, ' '.join(cur)))
                cur = []
                k += 1
            cur.append(d.get(l.split()[0], l.split()[0]))
    for p in probs[:40]:
        print('HAZARD', p)
    print('%d hazard findings' % len(probs))
```
